```python
import torch

def _softmax(x, axis=-1):
    return torch.softmax(x, dim=axis)
def _gelu(x):
    return torch.nn.functional.gelu(x, approximate="tanh")
def _silu(x):
    return torch.nn.functional.silu(x)
def _sigmoid(x):
    return torch.sigmoid(x)
def _layernorm(x, axis=-1, eps=1e-5):
    m = x.mean(dim=axis, keepdim=True)
    v = x.var(dim=axis, keepdim=True, unbiased=False)
    return (x - m) / torch.sqrt(v + eps)
def _scatter_add(tgt, idx, src, axis=0):
    return tgt.clone().index_add_(axis, idx, src)
def _segment_sum(src, seg, n):
    out = torch.zeros((n,) + src.shape[1:], dtype=src.dtype)
    return out.index_add_(0, seg, src)
def _pad(x, pw):
    flat = tuple(v for pair in reversed(pw) for v in pair)
    return torch.nn.functional.pad(x, flat)

kernel_name = 'concat_heads__ssm_conv_s5__grouped_kv_mqa__prompt'

def setup_inputs():

    _w = (lambda a: (lambda t: t.to(torch.bfloat16) if t.is_floating_point() else t)(torch.as_tensor(a)))
    def _A_setup():
        B, S, D = 1, 2048, 448
        P = D
        Lambda_re = -0.5 * (lambda _x: torch.exp(torch.as_tensor(_x)))((lambda *s: torch.randn(*s, dtype=torch.bfloat16) * 0.4)(P))
        Lambda_im = (lambda *s: torch.randn(*s, dtype=torch.bfloat16) * 0.8)(P) * 1.0
        B_re = (lambda *s: torch.randn(*s, dtype=torch.bfloat16) * 0.4)(P, D) * (D ** -0.5)
        B_im = (lambda *s: torch.randn(*s, dtype=torch.bfloat16) * 0.4)(P, D) * (D ** -0.5)
        C_re = (lambda *s: torch.randn(*s, dtype=torch.bfloat16) * 0.4)(D, P) * (P ** -0.5)
        C_im = (lambda *s: torch.randn(*s, dtype=torch.bfloat16) * 0.4)(D, P) * (P ** -0.5)
        log_dt = (lambda *s: torch.randn(*s, dtype=torch.bfloat16) * 0.4)(P) * 0.3 - 2.0
        Dskip = (lambda *s: torch.randn(*s, dtype=torch.bfloat16) * 0.1)(D)
        return {
            "x": _w((lambda *s: torch.randn(*s, dtype=torch.bfloat16) * 0.05)(B, S, D)),
            "Lambda_re": _w(Lambda_re),
            "Lambda_im": _w(Lambda_im),
            "B_re": _w(B_re),
            "B_im": _w(B_im),
            "C_re": _w(C_re),
            "C_im": _w(C_im),
            "log_dt": _w(log_dt),
            "Dskip": _w(Dskip),
        }
    _A_in = _A_setup()

    def _B_setup():
        B, S, D, H = 1, 2048, 448, 16
        Dh = D // H
        return {
            "x": _w((lambda *s: torch.randn(*s, dtype=torch.bfloat16) * 0.05)(B, S, D)),
            "wq": _w((lambda *s: torch.randn(*s, dtype=torch.bfloat16) * 1.6)(D, H * Dh)),
            "wk": _w((lambda *s: torch.randn(*s, dtype=torch.bfloat16) * 1.6)(D, Dh)),
            "wv": _w((lambda *s: torch.randn(*s, dtype=torch.bfloat16) * 0.05)(D, Dh)),
            "wo": _w((lambda *s: torch.randn(*s, dtype=torch.bfloat16) * 0.05)(H * Dh, D)),
        }
    _B_in = _B_setup()

    return {
        "A_x": _A_in["x"],
        "A_Lambda_re": _A_in["Lambda_re"],
        "A_Lambda_im": _A_in["Lambda_im"],
        "A_B_re": _A_in["B_re"],
        "A_B_im": _A_in["B_im"],
        "A_C_re": _A_in["C_re"],
        "A_C_im": _A_in["C_im"],
        "A_log_dt": _A_in["log_dt"],
        "A_Dskip": _A_in["Dskip"],
        "B_x": _B_in["x"],
        "B_wq": _B_in["wq"],
        "B_wk": _B_in["wk"],
        "B_wv": _B_in["wv"],
        "B_wo": _B_in["wo"],
    }

def reference(A_x, A_Lambda_re, A_Lambda_im, A_B_re, A_B_im, A_C_re, A_C_im, A_log_dt, A_Dskip, B_x, B_wq, B_wk, B_wv, B_wo):
    def _A_ref(x, Lambda_re, Lambda_im, B_re, B_im, C_re, C_im, log_dt, Dskip):
        Bsz, L, H = x.shape
        Lam = Lambda_re + 1j * Lambda_im
        Bmat = B_re + 1j * B_im
        Cmat = C_re + 1j * C_im
        dt = torch.exp(log_dt)
        Lam_bar = torch.exp(dt * Lam)
        B_bar = ((Lam_bar - 1.0) / Lam)[:, None] * Bmat
        Bu = torch.einsum("bld,pd->blp", x + 0j, B_bar)
        h = torch.zeros_like(Bu[:, 0, :])
        hs = []
        for t in range(L):
            h = Lam_bar[None, :] * h + Bu[:, t, :]
            hs.append(h)
        hseq = torch.stack(hs, 1)
        y = 2.0 * torch.einsum("blp,dp->bld", hseq, Cmat).real + x * Dskip[None, None, :]
        return y

    def _B_ref(x, wq, wk, wv, wo):
        B, S, D = x.shape
        H = 16
        Dh = D // H
        q = (lambda x, *d: x.permute(*d))((x @ wq).reshape(B, S, H, Dh), 0, 2, 1, 3)
        k = x @ wk
        v = x @ wv
        scores = torch.einsum("bhqd,bkd->bhqk", q, k) * (Dh ** -0.5)
        p = _softmax(scores, axis=-1)
        o = torch.einsum("bhqk,bkd->bhqd", p, v)
        return (lambda x, *d: x.permute(*d))(o, 0, 2, 1, 3).reshape(B, S, H * Dh) @ wo

    a = _A_ref(A_x, A_Lambda_re, A_Lambda_im, A_B_re, A_B_im, A_C_re, A_C_im, A_log_dt, A_Dskip)
    b = _B_ref(B_x, B_wq, B_wk, B_wv, B_wo)
    return torch.concatenate([a, b], axis=-1)
```

```python
import re

TRANS = ("v_exp_f32", "v_log_f32", "v_rcp_f32", "v_rsq_f32", "v_sqrt_f32", "v_sin_f32", "v_cos_f32",
         "v_exp_f16", "v_rcp_iflag_f32")

_reg_re = re.compile(r"^(-|abs\(|\|)?([vsa])(\d+)\)?\|?$")
_rng_re = re.compile(r"^(-|abs\(|\|)?([vsa])\[(\d+):(\d+)\]\)?\|?$")


def regs_of(tok):
    tok = tok.strip()
    m = _reg_re.match(tok)
    if m:
        return [(m.group(2), int(m.group(3)))]
    m = _rng_re.match(tok)
    if m:
        return [(m.group(2), i) for i in range(int(m.group(3)), int(m.group(4)) + 1)]
    if tok == "vcc":
        return [("vcc", 0)]
    if tok == "exec":
        return [("exec", 0)]
    if tok == "m0":
        return [("m0", 0)]
    return []


def v(n, cnt=1):
    return f"v{n}" if cnt == 1 else f"v[{n}:{n + cnt - 1}]"


def s(n, cnt=1):
    return f"s{n}" if cnt == 1 else f"s[{n}:{n + cnt - 1}]"


class Inst:
    __slots__ = ("text", "mn", "kind", "w", "r", "srcc", "ab", "passes", "states", "store_data", "flags")


def parse(text):
    t = text.split(";")[0].strip()
    i = Inst()
    i.text = text
    parts = t.split(None, 1)
    mn = parts[0]
    i.mn = mn
    rest = parts[1] if len(parts) > 1 else ""
    rest = re.sub(r"\s+(op_sel|op_sel_hi|neg_lo|neg_hi):\[[^\]]*\]", "", rest)
    ops = [o.strip() for o in rest.split(",")] if rest else []
    mods = []
    if ops:
        last = ops[-1].split()
        ops[-1] = last[0] if last else ""
        mods = last[1:]
    i.w, i.r, i.srcc, i.ab, i.passes, i.states, i.store_data, i.flags = set(), set(), set(), set(), 0, 1, set(), set()
    R = lambda k: set(sum((regs_of(o) for o in ops[k:]), []))
    if mn == "s_nop":
        i.kind = "nop"
        i.states = int(ops[0], 0) + 1
    elif mn.startswith("v_mfma"):
        i.kind = "mfma"
        i.passes = 8 if "32x32x16" in mn else 4 if "16x16x32" in mn else None
        assert i.passes
        i.w = set(regs_of(ops[0]))
        i.ab = set(regs_of(ops[1])) | set(regs_of(ops[2]))
        i.srcc = set(regs_of(ops[3]))
        i.r = i.ab | i.srcc
    elif mn.startswith("v_cmp"):
        i.kind = "valu"
        i.w = set(regs_of(ops[0]))
        i.r = R(1)
        if mn.startswith("v_cmpx"):
            i.w.add(("exec", 0))
    elif mn.startswith("v_permlane"):
        i.kind = "valu"
        i.flags.add("permlane")
        i.w = R(0)
        i.r = R(0)
    elif mn.startswith("v_readfirstlane") or mn.startswith("v_readlane"):
        i.kind = "valu"
        i.flags.add("readlane")
        i.w = set(regs_of(ops[0]))
        i.r = R(1)
    elif mn.startswith("v_"):
        i.kind = "valu"
        base = mn.replace("_e32", "").replace("_e64", "")
        if base in TRANS:
            i.flags.add("trans")
        i.w = set(regs_of(ops[0]))
        if mn.startswith(("v_add_co", "v_sub_co", "v_addc_co", "v_subb_co")):
            i.w |= set(regs_of(ops[1]))
            i.r = R(2)
        else:
            i.r = R(1)
        if mn.startswith(("v_fmac", "v_dot2c")) or "UNUSED_PRESERVE" in t:
            i.r |= i.w
        if "_dpp" in mn:
            i.flags.add("dpp")
            i.r |= i.w
        if "_sdwa" in mn or ("op_sel" in t and not mn.startswith("v_pk_")):
            i.flags.add("opsel")
    elif mn.startswith(("buffer_load", "global_load")):
        i.kind = "vmem"
        if "lds" in mods:
            i.r = R(0) | {("m0", 0)}
            i.flags.add("ldsdma")
        else:
            i.w = set(regs_of(ops[0]))
            i.r = R(1)
            if "d16" in mn:
                i.r |= i.w
    elif mn.startswith(("buffer_store", "global_store", "buffer_atomic", "global_atomic")):
        i.kind = "vmem"
        i.r = R(0)
        if "x3" in mn or "x4" in mn:
            d = ops[0] if mn.startswith("buffer") else ops[1]
            i.store_data = set(regs_of(d))
        if "atomic" in mn and "sc0" in mods:
            i.w = set(regs_of(ops[0]))
    elif mn.startswith(("buffer_inv", "buffer_wbl2")):
        i.kind = "vmem"
    elif mn.startswith(("ds_read", "ds_bpermute", "ds_permute", "ds_swizzle")) or (mn.startswith("ds_") and "_rtn" in mn):
        i.kind = "ds"
        i.w = set(regs_of(ops[0]))
        i.r = R(1)
        if "d16" in mn:
            i.r |= i.w
    elif mn.startswith("ds_"):
        i.kind = "ds"
        i.r = R(0)
    elif mn.startswith(("s_load", "s_buffer_load", "s_memtime", "s_memrealtime")):
        i.kind = "smem"
        i.w = set(regs_of(ops[0]))
        i.r = R(1)
    elif mn.startswith(("s_waitcnt", "s_barrier", "s_branch", "s_cbranch", "s_endpgm", "s_setprio", "s_sleep")):
        i.kind = "ctl"
    elif mn.startswith("s_cmp") or mn.startswith("s_bitcmp"):
        i.kind = "salu"
        i.r = R(0)
    elif mn.startswith("s_"):
        i.kind = "salu"
        i.w = set(regs_of(ops[0]))
        i.r = R(1)
        if "saveexec" in mn:
            i.w.add(("exec", 0))
    else:
        raise ValueError("unknown instruction " + text)
    return i


def isv(x):
    return x[0] in ("v", "a")


def need(p, c):
    n = 0
    pw_v = {x for x in p.w if isv(x)}
    pw_s = {x for x in p.w if x[0] in ("s", "vcc")}
    if p.kind == "valu":
        if c.kind == "mfma" and pw_v & c.r:
            n = max(n, 2)
        if "trans" in p.flags and c.kind == "valu" and pw_v & c.r:
            n = max(n, 1)
        if "trans" in p.flags and c.kind in ("vmem", "ds") and pw_v & c.r:
            n = max(n, 1)
        if "opsel" in p.flags and c.kind == "valu" and pw_v & (c.r | c.w):
            n = max(n, 1)
        if c.kind == "valu" and pw_s & c.r:
            n = max(n, 4 if "readlane" in c.flags else 2)
        if c.kind == "valu" and ("vcc", 0) in pw_s and c.mn.startswith(("v_cndmask", "v_addc", "v_subb")):
            n = max(n, 2)
        if c.kind == "vmem" and pw_s & c.r:
            n = max(n, 5)
        if c.kind in ("salu", "smem") and pw_s & c.r:
            n = max(n, 1)
        if c.kind == "ctl" and ("vcc", 0) in pw_s and "vcc" in c.mn:
            n = max(n, 1)
        if "readlane" in c.flags and pw_v & c.r:
            n = max(n, 1)
        if ("permlane" in c.flags or "dpp" in c.flags) and pw_v & c.r:
            n = max(n, 2)
        if ("exec", 0) in p.w:
            if c.kind == "mfma" or "readlane" in c.flags or "permlane" in c.flags:
                n = max(n, 4)
            if "dpp" in c.flags:
                n = max(n, 5)
    if p.kind == "mfma":
        big = {4: 8, 8: 12}[p.passes]
        if c.kind == "mfma":
            if pw_v & c.ab:
                n = max(n, big)
            if pw_v & c.srcc:
                if not (c.srcc == pw_v and c.passes == p.passes):
                    n = max(n, big - 2)
            elif pw_v & c.w and not (c.w == pw_v):
                n = max(n, big - 2)
        elif c.kind == "valu":
            if pw_v & (c.r | c.w):
                n = max(n, big)
            if p.srcc & c.w:
                n = max(n, {4: 3, 8: 7}[p.passes])
        elif c.kind in ("vmem", "ds"):
            if pw_v & (c.r | c.w):
                n = max(n, big)
    if p.kind == "salu" and ("m0", 0) in p.w and ("m0", 0) in c.r and c.kind in ("vmem", "ds"):
        n = max(n, 1)
    if p.kind == "vmem" and p.store_data and (p.store_data & c.w):
        n = max(n, 2)
    return n


class Asm:
    def __init__(self):
        self.out = []
        self.hist = []
        self.vm = 0
        self.lg = 0
        self.nops = 0

    def raw(self, text):
        self.out.append(text)

    def comment(self, text):
        self.out.append("    ; " + text)

    def _emit(self, inst):
        self.out.append("    " + inst.text)
        self.hist.append(inst)
        if len(self.hist) > 40:
            self.hist.pop(0)

    def __call__(self, text):
        for line in text.strip().split("\n"):
            line = line.strip()
            if not line or line.startswith(";"):
                continue
            self.one(line)

    def one(self, text):
        c = parse(text)
        dist = 0
        pad = 0
        for p in reversed(self.hist):
            n = need(p, c)
            if n > dist:
                pad = max(pad, n - dist)
            dist += p.states
            if dist > 24:
                break
        while pad > 0:
            k = min(pad, 16)
            self._emit(parse(f"s_nop {k - 1}"))
            self.nops += 1
            pad -= k
        self._emit(c)
        if c.kind == "vmem":
            self.vm += 1
            return self.vm
        if c.kind == "ds":
            self.lg += 1
            return self.lg
        return None

    def label(self, name, flush=True):
        if flush:
            self.fence()
        self.out.append(name + ":")

    def fence(self):
        dist = 0
        pad = 0
        for p in reversed(self.hist):
            n = 12 if p.kind == "mfma" and p.passes == 8 else 8 if p.kind == "mfma" else 5 if p.kind == "valu" else 2 if p.kind == "vmem" else 1 if p.kind == "salu" else 0
            if n > dist:
                pad = max(pad, n - dist)
            dist += p.states
            if dist > 24:
                break
        if pad > 0:
            self._emit(parse(f"s_nop {pad - 1}"))
        self.hist = []

    def wait_vm(self, tok):
        n = self.vm - tok
        assert 0 <= n
        self.one(f"s_waitcnt vmcnt({min(n, 63)})")

    def wait_lg(self, tok):
        n = self.lg - tok
        assert 0 <= n
        self.one(f"s_waitcnt lgkmcnt({min(n, 15)})")

    def text(self):
        return "\n".join(self.out) + "\n"
```

```python
from dsl import Asm, v, s
import math
import struct

QF_OFF = 0x000000
KV_OFF = 0x200000
KMAX_OFF = 0x240000
PFX_OFF = 0x250000
E128_OFF = 0x2C0000
OF_OFF = 0x400000
BUP_OFF = 0x600000
H_OFF = 0xA00000
WS_USED = 0xE00000

X_BYTES = 2048 * 448 * 2
W_BYTES = 448 * 448 * 2
WKV_BYTES = 448 * 28 * 2
OUT_BYTES = 2048 * 896 * 4

LOG2E = 1.4426950408889634
CSCALE = LOG2E / math.sqrt(28.0)


def f32(x):
    return "0x%08x" % struct.unpack("<I", struct.pack("<f", x))[0]


P_AX, P_LRE, P_LIM, P_BRE, P_BIM, P_CRE, P_CIM, P_LDT = 16, 18, 20, 22, 24, 26, 28, 30
P_DSK, P_BX, P_WQ, P_WK, P_WV, P_WO, P_OUT, P_DBG, P_WS = 32, 34, 36, 38, 40, 42, 44, 46, 48


def load_args(a):
    a("s_load_dwordx16 s[16:31], s[0:1], 0")
    a("s_load_dwordx16 s[32:47], s[0:1], 64")
    a("s_load_dwordx2 s[48:49], s[0:1], 128")


def srd(a, d, ptr, nbytes, off=0):
    if off:
        a(f"s_add_u32 s{d}, s{ptr}, {off}")
        a(f"s_addc_u32 s{d + 1}, s{ptr + 1}, 0")
    else:
        a(f"s_mov_b32 s{d}, s{ptr}")
        a(f"s_mov_b32 s{d + 1}, s{ptr + 1}")
    a(f"s_mov_b32 s{d + 2}, {nbytes}")
    a(f"s_mov_b32 s{d + 3}, 0x00020000")


def code_prefetch(a, start_label, nbytes, vtid16, vdst, stmp, threads):
    a(f"s_getpc_b64 s[{stmp}:{stmp + 1}]")
    per = threads * 16
    n = (nbytes + per - 1) // per
    for i in range(n):
        a(f"global_load_dwordx4 v[{vdst}:{vdst + 3}], v{vtid16}, s[{stmp}:{stmp + 1}]")
        if i + 1 < n:
            a(f"s_add_u32 s{stmp}, s{stmp}, {per}")
            a(f"s_addc_u32 s{stmp + 1}, s{stmp + 1}, 0")


def lam_base(a, vldt, vlre, vlim, va2, vth, tmp):
    a(f"v_lshlrev_b32 v{vldt}, 16, v{vldt}")
    a(f"v_lshlrev_b32 v{vlre}, 16, v{vlre}")
    a(f"v_lshlrev_b32 v{vlim}, 16, v{vlim}")
    a(f"v_mul_f32 v{vldt}, {f32(LOG2E)}, v{vldt}")
    a(f"v_exp_f32 v{vldt}, v{vldt}")
    a(f"v_cvt_pk_bf16_f32 v{vldt}, v{vldt}, v{vldt}")
    a(f"v_lshlrev_b32 v{vldt}, 16, v{vldt}")
    a(f"v_mul_f32 v{va2}, v{vldt}, v{vlre}")
    a(f"v_mul_f32 v{vth}, v{vldt}, v{vlim}")
    a(f"v_mul_f32 v{va2}, {f32(LOG2E)}, v{va2}")
    a(f"v_mul_f32 v{vth}, {f32(-1.0 / (2 * math.pi))}, v{vth}")


def lam_pow(a, va2, vth, n, vr, vi, tmp):
    if n == 1:
        a(f"v_exp_f32 v{tmp}, v{va2}")
        a(f"v_fract_f32 v{vi}, v{vth}")
    else:
        nn = f32(float(n)) if not isinstance(n, str) else n
        a(f"v_mul_f32 v{tmp}, {nn}, v{va2}")
        a(f"v_mul_f32 v{vi}, {nn}, v{vth}")
        a(f"v_exp_f32 v{tmp}, v{tmp}")
        a(f"v_fract_f32 v{vi}, v{vi}")
    a(f"v_cos_f32 v{vr}, v{vi}")
    a(f"v_sin_f32 v{vi}, v{vi}")
    a(f"v_mul_f32 v{vr}, v{tmp}, v{vr}")
    a(f"v_mul_f32 v{vi}, v{tmp}, v{vi}")


def cmad(a, dr, di, mr, mi, xr, xi, br, bi, t0, t1):
    a(f"v_fma_f32 v{t0}, -v{mi}, v{xi}, v{br}")
    a(f"v_fma_f32 v{t1}, v{mi}, v{xr}, v{bi}")
    a(f"v_fma_f32 v{dr}, v{mr}, v{xr}, v{t0}")
    a(f"v_fma_f32 v{di}, v{mr}, v{xi}, v{t1}")


def kernel_desc(name, vgpr, sgpr=102):
    acc = min(256, (vgpr + 3) // 4 * 4)
    return f""".p2align 6
.amdhsa_kernel {name}
  .amdhsa_next_free_vgpr {vgpr}
  .amdhsa_next_free_sgpr {sgpr}
  .amdhsa_accum_offset {acc}
  .amdhsa_group_segment_fixed_size 0
  .amdhsa_kernarg_size 136
  .amdhsa_user_sgpr_count 2
  .amdhsa_user_sgpr_kernarg_segment_ptr 1
  .amdhsa_system_sgpr_workgroup_id_x 1
  .amdhsa_float_denorm_mode_32 3
.end_amdhsa_kernel
"""
```

```python
from gen_common import *

K1_LDS = 114688 + 2048
MF16 = "v_mfma_f32_16x16x32_bf16"


def swap23(a, vd, vs, t):
    a(f"v_and_b32 v{vd}, 0xfffffff3, v{vs}")
    a(f"v_and_b32 v{t}, 4, v{vs}")
    a(f"v_lshl_or_b32 v{vd}, v{t}, 1, v{vd}")
    a(f"v_and_b32 v{t}, 8, v{vs}")
    a(f"v_lshrrev_b32 v{t}, 1, v{t}")
    a(f"v_or_b32 v{vd}, v{vd}, v{t}")


def sum_over_G(a, x, t):
    a(f"v_mov_b32 v{t}, v{x}")
    a(f"v_permlane16_swap_b32 v{x}, v{t}")
    a(f"v_add_f32 v{x}, v{x}, v{t}")
    a(f"v_mov_b32 v{t}, v{x}")
    a(f"v_permlane32_swap_b32 v{x}, v{t}")
    a(f"v_add_f32 v{x}, v{x}, v{t}")


def gen_k1(a):
    a.raw(".globl k1_kernel\n.p2align 8\n.type k1_kernel,@function\nk1_kernel:")
    a("s_cmp_ge_u32 s2, 256")
    a("s_cbranch_scc1 K1_END")
    load_args(a)
    a("v_lshrrev_b32 v5, 6, v0")
    a("v_and_b32 v1, 63, v0")
    a("v_readfirstlane_b32 s3, v5")
    a("v_and_b32 v2, 15, v0")
    a("v_bfe_u32 v3, v0, 4, 2")
    a("v_lshlrev_b32 v4, 4, v0")
    a("s_and_b32 s4, s2, 7")
    a("s_lshr_b32 s5, s2, 3")
    a("s_cmp_ge_u32 s5, 30")
    a("s_cbranch_scc1 K1_KV")
    a("s_cmp_ge_u32 s5, 14")
    a("s_cbranch_scc1 K1_Q")
    role_a1(a)
    role_q(a)
    role_kv(a)
    a.label("K1_END")
    a("s_endpgm")


def role_a1(a):
    a.label("K1_A1")
    a.vm = a.lg = 0
    code_prefetch(a, "K1_A1", 6144, 4, 8, 6, 256)
    a("s_cmp_ge_u32 s5, 7")
    a("s_cselect_b32 s8, 1, 0")
    a("s_mul_i32 s9, s8, 7")
    a("s_sub_u32 s9, s5, s9")
    a("s_lshl_b32 s10, s4, 1")
    a("s_add_u32 s8, s8, s10")
    a("s_lshl_b32 s10, s8, 7")
    a("s_lshl_b32 s11, s9, 6")
    a("s_lshl_b32 s12, s3, 4")
    a("s_add_u32 s11, s11, s12")
    vX, vB, vP, vL0, vL1, vS = 12, 13, 14, 15, 16, 17
    a("v_lshrrev_b32 v5, 2, v2")
    a("v_and_b32 v6, 3, v2")
    a("v_lshl_add_u32 v5, v5, 5, v6")
    a("v_add_u32 v5, s10, v5")
    a("v_mul_u32_u24 v5, 896, v5")
    a(f"v_lshl_add_u32 v{vX}, v3, 4, v5")
    a(f"v_add_u32 v6, s11, v2")
    a(f"v_mul_u32_u24 v5, 896, v6")
    a(f"v_lshl_add_u32 v{vB}, v3, 4, v5")
    a(f"v_lshlrev_b32 v{vP}, 1, v6")
    a(f"v_lshlrev_b32 v{vL0}, 4, v1")
    a(f"v_add_u32 v{vL1}, 57344, v{vL0}")
    a("s_lshr_b32 s12, s10, 2")
    a("v_lshlrev_b32 v5, 3, v3")
    a("v_add_u32 v5, s12, v5")
    a("v_mul_u32_u24 v5, 448, v5")
    a(f"v_add_lshl_u32 v{vS}, v5, v6, 4")
    a("s_mul_i32 s13, s3, 7168")
    a("s_lshr_b32 s14, s3, 1")
    a("s_mul_i32 s14, s14, 3584")
    a("s_and_b32 s15, s3, 1")
    a("s_mul_i32 s15, s15, 448")
    a("s_add_u32 s14, s14, s15")
    a("s_waitcnt lgkmcnt(0)")
    srd(a, 52, P_AX, X_BYTES)
    vLD, vLR, vLI = 18, 19, 20
    a(f"global_load_ushort v{vLD}, v{vP}, s[{P_LDT}:{P_LDT + 1}]")
    a(f"global_load_ushort v{vLR}, v{vP}, s[{P_LRE}:{P_LRE + 1}]")
    tok_par = a.one(f"global_load_ushort v{vLI}, v{vP}, s[{P_LIM}:{P_LIM + 1}]")

    def dma_stage(g):
        tok = None
        a(f"s_add_u32 m0, s13, {28672 * g}")
        a(f"s_add_u32 s15, s14, {7168 * g}")
        for j in range(7):
            tok = a.one(f"buffer_load_dwordx4 v{vX}, s[52:55], s15 offen lds")
            if j < 6:
                a("s_add_u32 m0, m0, 1024")
                a("s_add_u32 s15, s15, 64")
        return tok

    BR, BI = 64, 120
    tok_st = [None] * 4
    tok_st[0] = dma_stage(0)
    tok_b = []
    for ks in range(14):
        a(f"global_load_dwordx4 v[{BR + 4 * ks}:{BR + 4 * ks + 3}], v{vB}, s[{P_BRE}:{P_BRE + 1}] offset:{64 * ks}")
        tok_b.append(a.one(f"global_load_dwordx4 v[{BI + 4 * ks}:{BI + 4 * ks + 3}], v{vB}, s[{P_BIM}:{P_BIM + 1}] offset:{64 * ks}"))
    for g in range(1, 4):
        tok_st[g] = dma_stage(g)
    srd(a, 56, P_WS, 512 * 448 * 16, BUP_OFF)
    srd(a, 60, P_WS, 128 * 448 * 8, PFX_OFF)
    srd(a, 64, P_WS, 16 * 448 * 8, E128_OFF)
    vA2, vTH, vMR, vMI, vM16R, vM16I, vM32R, vM32I, vKR, vKI = 21, 22, 23, 24, 25, 26, 27, 28, 29, 30
    T0, T1, T2, T3 = 5, 6, 7, 31
    a.wait_vm(tok_par)
    lam_base(a, vLD, vLR, vLI, vA2, vTH, T0)
    lam_pow(a, vA2, vTH, 1, vMR, vMI, T0)
    lam_pow(a, vA2, vTH, 16, vM16R, vM16I, T0)
    lam_pow(a, vA2, vTH, 32, vM32R, vM32I, T0)
    a(f"v_add_f32 v{T0}, -1.0, v{vMR}")
    a(f"v_mul_f32 v{T1}, v{vLR}, v{vLR}")
    a(f"v_fma_f32 v{T1}, v{vLI}, v{vLI}, v{T1}")
    a(f"v_rcp_f32 v{T1}, v{T1}")
    a(f"v_mul_f32 v{vKR}, v{T0}, v{vLR}")
    a(f"v_fma_f32 v{vKR}, -v{vMI}, v{vLI}, v{vKR}")
    a(f"v_mul_f32 v{vKI}, v{T0}, v{vLI}")
    a(f"v_fma_f32 v{vKI}, -v{vMI}, v{vLR}, -v{vKI}")
    a(f"v_add_f32 v{T1}, v{T1}, v{T1}")
    a(f"v_mul_f32 v{vKR}, v{vKR}, v{T1}")
    a(f"v_mul_f32 v{vKI}, v{vKI}, v{T1}")
    G = [(32, 33), (34, 35)]
    vS16R, vS16I = 36, 37
    a(f"v_mov_b32 v{G[0][0]}, 0")
    a(f"v_mov_b32 v{G[0][1]}, 0")
    ACC = [(40, 44), (48, 52)]
    PK = [56, 60]
    AR = 176
    NR = 8
    bt = (8, 9, 10, 11)

    def scan_ops(i):
        ops = []
        ar, ai = ACC[i % 2]
        pk = PK[i % 2]
        for r in range(4):
            cur, nxt = G[r % 2], G[(r + 1) % 2]
            br, bi_, t0, t1 = bt
            ops.append(f"v_mul_f32 v{t0}, v{vKI}, v{ai + r}")
            ops.append(f"v_mul_f32 v{t1}, v{vKI}, v{ar + r}")
            ops.append(f"v_fma_f32 v{br}, v{vKR}, v{ar + r}, -v{t0}")
            ops.append(f"v_fma_f32 v{bi_}, -v{vKR}, v{ai + r}, -v{t1}")
            ops.append(f"v_fma_f32 v{t0}, v{vMR}, v{cur[0]}, v{br}")
            ops.append(f"v_fma_f32 v{t1}, v{vMR}, v{cur[1]}, v{bi_}")
            ops.append(f"v_cvt_pk_bf16_f32 v{pk + r}, v{br}, v{bi_}")
            ops.append(f"v_fma_f32 v{nxt[0]}, -v{vMI}, v{cur[1]}, v{t0}")
            ops.append(f"v_fma_f32 v{nxt[1]}, v{vMI}, v{cur[0]}, v{t1}")
        ops.append(f"s_mov_b32 s15, {7168 * i}")
        ops.append(f"buffer_store_dwordx4 v[{pk}:{pk + 3}], v{vS}, s[56:59], s15 offen")
        if i == 3:
            ops.append(f"v_mov_b32 v{vS16R}, v{G[0][0]}")
            ops.append(f"v_mov_b32 v{vS16I}, v{G[0][1]}")
        return ops

    def rd(f):
        base, off = (vL0, f * 1024) if f < 56 else (vL1, (f - 56) * 1024)
        r = AR + 4 * (f % NR)
        return a.one(f"ds_read_b128 v[{r}:{r + 3}], v{base} offset:{off}")

    AHEAD = 6
    pending = []
    for g in range(4):
        a.wait_vm(tok_st[g])
        a("s_barrier")
        f0 = 28 * g
        toks = {}
        for f in range(f0, f0 + AHEAD):
            toks[f] = rd(f)
        for f in range(f0, f0 + 28):
            i, ks = divmod(f, 14)
            if ks == 0 and i > 0:
                assert not pending or i % 2 == 0 or True
            if f + AHEAD < f0 + 28:
                toks[f + AHEAD] = rd(f + AHEAD)
            if g == 0 and i == 0:
                a.wait_vm(tok_b[ks])
            a.wait_lg(toks[f])
            r = AR + 4 * (f % NR)
            ar, ai = ACC[i % 2]
            cr = "0" if ks == 0 else f"v[{ar}:{ar + 3}]"
            ci = "0" if ks == 0 else f"v[{ai}:{ai + 3}]"
            a(f"{MF16} v[{ar}:{ar + 3}], v[{r}:{r + 3}], v[{BR + 4 * ks}:{BR + 4 * ks + 3}], {cr}")
            if ks >= 2 and pending:
                a(pending.pop(0))
                if pending:
                    a(pending.pop(0))
            a(f"{MF16} v[{ai}:{ai + 3}], v[{r}:{r + 3}], v[{BI + 4 * ks}:{BI + 4 * ks + 3}], {ci}")
            if ks >= 2 and pending:
                a(pending.pop(0))
                if pending:
                    a(pending.pop(0))
            if ks == 13:
                assert not pending
                pending = scan_ops(i)
    for op in pending:
        a(op)
    SR, SI = G[0]
    vA = T2
    a("s_lshl_b32 s15, s3, 9")
    a("s_add_u32 s15, s15, 114688")
    a(f"v_lshl_add_u32 v{vA}, v1, 3, s15")
    a(f"ds_write_b64 v{vA}, v[{SR}:{SI}]")
    a(f"v_lshl_add_u32 v{vA}, v2, 3, s15")
    a("s_waitcnt lgkmcnt(0)")
    a(f"ds_read_b64 v[40:41], v{vA}")
    a(f"ds_read_b64 v[42:43], v{vA} offset:128")
    a(f"ds_read_b64 v[44:45], v{vA} offset:256")
    a("v_cmp_lt_u32 s[70:71], 0, v3")
    a("v_cmp_lt_u32 s[72:73], 1, v3")
    a("v_cmp_lt_u32 s[74:75], 2, v3")
    a("s_lshl_b32 s12, s8, 3")
    a("v_lshlrev_b32 v46, 1, v3")
    a("v_add_u32 v46, s12, v46")
    a("v_mul_u32_u24 v46, 448, v46")
    a(f"v_lshrrev_b32 v47, 1, v{vP}")
    a("v_add_lshl_u32 v46, v46, v47, 3")
    a("s_mul_i32 s12, s8, 448")
    a("v_add_lshl_u32 v47, v47, s12, 3")
    a("v_mov_b32 v48, 0x7fffff00")
    a("v_cndmask_b32 v47, v48, v47, s[74:75]")
    a("s_waitcnt lgkmcnt(0)")
    XR, XI = 50, 51
    a(f"v_cndmask_b32 v{XR}, 0, v40, s[70:71]")
    a(f"v_cndmask_b32 v{XI}, 0, v41, s[70:71]")
    for (sr, m) in ((42, 72), (44, 74)):
        cmad(a, 52, 53, vM32R, vM32I, XR, XI, sr, sr + 1, T0, T1)
        a(f"v_cndmask_b32 v{XR}, v{XR}, v52, s[{m}:{m + 1}]")
        a(f"v_cndmask_b32 v{XI}, v{XI}, v53, s[{m}:{m + 1}]")
    a(f"buffer_store_dwordx2 v[{XR}:{XI}], v46, s[60:63], 0 offen")
    cmad(a, 52, 53, vM16R, vM16I, XR, XI, vS16R, vS16I, T0, T1)
    cmad(a, 54, 55, vM32R, vM32I, XR, XI, SR, SI, T0, T1)
    a(f"buffer_store_dwordx2 v[52:53], v46, s[60:63], 0 offen offset:3584")
    a(f"buffer_store_dwordx2 v[54:55], v47, s[64:67], 0 offen")
    a("s_endpgm")


def role_q(a):
    a.label("K1_Q")
    a.vm = a.lg = 0
    code_prefetch(a, "K1_Q", 4096, 4, 8, 6, 256)
    a("s_sub_u32 s5, s5, 14")
    a("s_lshr_b32 s8, s5, 2")
    a("s_lshl_b32 s9, s4, 2")
    a("s_add_u32 s8, s8, s9")
    a("s_and_b32 s9, s5, 3")
    a("s_lshr_b32 s10, s3, 1")
    a("s_lshl_b32 s11, s8, 1")
    a("s_add_u32 s10, s10, s11")
    a("s_and_b32 s11, s3, 1")
    VQ = 12
    vXo, vT, vT2 = 19, 20, 21
    a("s_mul_i32 s12, s9, 224")
    a("s_lshl_b32 s13, s3, 6")
    a("s_movk_i32 s14, 4682")

    def vq(q):
        a(f"v_add_u32 v5, s13, v1")
        if q:
            a(f"v_add_u32 v5, {256 * q}, v5")
        a("v_mul_lo_u32 v6, v5, s14")
        a("v_lshrrev_b32 v6, 16, v6")
        a("v_mul_u32_u24 v7, 14, v6")
        a("v_sub_u32 v5, v5, v7")
        swap23(a, 7, 6, 22)
        a("v_mul_u32_u24 v7, 896, v7")
        a("v_lshl_add_u32 v7, v5, 4, v7")
        a(f"v_add_u32 v{VQ + q}, s12, v7")

    vq(0)
    a("s_lshl_b32 s15, s10, 5")
    a("v_add_u32 v5, s15, v2")
    a("v_mul_u32_u24 v5, 896, v5")
    a(f"v_lshl_add_u32 v{vXo}, v3, 4, v5")
    a(f"v_add_u32 v23, {16 * 896}, v{vXo}")
    a("s_waitcnt lgkmcnt(0)")
    srd(a, 52, P_WQ, W_BYTES)
    XF = 64
    xf = lambda f, ks: XF + 56 * f + 4 * ks
    tok_st = []
    a("s_lshl_b32 m0, s3, 10")
    for st in range(4):
        a(f"s_mov_b32 s15, {128 * 896 * st}")
        for q in range(7 if st < 3 else 4):
            if st == 0 and q:
                vq(q)
            a(f"buffer_load_dwordx4 v{VQ + q}, s[52:55], s15 offen lds")
            a("s_add_u32 m0, m0, 4096")
        for ks in range(4 * st, min(14, 4 * st + 4)):
            a(f"global_load_dwordx4 v[{xf(0, ks)}:{xf(0, ks) + 3}], v{vXo}, s[{P_BX}:{P_BX + 1}] offset:{64 * ks}")
            tok = a.one(f"global_load_dwordx4 v[{xf(1, ks)}:{xf(1, ks) + 3}], v23, s[{P_BX}:{P_BX + 1}] offset:{64 * ks}")
        tok_st.append(tok)
    a("v_lshrrev_b32 v5, 1, v3")
    a("v_and_b32 v6, 1, v3")
    a("v_lshlrev_b32 v5, 4, v5")
    a("v_lshl_add_u32 v5, v6, 2, v5")
    a("v_lshrrev_b32 v6, 2, v2")
    a("v_add_u32 v5, v5, v6")
    a("v_mul_u32_u24 v5, 224, v5")
    a("v_and_b32 v6, 3, v2")
    a("v_lshl_add_u32 v5, v6, 3, v5")
    a("s_mul_i32 s15, s11, 112")
    a(f"v_add_u32 v{vT}, s15, v5")
    a(f"v_add_u32 v{vT2}, {7 * 7168}, v{vT}")
    srd(a, 56, P_WS, 0x200000, QF_OFF)
    a("s_lshl_b32 s12, s9, 2")
    a("s_lshl_b32 s13, s11, 1")
    a("s_add_u32 s12, s12, s13")
    a("s_lshl_b32 s12, s12, 6")
    a("s_add_u32 s12, s12, s10")
    a("s_lshl_b32 s12, s12, 11")
    a("v_lshlrev_b32 v5, 9, v3")
    a("v_lshl_add_u32 v5, v2, 4, v5")
    vSt = 22
    a(f"v_add_u32 v{vSt}, s12, v5")
    a("v_cmp_eq_u32 s[70:71], 3, v3")
    ACC = 24
    acc = lambda hh, nt, f: ACC + 16 * hh + 8 * nt + 4 * f
    WF = 176
    wf = lambda b, hh, nt: WF + 16 * b + 8 * hh + 4 * nt

    def rdw(ks):
        base = vT if ks < 7 else vT2
        tok = None
        for hh in range(2):
            for nt in range(2):
                for u in range(2):
                    off = (ks % 7) * 7168 + u * 1792 + hh * 56 + nt * 32
                    r = wf(ks % 2, hh, nt) + 2 * u
                    tok = a.one(f"ds_read_b64_tr_b16 v[{r}:{r + 1}], v{base} offset:{off}")
        return tok

    for st in range(4):
        a.wait_vm(tok_st[st])
        a("s_barrier")
        k0, k1 = 4 * st, min(14, 4 * st + 4)
        tok = rdw(k0)
        for ks in range(k0, k1):
            nxt = rdw(ks + 1) if ks + 1 < k1 else None
            a.wait_lg(tok)
            for hh in range(2):
                for nt in range(2):
                    for f in range(2):
                        d = acc(hh, nt, f)
                        c = "0" if ks == 0 else f"v[{d}:{d + 3}]"
                        w = wf(ks % 2, hh, nt)
                        a(f"{MF16} v[{d}:{d + 3}], v[{w}:{w + 3}], v[{xf(f, ks)}:{xf(f, ks) + 3}], {c}")
            tok = nxt
    n = 0
    for hh in range(2):
        for f in range(2):
            lo, hi = acc(hh, 0, f), acc(hh, 1, f)
            ss, t, pk = 5, 6, 56 + 4 * (n % 2)
            for r in range(4):
                a(f"v_cndmask_b32 v{hi + r}, v{hi + r}, 0, s[70:71]")
            a(f"v_mul_f32 v{ss}, v{lo}, v{lo}")
            for r in range(1, 4):
                a(f"v_fmac_f32 v{ss}, v{lo + r}, v{lo + r}")
            for r in range(4):
                a(f"v_fmac_f32 v{ss}, v{hi + r}, v{hi + r}")
            sum_over_G(a, ss, t)
            a(f"v_sqrt_f32 v{ss}, v{ss}")
            a(f"v_cvt_pk_bf16_f32 v{pk}, v{lo}, v{lo + 1}")
            a(f"v_mul_f32 v{ss}, {f32(1.02)}, v{ss}")
            a(f"v_cvt_pk_bf16_f32 v{pk + 1}, v{lo + 2}, v{lo + 3}")
            a(f"v_cndmask_b32 v{hi}, v{hi}, v{ss}, s[70:71]")
            a(f"v_cvt_pk_bf16_f32 v{pk + 3}, v{hi + 2}, v{hi + 3}")
            a(f"v_cvt_pk_bf16_f32 v{pk + 2}, v{hi}, v{hi + 1}")
            a(f"s_mov_b32 s15, {hh * 64 * 2048}")
            a(f"buffer_store_dwordx4 v[{pk}:{pk + 3}], v{vSt}, s[56:59], s15 offen offset:{256 * f}")
            n += 1
    a("s_endpgm")


def role_kv(a):
    a.label("K1_KV")
    a.vm = a.lg = 0
    code_prefetch(a, "K1_KV", 4096, 4, 8, 6, 256)
    a("s_sub_u32 s5, s5, 30")
    a("s_lshl_b32 s8, s4, 1")
    a("s_add_u32 s8, s8, s5")
    a("s_lshl_b32 s10, s8, 2")
    a("s_add_u32 s10, s10, s3")
    a("s_and_b32 s11, s3, 1")
    a("s_lshl_b32 s13, s11, 6")
    a("s_movk_i32 s14, 10923")
    VQ = 12
    vXo, vT, vT2 = 19, 20, 21
    for q in range(3):
        a(f"v_add_u32 v5, s13, v1")
        if q:
            a(f"v_add_u32 v5, {128 * q}, v5")
        a("v_mul_lo_u32 v6, v5, s14")
        a("v_lshrrev_b32 v6, 16, v6")
        a("v_mul_u32_u24 v7, 6, v6")
        a("v_sub_u32 v5, v5, v7")
        swap23(a, 7, 6, 22)
        a("v_mul_u32_u24 v7, 56, v7")
        a(f"v_lshl_add_u32 v{VQ + q}, v5, 4, v7")
    a("v_lshrrev_b32 v5, 3, v2")
    a("v_and_b32 v6, 7, v2")
    a("v_lshl_add_u32 v16, v5, 4, v6")
    a("s_lshl_b32 s15, s10, 5")
    a("v_add_u32 v5, s15, v16")
    a("v_mul_u32_u24 v5, 896, v5")
    a(f"v_lshl_add_u32 v{vXo}, v3, 4, v5")
    a(f"v_add_u32 v23, {8 * 896}, v{vXo}")
    a("s_waitcnt lgkmcnt(0)")
    a("s_cmp_lt_u32 s3, 2")
    a(f"s_cselect_b32 s52, s{P_WK}, s{P_WV}")
    a(f"s_cselect_b32 s53, s{P_WK + 1}, s{P_WV + 1}")
    a(f"s_mov_b32 s54, {WKV_BYTES}")
    a("s_mov_b32 s55, 0x00020000")
    a("s_cselect_b32 s12, 0, 43008")
    a("s_lshl_b32 s13, s11, 10")
    a("s_add_u32 m0, s12, s13")
    XF = 64
    xf = lambda f, ks: XF + 56 * f + 4 * ks
    tok_st = []
    i = 0
    for st in range(4):
        for _ in range(6 if st < 3 else 3):
            if i % 3 == 0:
                a(f"s_mov_b32 s15, {64 * 56 * (i // 3)}")
            a(f"buffer_load_dwordx4 v{VQ + i % 3}, s[52:55], s15 offen lds")
            a("s_add_u32 m0, m0, 2048")
            i += 1
        for ks in range(4 * st, min(14, 4 * st + 4)):
            a(f"global_load_dwordx4 v[{xf(0, ks)}:{xf(0, ks) + 3}], v{vXo}, s[{P_BX}:{P_BX + 1}] offset:{64 * ks}")
            tok = a.one(f"global_load_dwordx4 v[{xf(1, ks)}:{xf(1, ks) + 3}], v23, s[{P_BX}:{P_BX + 1}] offset:{64 * ks}")
        tok_st.append(tok)
    a("v_lshrrev_b32 v5, 1, v3")
    a("v_and_b32 v6, 1, v3")
    a("v_lshlrev_b32 v5, 4, v5")
    a("v_lshl_add_u32 v5, v6, 2, v5")
    a("v_lshrrev_b32 v6, 2, v2")
    a("v_add_u32 v5, v5, v6")
    a("v_mul_u32_u24 v5, 96, v5")
    a("v_and_b32 v6, 3, v2")
    a(f"v_lshl_add_u32 v{vT}, v6, 3, v5")
    a(f"v_add_u32 v{vT2}, 43008, v{vT}")
    srd(a, 56, P_WS, 0x40000, KV_OFF)
    srd(a, 60, P_WS, 256, KMAX_OFF)
    a("s_lshl_b32 s12, s10, 12")
    a("v_lshlrev_b32 v5, 9, v3")
    a("v_lshl_add_u32 v17, v16, 4, v5")
    a("v_add_u32 v17, s12, v17")
    a("v_lshl_add_u32 v18, v2, 4, v5")
    a("v_add_u32 v18, s12, v18")
    a("v_cmp_eq_u32 s[70:71], 3, v3")
    a("v_cmp_le_u32 s[72:73], 12, v2")
    a("v_cmp_eq_u32 vcc, 12, v2")
    a("v_mov_b32 v5, 0x3f803f80")
    a("v_cndmask_b32 v22, 0, v5, vcc")
    ACC = 24
    acc = lambda hh, nt, f: ACC + 16 * hh + 8 * nt + 4 * f
    WF = 176
    wf = lambda b, hh, nt: WF + 16 * b + 8 * hh + 4 * nt

    def rdw(ks):
        tok = None
        for hh in range(2):
            for nt in range(2):
                for u in range(2):
                    off = ks * 3072 + u * 768 + nt * 32
                    r = wf(ks % 2, hh, nt) + 2 * u
                    tok = a.one(f"ds_read_b64_tr_b16 v[{r}:{r + 1}], v{vT2 if hh else vT} offset:{off}")
        return tok

    for st in range(4):
        a.wait_vm(tok_st[st])
        a("s_barrier")
        k0, k1 = 4 * st, min(14, 4 * st + 4)
        tok = rdw(k0)
        for ks in range(k0, k1):
            nxt = rdw(ks + 1) if ks + 1 < k1 else None
            a.wait_lg(tok)
            for hh in range(2):
                for nt in range(2):
                    for f in range(2):
                        d = acc(hh, nt, f)
                        c = "0" if ks == 0 else f"v[{d}:{d + 3}]"
                        w = f"v[{wf(ks % 2, hh, nt)}:{wf(ks % 2, hh, nt) + 3}]"
                        x = f"v[{xf(f, ks)}:{xf(f, ks) + 3}]"
                        if hh == 0:
                            a(f"{MF16} v[{d}:{d + 3}], {w}, {x}, {c}")
                        else:
                            a(f"{MF16} v[{d}:{d + 3}], {x}, {w}, {c}")
            tok = nxt
    a(f"s_mov_b32 s14, {f32(CSCALE)}")
    a("v_mov_b32 v12, 0x3f803f80")
    a("v_mov_b32 v13, 0x00003f80")
    for f in range(2):
        lo, hi = acc(0, 0, f), acc(0, 1, f)
        ss, t, pk = 8 + f, 6, 56 + 4 * f
        for r in range(4):
            a(f"v_mul_f32 v{lo + r}, s14, v{lo + r}")
        for r in range(4):
            a(f"v_mul_f32 v{hi + r}, s14, v{hi + r}")
        for r in range(4):
            a(f"v_cndmask_b32 v{hi + r}, v{hi + r}, 0, s[70:71]")
        a(f"v_mul_f32 v{ss}, v{lo}, v{lo}")
        for r in range(1, 4):
            a(f"v_fmac_f32 v{ss}, v{lo + r}, v{lo + r}")
        for r in range(4):
            a(f"v_fmac_f32 v{ss}, v{hi + r}, v{hi + r}")
        a(f"v_cvt_pk_bf16_f32 v{pk}, v{lo}, v{lo + 1}")
        a(f"v_cvt_pk_bf16_f32 v{pk + 1}, v{lo + 2}, v{lo + 3}")
        a(f"v_cvt_pk_bf16_f32 v{pk + 2}, v{hi}, v{hi + 1}")
        a(f"v_cvt_pk_bf16_f32 v{pk + 3}, v{hi + 2}, v{hi + 3}")
        a(f"v_cndmask_b32 v{pk + 2}, v{pk + 2}, v12, s[70:71]")
        a(f"v_cndmask_b32 v{pk + 3}, v{pk + 3}, v13, s[70:71]")
        a(f"buffer_store_dwordx4 v[{pk}:{pk + 3}], v17, s[56:59], 0 offen offset:{128 * f}")
        sum_over_G(a, ss, t)
    for nt in range(2):
        fa, fb = acc(1, nt, 0), acc(1, nt, 1)
        pk = 64 + 4 * nt
        a(f"v_cvt_pk_bf16_f32 v{pk}, v{fa}, v{fa + 1}")
        a(f"v_cvt_pk_bf16_f32 v{pk + 1}, v{fa + 2}, v{fa + 3}")
        a(f"v_cvt_pk_bf16_f32 v{pk + 2}, v{fb}, v{fb + 1}")
        a(f"v_cvt_pk_bf16_f32 v{pk + 3}, v{fb + 2}, v{fb + 3}")
        if nt == 1:
            for r in range(4):
                a(f"v_cndmask_b32 v{pk + r}, v{pk + r}, v22, s[72:73]")
        a(f"buffer_store_dwordx4 v[{pk}:{pk + 3}], v18, s[56:59], 0 offen offset:{2048 + 256 * nt}")
    a("v_max_f32 v8, v8, v9")
    for sh in (8, 4, 2, 1):
        a(f"v_mov_b32_dpp v9, v8 row_ror:{sh} row_mask:0xf bank_mask:0xf")
        a("v_max_f32 v8, v8, v9")
    a("s_lshl_b32 s12, s10, 2")
    a("v_mov_b32 v9, s12")
    a("v_cmp_eq_u32 vcc, 0, v1")
    a("v_mov_b32 v10, 0x7fffff00")
    a("v_cndmask_b32 v9, v10, v9, vcc")
    a("buffer_store_dword v8, v9, s[60:63], 0 offen")
    a("s_endpgm")
```

```python
from gen_common import *

K2_LDS = 49152 + 256
MF32 = "v_mfma_f32_32x32x16_bf16"


def rng(r, n):
    return f"v[{r}:{r + n - 1}]"


def gen_k2(a):
    a.raw(".globl k2_kernel\n.p2align 8\n.type k2_kernel,@function\nk2_kernel:")
    a.hist = []
    a("s_cmp_ge_u32 s2, 256")
    a("s_cbranch_scc1 K2_END")
    load_args(a)
    a("v_lshrrev_b32 v5, 6, v0")
    a("v_and_b32 v1, 63, v0")
    a("v_readfirstlane_b32 s3, v5")
    a("v_and_b32 v4, 255, v0")
    a("v_lshlrev_b32 v4, 4, v4")
    a("v_lshlrev_b32 v2, 4, v1")
    a("s_cmp_ge_u32 s3, 4")
    a("s_cbranch_scc1 K2_SCAN")
    role_attn(a)
    role_scan(a)
    a.label("K2_END")
    a("s_endpgm")


def role_attn(a):
    a.label("K2_ATT")
    a.vm = a.lg = 0
    code_prefetch(a, "K2_ATT", 8192, 4, 8, 6, 256)
    QR = lambda i, h: 16 + 8 * i + 4 * h
    O = lambda i: 48 + 16 * i
    S = lambda b: 112 + 16 * b
    P = 144
    KB = lambda c, h: 152 + 16 * c + 4 * h
    VB = lambda c, h: 152 + 16 * c + 8 + 4 * h
    for i in range(4):
        a(f"s_add_u32 s{8 + i}, s3, {i + 1}")
        a(f"s_and_b32 s{8 + i}, s{8 + i}, 3")
    a("s_lshl_b32 s12, s2, 13")
    a("v_lshlrev_b32 v3, 2, v1")
    a("s_lshl_b32 s13, s3, 16")
    a("s_waitcnt lgkmcnt(0)")
    srd(a, 52, P_WS, 0x200000, QF_OFF)
    a(f"s_add_u32 s56, s{P_WS}, s13")
    a(f"s_addc_u32 s57, s{P_WS + 1}, 0")
    a(f"s_add_u32 s56, s56, {KV_OFF}")
    a(f"s_addc_u32 s57, s57, 0")
    a("s_mov_b32 s58, 65536")
    a("s_mov_b32 s59, 0x00020000")
    srd(a, 60, P_WS, 256, KMAX_OFF)
    tok_km = a.one("buffer_load_dword v12, v3, s[60:63], 0 offen")
    for i in range(4):
        a(f"s_lshl_b32 s14, s{8 + i}, 11")
        a("s_add_u32 s14, s14, s12")
        a(f"buffer_load_dwordx4 {rng(QR(i, 0), 4)}, v2, s[52:55], s14 offen")
        tok_q = a.one(f"buffer_load_dwordx4 {rng(QR(i, 1), 4)}, v2, s[52:55], s14 offen offset:1024")

    def ldk(c):
        a(f"buffer_load_dwordx4 {rng(KB(c, 0), 4)}, v2, s[56:59], s15 offen")
        return a.one(f"buffer_load_dwordx4 {rng(KB(c, 1), 4)}, v2, s[56:59], s15 offen offset:1024")

    def ldv(c):
        a(f"buffer_load_dwordx4 {rng(VB(c, 0), 4)}, v2, s[56:59], s15 offen offset:2048")
        return a.one(f"buffer_load_dwordx4 {rng(VB(c, 1), 4)}, v2, s[56:59], s15 offen offset:3072")

    a("s_mov_b32 s15, 0")
    tok_kv0 = None
    for c in range(4):
        ldk(c)
        if c < 3:
            t = ldv(c)
            if c == 0:
                tok_kv0 = t
            a("s_add_u32 s15, s15, 4096")
    for r in range(64):
        a(f"v_mov_b32 v{O(0) + r}, 0")
    for r in range(4):
        a(f"v_mov_b32 v{VB(3, 1) + r}, 0")
        a(f"v_mov_b32 v{P + 4 + r}, 0")
    srd(a, 64, P_WS, 0x200000, OF_OFF)
    a("v_cmp_le_u32 s[70:71], 32, v1")
    a.wait_vm(tok_km)
    for sh in (8, 4, 2, 1):
        a(f"v_mov_b32_dpp v13, v12 row_ror:{sh} row_mask:0xf bank_mask:0xf")
        a("v_max_f32 v12, v12, v13")
    a("v_mov_b32 v13, v12")
    a("v_permlane16_swap_b32 v12, v13")
    a("v_max_f32 v12, v12, v13")
    a("v_mov_b32 v13, v12")
    a("v_permlane32_swap_b32 v12, v13")
    a("v_max_f32 v12, v12, v13")
    a("v_sqrt_f32 v12, v12")
    a(f"v_mul_f32 v12, {f32(-1.01)}, v12")
    a.wait_vm(tok_q)
    for i in range(4):
        q = QR(i, 1) + 2
        a(f"v_lshlrev_b32 v13, 16, v{q}")
        a("v_mul_f32 v13, v13, v12")
        a("v_cvt_pk_bf16_f32 v13, v13, 0")
        a(f"v_cndmask_b32 v{q}, v{q}, v13, s[70:71]")
    a.wait_vm(tok_kv0)
    a(f"{MF32} {rng(S(0), 16)}, {rng(KB(0, 0), 4)}, {rng(QR(0, 0), 4)}, 0")
    a(f"{MF32} {rng(S(0), 16)}, {rng(KB(0, 1), 4)}, {rng(QR(0, 1), 4)}, {rng(S(0), 16)}")
    a("s_mov_b32 s14, 4")
    a.fence()
    a.raw(".p2align 6")
    a.label("K2_LOOP", flush=False)

    def ex(cur, k0, pk):
        for k in range(k0, k0 + 4):
            a(f"v_exp_f32 v{cur + k}, v{cur + k}")
        a(f"v_cvt_pk_bf16_f32 v{P + pk}, v{cur + k0}, v{cur + k0 + 1}")
        a(f"v_cvt_pk_bf16_f32 v{P + pk + 1}, v{cur + k0 + 2}, v{cur + k0 + 3}")

    def body():
        for ls in range(16):
            c, i = divmod(ls, 4)
            cur, nxt = S(ls % 2), S((ls + 1) % 2)
            cn, inx = divmod((ls + 1) % 16, 4)
            cp, ip = divmod((ls - 1) % 16, 4)
            if i == 3:
                a("s_waitcnt vmcnt(10)")
            a(f"{MF32} {rng(nxt, 16)}, {rng(KB(cn, 0), 4)}, {rng(QR(inx, 0), 4)}, 0")
            ex(cur, 0, 0)
            a(f"{MF32} {rng(nxt, 16)}, {rng(KB(cn, 1), 4)}, {rng(QR(inx, 1), 4)}, {rng(nxt, 16)}")
            if i == 2:
                ldk(c)
            ex(cur, 4, 2)
            a(f"{MF32} {rng(O(ip), 16)}, {rng(VB(cp, 1), 4)}, {rng(P + 4, 4)}, {rng(O(ip), 16)}")
            if i == 0:
                ldv(cp)
                a("s_add_u32 s15, s15, 4096")
            ex(cur, 8, 4)
            a(f"{MF32} {rng(O(i), 16)}, {rng(VB(c, 0), 4)}, {rng(P, 4)}, {rng(O(i), 16)}")
            ex(cur, 12, 6)

    n0 = a.nops
    body()
    assert a.nops == n0, "unexpected nops in attention loop"
    save = (list(a.out), list(a.hist), a.vm, a.lg)
    body()
    assert a.nops == n0, "unexpected nops across the attention back edge"
    a.out, a.hist, a.vm, a.lg = save
    a("s_sub_u32 s14, s14, 1")
    a("s_cmp_lg_u32 s14, 0")
    a("s_cbranch_scc1 K2_LOOP")
    a(f"{MF32} {rng(O(3), 16)}, {rng(VB(3, 1), 4)}, {rng(P + 4, 4)}, {rng(O(3), 16)}")
    for i in range(3):
        a(f"s_mul_i32 s14, s{8 + i}, 12288")
        a(f"v_add_u32 v13, s14, v2")
        for qd in range(4):
            a(f"ds_write_b128 v13, {rng(O(i) + 4 * qd, 4)} offset:{i * 4096 + qd * 1024}")
    a("s_mul_i32 s14, s3, 12288")
    a("v_add_u32 v13, s14, v2")
    a("s_waitcnt lgkmcnt(0)")
    a("s_barrier")
    toks = []
    for i in range(3):
        for qd in range(4):
            toks.append(a.one(f"ds_read_b128 {rng(O(i) + 4 * qd, 4)}, v13 offset:{i * 4096 + qd * 1024}"))
    a("s_lshl_b32 s14, s2, 2")
    a("s_add_u32 s14, s14, s3")
    a("s_and_b32 s12, s14, 63")
    a("s_lshr_b32 s14, s14, 6")
    a("s_lshl_b32 s12, s12, 4")
    a("s_add_u32 s14, s14, s12")
    a("s_lshl_b32 s14, s14, 11")
    F = O(3)
    for i in range(3):
        for qd in range(4):
            a.wait_lg(toks[4 * i + qd])
            for r in range(0, 4, 2):
                x, y = F + 4 * qd + r, O(i) + 4 * qd + r
                a(f"v_pk_add_f32 v[{x}:{x + 1}], v[{x}:{x + 1}], v[{y}:{y + 1}]")
    a(f"v_mov_b32 v12, v{F + 12}")
    a(f"v_mov_b32 v13, v{F + 12}")
    a("v_permlane32_swap_b32 v12, v13")
    a("v_rcp_f32 v13, v13")
    for r in range(16):
        a(f"v_mul_f32 v{F + r}, v{F + r}, v13")
    for r in range(8):
        a(f"v_cvt_pk_bf16_f32 v{P + r}, v{F + 2 * r}, v{F + 2 * r + 1}")
    a(f"v_cndmask_b32 v{P + 6}, v{P + 6}, 0, s[70:71]")
    a(f"v_cndmask_b32 v{P + 7}, v{P + 7}, 0, s[70:71]")
    a(f"buffer_store_dwordx4 {rng(P, 4)}, v2, s[64:67], s14 offen")
    a(f"buffer_store_dwordx4 {rng(P + 4, 4)}, v2, s[64:67], s14 offen offset:1024")
    a("s_endpgm")


def role_scan(a):
    a.label("K2_SCAN")
    a.vm = a.lg = 0
    a("s_lshl_b32 s8, s2, 2")
    a("s_add_u32 s8, s8, s3")
    a("s_sub_u32 s8, s8, 4")
    a("s_cmp_ge_u32 s8, 896")
    a("s_cbranch_scc1 K2_END")
    code_prefetch(a, "K2_SCAN", 4096, 4, 8, 6, 256)
    a("s_mul_i32 s9, s8, 9363")
    a("s_lshr_b32 s9, s9, 16")
    a("s_mul_i32 s10, s9, 7")
    a("s_sub_u32 s10, s8, s10")
    a("s_lshl_b32 s10, s10, 6")
    a("v_add_u32 v3, s10, v1")
    a("v_lshlrev_b32 v12, 1, v3")
    a("v_lshlrev_b32 v13, 3, v3")
    a("v_lshlrev_b32 v14, 4, v3")
    a("s_lshr_b32 s11, s9, 3")
    a("s_and_b32 s12, s9, 7")
    a("s_lshl_b32 s12, s12, 4")
    a("s_waitcnt lgkmcnt(0)")
    vLD, vLR, vLI = 16, 17, 18
    a(f"global_load_ushort v{vLD}, v12, s[{P_LDT}:{P_LDT + 1}]")
    a(f"global_load_ushort v{vLR}, v12, s[{P_LRE}:{P_LRE + 1}]")
    tok_par = a.one(f"global_load_ushort v{vLI}, v12, s[{P_LIM}:{P_LIM + 1}]")
    srd(a, 52, P_WS, 16 * 448 * 8, E128_OFF)
    srd(a, 56, P_WS, 128 * 448 * 8, PFX_OFF)
    srd(a, 60, P_WS, 512 * 448 * 16, BUP_OFF)
    srd(a, 64, P_WS, 2048 * 1792, H_OFF)
    E = 32
    tok_e = []
    for j in range(15):
        a(f"s_mov_b32 s13, {3584 * j}")
        tok_e.append(a.one(f"buffer_load_dwordx2 v[{E + 2 * j}:{E + 2 * j + 1}], v13, s[52:55], s13 offen"))
    a("s_mul_i32 s13, s9, 3584")
    tok_p = a.one("buffer_load_dwordx2 v[62:63], v13, s[56:59], s13 offen")
    BU = 64
    a("s_mul_i32 s13, s9, 28672")
    tok_bu = []
    for q in range(4):
        tok_bu.append(a.one(f"buffer_load_dwordx4 {rng(BU + 4 * q, 4)}, v14, s[60:63], s13 offen"))
        if q < 3:
            a("s_add_u32 s13, s13, 7168")
    vA2, vTH, MR, MI, M128R, M128I, MJR, MJI, GR, GI, T0, T1, T2, T3 = 19, 20, 21, 22, 23, 24, 25, 26, 27, 28, 29, 30, 31, 15
    a.wait_vm(tok_par)
    lam_base(a, vLD, vLR, vLI, vA2, vTH, T0)
    lam_pow(a, vA2, vTH, 1, MR, MI, T0)
    lam_pow(a, vA2, vTH, 128, M128R, M128I, T0)
    a(f"v_cvt_f32_u32 v{T1}, s12")
    lam_pow(a, vA2, vTH, f"v{T1}", MJR, MJI, T0)
    a(f"v_mov_b32 v{GR}, 0")
    a(f"v_mov_b32 v{GI}, 0")
    a.wait_vm(tok_p)
    for j in range(15):
        a(f"s_cmp_le_u32 s11, {j}")
        a("s_cbranch_scc1 K2_SC_H")
        cmad(a, GR, GI, M128R, M128I, GR, GI, E + 2 * j, E + 2 * j + 1, T0, T1)
    a.label("K2_SC_H", flush=False)
    cmad(a, GR, GI, MJR, MJI, GR, GI, 62, 63, T0, T1)
    a("s_mul_i32 s13, s9, 28672")
    PKR = [80, 81, 82, 83]
    for t in range(16):
        if t % 4 == 0:
            a.wait_vm(tok_bu[t // 4])
        w = BU + t
        a(f"v_lshlrev_b32 v{T2}, 16, v{w}")
        a(f"v_and_b32 v{T3}, 0xffff0000, v{w}")
        cmad(a, GR, GI, MR, MI, GR, GI, T2, T3, T0, T1)
        pk = PKR[t % 4]
        a(f"v_cvt_pk_bf16_f32 v{pk}, v{GR}, v{GI}")
        o = (t % 2) * 1792
        a(f"buffer_store_short v{pk}, v12, s[64:67], s13 offen offset:{o}")
        a(f"buffer_store_short_d16_hi v{pk}, v12, s[64:67], s13 offen offset:{o + 896}")
        if t % 2 == 1 and t < 15:
            a("s_add_u32 s13, s13, 3584")
    a("s_endpgm")
```

```python
from gen_common import *

K3_LDS = 4 * 17408
MF16 = "v_mfma_f32_16x16x32_bf16"
MF32 = "v_mfma_f32_32x32x16_bf16"


def rng(r, n):
    return f"v[{r}:{r + n - 1}]"


def gen_k3(a):
    a.raw(".globl k3_kernel\n.p2align 8\n.type k3_kernel,@function\nk3_kernel:")
    a.hist = []
    a("s_cmp_ge_u32 s2, 448")
    a("s_cbranch_scc1 K3_END")
    load_args(a)
    a("v_lshrrev_b32 v5, 6, v0")
    a("v_and_b32 v1, 63, v0")
    a("v_readfirstlane_b32 s3, v5")
    a("v_and_b32 v2, 15, v0")
    a("v_bfe_u32 v3, v0, 4, 2")
    a("v_lshlrev_b32 v4, 4, v0")
    a("s_cmp_ge_u32 s2, 224")
    a("s_cselect_b32 s8, 224, 0")
    a("s_sub_u32 s8, s2, s8")
    a("s_and_b32 s4, s8, 7")
    a("s_lshr_b32 s5, s8, 3")
    a("s_mul_i32 s8, s5, 9363")
    a("s_lshr_b32 s8, s8, 16")
    a("s_mul_i32 s9, s8, 7")
    a("s_sub_u32 s9, s5, s9")
    a("s_lshl_b32 s4, s4, 2")
    a("s_add_u32 s8, s8, s4")
    a("s_lshl_b32 s10, s8, 6")
    a("s_lshl_b32 s11, s9, 6")
    a("s_mul_i32 s12, s3, 17408")
    a("s_cmp_ge_u32 s2, 224")
    a("s_cbranch_scc1 K3_OP")
    role_a3(a)
    role_op(a)
    a.label("K3_END")
    a("s_endpgm")


def final_addr(a, vR, vRow):
    a("s_lshl_b32 s13, s3, 4")
    a(f"v_add_u32 v5, s13, v3")
    a(f"v_mul_u32_u24 v{vR}, 272, v5")
    a(f"v_lshl_add_u32 v{vR}, v2, 4, v{vR}")
    a(f"v_add_u32 v{vRow}, s10, v5")


def final_reduce(a, vR, R):
    toks = []
    for q in range(4):
        for src in range(4):
            toks.append(a.one(f"ds_read_b128 {rng(R + 16 * q + 4 * src, 4)}, v{vR} offset:{src * 17408 + q * 1088}"))
    return toks


def role_a3(a):
    a.label("K3_A3")
    a.vm = a.lg = 0
    code_prefetch(a, "K3_A3", 4096, 4, 8, 6, 256)
    vH, vC, vW, vR, vRow, vX, vO = 12, 13, 14, 15, 6, 7, 16
    a("v_add_u32 v5, s10, v2")
    a("v_mul_u32_u24 v5, 1792, v5")
    a("s_mul_i32 s13, s3, 448")
    a("v_lshl_add_u32 v5, v3, 4, v5")
    a(f"v_add_u32 v{vH}, s13, v5")
    a("v_add_u32 v5, s11, v2")
    a("v_mul_u32_u24 v5, 896, v5")
    a("s_and_b32 s13, s3, 1")
    a("s_mul_i32 s13, s13, 448")
    a("v_lshl_add_u32 v5, v3, 4, v5")
    a(f"v_add_u32 v{vC}, s13, v5")
    for i in range(1, 4):
        a(f"s_mov_b32 s{72 + i}, {28672 * i}")
        a(f"s_mov_b32 s{76 + i}, {14336 * i}")
    a("s_waitcnt lgkmcnt(0)")
    srd(a, 52, P_WS, 2048 * 1792, H_OFF)
    a("s_cmp_lt_u32 s3, 2")
    a(f"s_cselect_b32 s56, s{P_CRE}, s{P_CIM}")
    a(f"s_cselect_b32 s57, s{P_CRE + 1}, s{P_CIM + 1}")
    a(f"s_mov_b32 s58, {W_BYTES}")
    a("s_mov_b32 s59, 0x00020000")
    ACC = 24
    acc = lambda dt, tt: ACC + 16 * dt + 4 * tt
    BUF = 88
    NB = 5
    cf = lambda ks, dt: BUF + 32 * (ks % NB) + 4 * dt
    hf = lambda ks, tt: BUF + 32 * (ks % NB) + 16 + 4 * tt

    def ld(ks):
        tok = None
        for i in range(4):
            so = "0" if i == 0 else f"s{76 + i}"
            a(f"buffer_load_dwordx4 {rng(cf(ks, i), 4)}, v{vC}, s[56:59], {so} offen offset:{64 * ks}")
            so = "0" if i == 0 else f"s{72 + i}"
            tok = a.one(f"buffer_load_dwordx4 {rng(hf(ks, i), 4)}, v{vH}, s[52:55], {so} offen offset:{64 * ks}")
        return tok

    toks = {}
    for ks in range(NB):
        toks[ks] = ld(ks)
    final_addr(a, vR, vRow)
    a(f"v_mul_u32_u24 v{vX}, 896, v{vRow}")
    a("v_lshlrev_b32 v5, 2, v2")
    a("v_add_u32 v5, s11, v5")
    a(f"v_lshl_add_u32 v{vX}, v5, 1, v{vX}")
    a(f"v_mul_u32_u24 v{vO}, 3584, v{vRow}")
    a(f"v_lshl_add_u32 v{vO}, v5, 2, v{vO}")
    a("v_lshlrev_b32 v5, 1, v5")
    srd(a, 60, P_AX, X_BYTES)
    srd(a, 64, P_OUT, OUT_BYTES)
    a(f"global_load_dwordx2 v[18:19], v5, s[{P_DSK}:{P_DSK + 1}]")
    for q in range(4):
        a(f"s_mov_b32 s13, {q * 4 * 896}")
        a(f"buffer_load_dwordx2 v[{248 + 2 * q}:{249 + 2 * q}], v{vX}, s[60:63], s13 offen")
    a("v_mul_u32_u24 v5, 272, v2")
    a("v_lshl_add_u32 v5, v3, 4, v5")
    a(f"v_add_u32 v{vW}, s12, v5")
    for ks in range(7):
        a.wait_vm(toks[ks])
        for dt in range(4):
            for tt in range(4):
                d = acc(dt, tt)
                c = "0" if ks == 0 else rng(d, 4)
                a(f"{MF16} {rng(d, 4)}, {rng(cf(ks, dt), 4)}, {rng(hf(ks, tt), 4)}, {c}")
        if ks + NB < 7:
            toks[ks + NB] = ld(ks + NB)
    for dt in range(4):
        for tt in range(4):
            a(f"ds_write_b128 v{vW}, {rng(acc(dt, tt), 4)} offset:{tt * 4352 + dt * 64}")
    a("v_lshlrev_b32 v20, 16, v18")
    a("v_and_b32 v21, 0xffff0000, v18")
    a("v_lshlrev_b32 v22, 16, v19")
    a("v_and_b32 v23, 0xffff0000, v19")
    a("s_waitcnt lgkmcnt(0)")
    a("s_barrier")
    R = BUF
    toks = final_reduce(a, vR, R)
    for q in range(4):
        b = R + 16 * q
        x = 248 + 2 * q
        a(f"v_lshlrev_b32 v8, 16, v{x}")
        a(f"v_and_b32 v9, 0xffff0000, v{x}")
        a(f"v_lshlrev_b32 v10, 16, v{x + 1}")
        a(f"v_and_b32 v11, 0xffff0000, v{x + 1}")
        a.wait_lg(toks[4 * q + 3])
        for r in range(0, 4, 2):
            a(f"v_pk_add_f32 v[{b + r}:{b + r + 1}], v[{b + r}:{b + r + 1}], v[{b + 4 + r}:{b + 5 + r}]")
            a(f"v_pk_add_f32 v[{b + 8 + r}:{b + 9 + r}], v[{b + 8 + r}:{b + 9 + r}], v[{b + 12 + r}:{b + 13 + r}]")
        for r in range(0, 4, 2):
            a(f"v_pk_fma_f32 v[{b + r}:{b + r + 1}], v[{8 + r}:{9 + r}], v[{20 + r}:{21 + r}], v[{b + r}:{b + r + 1}]")
        for r in range(0, 4, 2):
            a(f"v_pk_add_f32 v[{b + r}:{b + r + 1}], v[{b + r}:{b + r + 1}], v[{b + 8 + r}:{b + 9 + r}]")
        a(f"s_mov_b32 s13, {q * 4 * 3584}")
        a(f"buffer_store_dwordx4 {rng(b, 4)}, v{vO}, s[64:67], s13 offen")
    a("s_endpgm")


def role_op(a):
    a.label("K3_OP")
    a.vm = a.lg = 0
    code_prefetch(a, "K3_OP", 4096, 4, 8, 6, 256)
    vD, vL, vW, vR, vRow, vT0, vT1, vO = 12, 13, 14, 15, 6, 17, 18, 16
    a("v_lshrrev_b32 v5, 3, v1")
    a("s_mul_i32 s13, s3, 112")
    a("v_add_u32 v5, s13, v5")
    a("v_mul_u32_u24 v5, 896, v5")
    a("v_and_b32 v7, 1, v3")
    a("v_lshlrev_b32 v7, 2, v7")
    a("v_and_b32 v19, 7, v1")
    a("v_xor_b32 v7, v7, v19")
    a("v_lshl_add_u32 v5, v7, 4, v5")
    a("s_lshl_b32 s13, s11, 1")
    a(f"v_add_u32 v{vD}, s13, v5")
    a(f"v_lshlrev_b32 v{vL}, 4, v1")
    a("s_lshl_b32 s14, s8, 16")
    a("s_lshl_b32 s13, s3, 13")
    a("s_add_u32 s14, s14, s13")
    a("s_waitcnt lgkmcnt(0)")
    srd(a, 52, P_WO, W_BYTES)
    srd(a, 56, P_WS, 0x200000, OF_OFF)
    OFR = 88
    of = lambda pt, ks: OFR + 32 * pt + 4 * ks
    a("s_mov_b32 m0, s12")
    a("s_mov_b32 s15, 0")
    toks = []
    nd = 0
    for hl in range(4):
        while nd * 8 < 28 * hl + 32:
            a(f"buffer_load_dwordx4 v{vD}, s[52:55], s15 offen lds")
            a("s_add_u32 m0, m0, 1024")
            a(f"s_add_u32 s15, s15, {8 * 896}")
            nd += 1
        for pt in range(2):
            a(f"s_add_u32 s13, s14, {pt * 32768 + hl * 2048}")
            a(f"buffer_load_dwordx4 {rng(of(pt, 2 * hl), 4)}, v{vL}, s[56:59], s13 offen")
            tok = a.one(f"buffer_load_dwordx4 {rng(of(pt, 2 * hl + 1), 4)}, v{vL}, s[56:59], s13 offen offset:1024")
        toks.append(tok)
    assert nd == 15
    final_addr(a, vR, vRow)
    a("v_lshlrev_b32 v5, 2, v2")
    a("v_add_u32 v5, s11, v5")
    a(f"v_mul_u32_u24 v{vO}, 3584, v{vRow}")
    a(f"v_lshl_add_u32 v{vO}, v5, 2, v{vO}")
    srd(a, 64, P_OUT, OUT_BYTES)
    a("v_lshrrev_b32 v5, 1, v3")
    a("v_lshrrev_b32 v7, 2, v2")
    a("v_lshl_add_u32 v5, v5, 2, v7")
    a("v_lshlrev_b32 v5, 7, v5")
    a("v_lshrrev_b32 v7, 3, v2")
    a("v_lshl_add_u32 v5, v7, 6, v5")
    a("v_and_b32 v7, 1, v3")
    a("v_lshl_add_u32 v5, v7, 5, v5")
    a("v_and_b32 v7, 3, v2")
    a("v_lshl_add_u32 v5, v7, 3, v5")
    a("v_xor_b32 v7, 64, v5")
    a(f"v_add_u32 v{vT0}, s12, v5")
    a(f"v_add_u32 v{vT1}, s12, v7")
    a("v_and_b32 v5, 31, v1")
    a("v_mul_u32_u24 v5, 272, v5")
    a("v_lshrrev_b32 v7, 5, v1")
    a("v_lshl_add_u32 v5, v7, 4, v5")
    a(f"v_add_u32 v{vW}, s12, v5")
    ACC = 24
    acc = lambda nt, pt: ACC + 32 * nt + 16 * pt
    WF = 152
    wf = lambda hl, half, nt: WF + 16 * (hl % 2) + 8 * half + 4 * nt
    for hl in range(4):
        a.wait_vm(toks[hl])
        tk = []
        for half in range(2):
            for nt in range(2):
                for u in range(2):
                    r = wf(hl, half, nt) + 2 * u
                    t = a.one(f"ds_read_b64_tr_b16 v[{r}:{r + 1}], v{vT1 if nt else vT0} offset:{(28 * hl + 16 * half + 8 * u) * 128}")
            tk.append(t)
        for half in range(2):
            a.wait_lg(tk[half])
            for nt in range(2):
                for pt in range(2):
                    d = acc(nt, pt)
                    c = "0" if hl == 0 and half == 0 else rng(d, 16)
                    a(f"{MF32} {rng(d, 16)}, {rng(wf(hl, half, nt), 4)}, {rng(of(pt, 2 * hl + half), 4)}, {c}")
    for nt in range(2):
        for pt in range(2):
            for q in range(4):
                a(f"ds_write_b128 v{vW}, {rng(acc(nt, pt) + 4 * q, 4)} offset:{pt * 8704 + nt * 128 + q * 32}")
    a("s_waitcnt lgkmcnt(0)")
    a("s_barrier")
    R = OFR
    toks = final_reduce(a, vR, R)
    for q in range(4):
        b = R + 16 * q
        a.wait_lg(toks[4 * q + 3])
        for r in range(0, 4, 2):
            a(f"v_pk_add_f32 v[{b + r}:{b + r + 1}], v[{b + r}:{b + r + 1}], v[{b + 4 + r}:{b + 5 + r}]")
            a(f"v_pk_add_f32 v[{b + 8 + r}:{b + 9 + r}], v[{b + 8 + r}:{b + 9 + r}], v[{b + 12 + r}:{b + 13 + r}]")
        for r in range(0, 4, 2):
            a(f"v_pk_add_f32 v[{b + r}:{b + r + 1}], v[{b + r}:{b + r + 1}], v[{b + 8 + r}:{b + 9 + r}]")
        a(f"s_mov_b32 s13, {q * 4 * 3584}")
        a(f"buffer_store_dwordx4 {rng(b, 4)}, v{vO}, s[64:67], s13 offen offset:1792")
    a("s_endpgm")
```

```python
import sys
from gen_common import *
from gen_k1 import gen_k1, K1_LDS
from gen_k2 import gen_k2, K2_LDS
from gen_k3 import gen_k3, K3_LDS

NAME = "concat_heads__ssm_conv_s5__grouped_kv_mqa__prompt"
ref = open(f"cdna_kernels/{NAME}.s.ref").read().split("\n")
head = [l for l in ref if l.startswith(";") and "@launch" not in l and "Override" not in l and "grid=ceil" not in l]
a = Asm()
a.raw("\n".join(head))
a.raw(f"; @launch kernel=k1_kernel grid=(256,1,1) block=(256,1,1) lds={K1_LDS}")
a.raw(f"; @launch kernel=k2_kernel grid=(256,1,1) block=(512,1,1) lds={K2_LDS}")
a.raw(f"; @launch kernel=k3_kernel grid=(448,1,1) block=(256,1,1) lds={K3_LDS}")
a.raw('.amdgcn_target "amdgcn-amd-amdhsa--gfx950"\n.text')
gen_k1(a)
gen_k2(a)
gen_k3(a)
a.raw(".p2align 8\n.fill 2048, 4, 0xbf800000")
a.raw('.section .rodata,"a"')
a.raw(kernel_desc("k1_kernel", 208))
a.raw(kernel_desc("k2_kernel", 216))
a.raw(kernel_desc("k3_kernel", 256))
out = sys.argv[1] if len(sys.argv) > 1 else f"cdna_kernels/{NAME}.s"
open(out, "w").write(a.text())
print("wrote", out, "nops", a.nops)
```

```python
from dsl import Asm, v, s
import math
import struct

QF_OFF = 0x000000
KV_OFF = 0x200000
KMAX_OFF = 0x240000
PFX_OFF = 0x250000
E128_OFF = 0x2C0000
OF_OFF = 0x400000
BUP_OFF = 0x600000
H_OFF = 0xA00000
WS_USED = 0xE00000

X_BYTES = 2048 * 448 * 2
W_BYTES = 448 * 448 * 2
WKV_BYTES = 448 * 28 * 2
OUT_BYTES = 2048 * 896 * 4

LOG2E = 1.4426950408889634
CSCALE = LOG2E / math.sqrt(28.0)


def f32(x):
    return "0x%08x" % struct.unpack("<I", struct.pack("<f", x))[0]


P_AX, P_LRE, P_LIM, P_BRE, P_BIM, P_CRE, P_CIM, P_LDT = 16, 18, 20, 22, 24, 26, 28, 30
P_DSK, P_BX, P_WQ, P_WK, P_WV, P_WO, P_OUT, P_DBG, P_WS = 32, 34, 36, 38, 40, 42, 44, 46, 48


def load_args(a):
    a("s_load_dwordx16 s[16:31], s[0:1], 0")
    a("s_load_dwordx16 s[32:47], s[0:1], 64")
    a("s_load_dwordx2 s[48:49], s[0:1], 128")


def srd(a, d, ptr, nbytes, off=0):
    if off:
        a(f"s_add_u32 s{d}, s{ptr}, {off}")
        a(f"s_addc_u32 s{d + 1}, s{ptr + 1}, 0")
    else:
        a(f"s_mov_b32 s{d}, s{ptr}")
        a(f"s_mov_b32 s{d + 1}, s{ptr + 1}")
    a(f"s_mov_b32 s{d + 2}, {nbytes}")
    a(f"s_mov_b32 s{d + 3}, 0x00020000")


def code_prefetch(a, start_label, nbytes, vtid16, vdst, stmp, threads):
    a(f"s_getpc_b64 s[{stmp}:{stmp + 1}]")
    per = threads * 16
    n = (nbytes + per - 1) // per
    for i in range(n):
        a(f"global_load_dwordx4 v[{vdst}:{vdst + 3}], v{vtid16}, s[{stmp}:{stmp + 1}]")
        if i + 1 < n:
            a(f"s_add_u32 s{stmp}, s{stmp}, {per}")
            a(f"s_addc_u32 s{stmp + 1}, s{stmp + 1}, 0")


def lam_base(a, vldt, vlre, vlim, va2, vth, tmp):
    a(f"v_lshlrev_b32 v{vldt}, 16, v{vldt}")
    a(f"v_lshlrev_b32 v{vlre}, 16, v{vlre}")
    a(f"v_lshlrev_b32 v{vlim}, 16, v{vlim}")
    a(f"v_mul_f32 v{vldt}, {f32(LOG2E)}, v{vldt}")
    a(f"v_exp_f32 v{vldt}, v{vldt}")
    a(f"v_cvt_pk_bf16_f32 v{vldt}, v{vldt}, v{vldt}")
    a(f"v_lshlrev_b32 v{vldt}, 16, v{vldt}")
    a(f"v_mul_f32 v{va2}, v{vldt}, v{vlre}")
    a(f"v_mul_f32 v{vth}, v{vldt}, v{vlim}")
    a(f"v_mul_f32 v{va2}, {f32(LOG2E)}, v{va2}")
    a(f"v_mul_f32 v{vth}, {f32(-1.0 / (2 * math.pi))}, v{vth}")


def lam_pow(a, va2, vth, n, vr, vi, tmp):
    if n == 1:
        a(f"v_exp_f32 v{tmp}, v{va2}")
        a(f"v_fract_f32 v{vi}, v{vth}")
    else:
        nn = f32(float(n)) if not isinstance(n, str) else n
        a(f"v_mul_f32 v{tmp}, {nn}, v{va2}")
        a(f"v_mul_f32 v{vi}, {nn}, v{vth}")
        a(f"v_exp_f32 v{tmp}, v{tmp}")
        a(f"v_fract_f32 v{vi}, v{vi}")
    a(f"v_cos_f32 v{vr}, v{vi}")
    a(f"v_sin_f32 v{vi}, v{vi}")
    a(f"v_mul_f32 v{vr}, v{tmp}, v{vr}")
    a(f"v_mul_f32 v{vi}, v{tmp}, v{vi}")


def cmad(a, dr, di, mr, mi, xr, xi, br, bi, t0, t1):
    a(f"v_fma_f32 v{t0}, -v{mi}, v{xi}, v{br}")
    a(f"v_fma_f32 v{t1}, v{mi}, v{xr}, v{bi}")
    a(f"v_fma_f32 v{dr}, v{mr}, v{xr}, v{t0}")
    a(f"v_fma_f32 v{di}, v{mr}, v{xi}, v{t1}")


def kernel_desc(name, vgpr, sgpr=102):
    acc = min(256, (vgpr + 3) // 4 * 4)
    return f""".p2align 6
.amdhsa_kernel {name}
  .amdhsa_next_free_vgpr {vgpr}
  .amdhsa_next_free_sgpr {sgpr}
  .amdhsa_accum_offset {acc}
  .amdhsa_group_segment_fixed_size 0
  .amdhsa_kernarg_size 136
  .amdhsa_user_sgpr_count 2
  .amdhsa_user_sgpr_kernarg_segment_ptr 1
  .amdhsa_system_sgpr_workgroup_id_x 1
  .amdhsa_float_denorm_mode_32 3
.end_amdhsa_kernel
"""


import os
STAMPS = os.environ.get("STAMPS", "0") in ("1", "2")
MINI = os.environ.get("STAMPS", "0") == "2"
TS_OFF = 0x1000000


def stamp(a, idx, cyc=False):
    if not STAMPS or (MINI and idx not in (0, 12)):
        return
    a("s_memtime s[100:101]" if cyc else "s_memrealtime s[100:101]")
    a("s_waitcnt lgkmcnt(0)")
    a(f"s_mov_b32 s{80 + idx}, s100")


def stamp_flush(a, kern, n):
    if not STAMPS:
        return
    a("s_waitcnt vmcnt(0)")
    stamp(a, n)
    srd(a, 96, P_WS, 0x100000, TS_OFF + kern * 0x40000)
    a("s_lshl_b32 s76, s2, 3")
    a("s_add_u32 s76, s76, s3")
    a("s_lshl_b32 s76, s76, 6")
    a("v_mov_b32 v200, s76")
    a("s_mov_b64 exec, 1")
    for i in range(14):
        a(f"v_mov_b32 v201, s{80 + i}")
        a(f"buffer_store_dword v201, v200, s[96:99], 0 offen offset:{4 * i}")
    a("s_getreg_b32 s77, hwreg(HW_REG_XCC_ID)")
    a("v_mov_b32 v201, s77")
    a(f"buffer_store_dword v201, v200, s[96:99], 0 offen offset:56")
    a("s_getreg_b32 s77, hwreg(HW_REG_HW_ID)")
    a("v_mov_b32 v201, s77")
    a(f"buffer_store_dword v201, v200, s[96:99], 0 offen offset:60")
```

```python
from gen_common import *

MF16 = "v_mfma_f32_16x16x32_bf16"
MF32 = "v_mfma_f32_32x32x16_bf16"

L_WQ = 0
L_WKV = 57344
L_QF = 86016
L_XB = 94208
L_BRED = 57856
L_PX = L_BRED
L_ARED = 107008
L_ASCR = 156160
L_MISC = 163584
F_LDS = 163840
(C_ST0, C_ST1, C_ST2, C_QF, C_RED, C_WO, C_RED2, C_NONCE, C_BAD, C_PX0, C_PX1, C_KV0, C_KV1, C_KV2, C_KV3,
 C_QRD, C_XA0, C_XA1, C_XA2, C_G1, C_ARED, C_CDONE, C_WKV0, C_WKV1) = range(24)

FLG_OFF = 0x300000
KVF_OFF = 0
OFL_OFF = 0x4000
HFL_OFF = 0x14000
FLG_BYTES = 0x24000
SPIN = 1 << 14

S_PG, S_HP, S_ROT, S_NONCE = 50, 51, 76, 77
V_LANE, V_N, V_G, V_L16, V_CNT, V_ONE, V_PF = 1, 2, 3, 4, 14, 15, 0


def rng(r, n):
    return f"v[{r}:{r + n - 1}]"


_uid = [0]


def uid(p):
    _uid[0] += 1
    return f"{p}_{_uid[0]}"


def arrive(a, c):
    a("s_mov_b64 exec, 1")
    a(f"ds_add_u32 v{V_CNT}, v{V_ONE} offset:{4 * c}")
    a("s_mov_b64 exec, -1")


def wait_cnt(a, c, target, vt=5, st=78, sleep=1, nz=False, vbase=V_CNT):
    l, d = uid("LW"), uid("LD")
    a(f"s_mov_b32 s79, {SPIN}")
    a.label(l, flush=False)
    a(f"ds_read_b32 v{vt}, v{vbase} offset:{4 * c}")
    a("s_waitcnt lgkmcnt(0)")
    a(f"v_readfirstlane_b32 s{st}, v{vt}")
    if nz:
        a(f"s_cmp_lg_u32 s{st}, 0")
    else:
        a(f"s_cmp_ge_u32 s{st}, {target}")
    a(f"s_cbranch_scc1 {d}")
    a(f"s_sleep {sleep}")
    a("s_sub_u32 s79, s79, 1")
    a("s_cmp_lg_u32 s79, 0")
    a(f"s_cbranch_scc1 {l}")
    a.label(d, flush=False)


def poll_flags(a, vaddr, srd_, soff, vt=5, sleep=2):
    l, d = uid("PW"), uid("PD")
    a(f"s_mov_b32 s79, {SPIN}")
    a.label(l, flush=False)
    a(f"buffer_load_dword v{vt}, v{vaddr}, s[{srd_}:{srd_ + 3}], {soff} offen sc1")
    a("s_waitcnt vmcnt(0)")
    a(f"v_cmp_ne_u32 vcc, s{S_NONCE}, v{vt}")
    a(f"s_cbranch_vccz {d}")
    a(f"s_sleep {sleep}")
    a("s_sub_u32 s79, s79, 1")
    a("s_cmp_lg_u32 s79, 0")
    a(f"s_cbranch_scc1 {l}")
    a.label(d, flush=False)


def rot_step(a, sk, step, wrap):
    a(f"s_add_u32 s{sk}, s{sk}, {step}")
    a(f"s_cmp_ge_u32 s{sk}, {wrap}")
    a(f"s_cselect_b32 s{sk}, 0, s{sk}")


def gen_f(a, name, with_a):
    a.raw(f".globl {name}\n.p2align 8\n.type {name},@function\n{name}:")
    a.hist = []
    a("s_cmp_ge_u32 s2, 256")
    a("s_cbranch_scc1 F_END")
    stamp(a, 0)
    a("s_memrealtime s[6:7]")
    load_args(a)
    a("v_lshrrev_b32 v5, 6, v0")
    a(f"v_and_b32 v{V_LANE}, 63, v0")
    a("v_readfirstlane_b32 s3, v5")
    a(f"v_and_b32 v{V_N}, 15, v0")
    a(f"v_bfe_u32 v{V_G}, v0, 4, 2")
    a(f"v_lshlrev_b32 v{V_L16}, 4, v{V_LANE}")
    a(f"v_mov_b32 v{V_CNT}, {L_MISC}")
    a(f"v_mov_b32 v{V_ONE}, 1")
    a(f"v_lshl_add_u32 v5, v{V_LANE}, 2, v{V_CNT}")
    a("v_mov_b32 v6, 0")
    a("ds_write_b32 v5, v6")
    a("s_and_b32 s4, s2, 7")
    a("s_lshr_b32 s5, s2, 3")
    a(f"s_lshr_b32 s8, s5, 3")
    a(f"s_lshl_b32 s{S_PG}, s4, 2")
    a(f"s_add_u32 s{S_PG}, s{S_PG}, s8")
    a(f"s_and_b32 s{S_HP}, s5, 7")
    a("s_lshl_b32 s8, s8, 1")
    a(f"s_add_u32 s8, s8, s{S_HP}")
    a("s_add_u32 s8, s8, s4")
    a("s_mul_i32 s9, s8, 9363")
    a("s_lshr_b32 s9, s9, 16")
    a("s_mul_i32 s9, s9, 7")
    a(f"s_sub_u32 s{S_ROT}, s8, s9")
    a("s_getpc_b64 s[10:11]")
    a("s_lshl_b32 s9, s5, 10")
    a(f"v_and_b32 v5, 7, v0")
    a("v_lshl_add_u32 v5, v5, 7, s9")
    a("s_cmp_lg_u32 s3, 7")
    a("s_cbranch_scc1 F_NPF")
    a("global_load_dword v8, v5, s[10:11]")
    a.label("F_NPF", flush=False)
    a("s_mul_i32 s9, s5, 98")
    a("s_and_b32 s8, s3, 3")
    a("s_mul_i32 s8, s8, 25")
    a("s_add_u32 s9, s9, s8")
    a(f"v_add_u32 v5, s9, v{V_LANE}")
    a("v_lshlrev_b32 v5, 7, v5")
    a(f"v_cmp_gt_u32 vcc, 25, v{V_LANE}")
    a("v_mov_b32 v6, 0x7f000000")
    a(f"v_cndmask_b32 v{V_PF}, v6, v5, vcc")
    a("s_waitcnt lgkmcnt(0)")
    stamp(a, 1)
    srd(a, 68, P_DBG, 256)
    a("s_or_b32 s8, s2, s3")
    a("s_cmp_lg_u32 s8, 0")
    a("s_cbranch_scc1 F_NN")
    a("s_or_b32 s8, s6, 1")
    a("v_mov_b32 v5, s8")
    a("v_mov_b32 v6, 0")
    a("buffer_store_dword v5, v6, s[68:71], 0 offen sc1")
    a.label("F_NN")
    a("s_barrier")
    a("s_cmp_lt_u32 s3, 4")
    a("s_cbranch_scc1 F_B")
    st = role_a_front(a)
    a.label("F_B")
    role_b(a, lambda: role_a_kv(a, st))
    role_a(a, with_a)
    a.label("F_END")
    a("s_endpgm")


STAGES = [(0, 5, C_ST0), (5, 10, C_ST1), (10, 14, C_ST2)]


def xfrag16_base(a, vd, base_sgpr_or_imm):
    a(f"v_lshrrev_b32 v5, 2, v{V_N}")
    a("v_sub_u32 v5, 0, v5")
    a(f"v_xor_b32 v5, v5, v{V_G}")
    a("v_and_b32 v5, 3, v5")
    a("v_lshlrev_b32 v5, 4, v5")
    a(f"v_lshl_add_u32 v5, v{V_N}, 6, v5")
    a(f"v_add_u32 v{vd}, {base_sgpr_or_imm}, v5")


def role_b(a, kv_code):
    a.vm = a.lg = 0
    a("s_setprio 2")
    a(f"s_bitcmp1_b32 s{S_HP}, 0")
    a(f"s_cselect_b32 s56, s{P_WV}, s{P_WK}")
    a(f"s_cselect_b32 s57, s{P_WV + 1}, s{P_WK + 1}")
    a(f"s_mov_b32 s58, {WKV_BYTES}")
    a("s_mov_b32 s59, 0x00020000")
    a(f"v_lshrrev_b32 v5, 2, v{V_LANE}")
    a("v_mul_u32_u24 v5, 56, v5")
    a(f"v_and_b32 v6, 2, v{V_G}")
    a(f"v_and_b32 v7, 3, v{V_LANE}")
    a("v_xor_b32 v6, v6, v7")
    a("v_lshl_add_u32 v5, v6, 4, v5")
    a("s_mul_i32 s9, s3, 896")
    a("v_add_u32 v13, s9, v5")
    a(f"s_mul_i32 s12, s{S_ROT}, 3584")
    a("s_lshl_b32 s9, s3, 10")
    a(f"s_add_u32 m0, s9, {L_WKV}")
    tkv = []
    for i in range(7):
        tkv.append(a.one("buffer_load_dwordx4 v13, s[56:59], s12 offen lds"))
        if i < 6:
            a("s_add_u32 m0, m0, 4096")
            rot_step(a, 12, 3584, WKV_BYTES)
    a("s_setprio 1")
    srd(a, 52, P_WQ, W_BYTES)
    a(f"buffer_load_dword v8, v{V_PF}, s[52:55], 0 offen")
    a(f"v_lshrrev_b32 v5, 3, v{V_LANE}")
    a("s_lshl_b32 s9, s3, 3")
    a("v_add_u32 v6, s9, v5")
    a("v_mul_u32_u24 v6, 896, v6")
    a(f"v_bfe_u32 v7, v{V_LANE}, 1, 2")
    a("v_bfe_u32 v5, v5, 1, 1")
    a("v_xor_b32 v7, v7, v5")
    a("s_and_b32 s9, s3, 1")
    a("s_lshl_b32 s9, s9, 1")
    a("v_xor_b32 v7, s9, v7")
    a("v_lshrrev_b32 v5, 1, v7")
    a("v_mul_u32_u24 v5, 56, v5")
    a("v_add_u32 v6, v6, v5")
    a("v_and_b32 v5, 1, v7")
    a("v_lshl_add_u32 v6, v5, 5, v6")
    a(f"v_and_b32 v5, 1, v{V_LANE}")
    a("v_lshl_add_u32 v6, v5, 4, v6")
    a(f"s_mul_i32 s9, s{S_HP}, 112")
    a("v_add_u32 v12, s9, v6")
    a(f"s_mul_i32 s12, s{S_ROT}, {64 * 896}")
    a("s_lshl_b32 m0, s3, 10")
    a.wait_vm(tkv[3])
    arrive(a, C_WKV0)
    a.wait_vm(tkv[6])
    arrive(a, C_WKV1)
    a("s_branch F_B2")
    save = (a.vm, a.lg)
    kv_code()
    a.vm, a.lg = save
    a.label("F_B2")
    toks = []
    for s_ in range(14):
        toks.append(a.one("buffer_load_dwordx4 v12, s[52:55], s12 offen lds"))
        if s_ < 13:
            a("s_add_u32 m0, m0, 4096")
            rot_step(a, 12, 32 * 896, W_BYTES)
    stamp(a, 2)
    XF = lambda b, f: 48 + 8 * b + 4 * f
    WF = lambda b, nt: 80 + 8 * b + 4 * nt
    ACC = lambda f, nt: 112 + 8 * f + 4 * nt
    vT, vXr = 16, 18
    srd(a, 64, P_WS, FLG_BYTES, FLG_OFF)
    a(f"v_cmp_eq_u32 s[72:73], 3, v{V_G}")
    a(f"v_lshrrev_b32 v5, 2, v{V_N}")
    a(f"v_lshl_add_u32 v5, v{V_G}, 3, v5")
    a("v_lshlrev_b32 v5, 7, v5")
    a(f"v_lshrrev_b32 v6, 3, v{V_N}")
    a("v_lshl_add_u32 v5, v6, 5, v5")
    a(f"v_and_b32 v6, 1, v{V_G}")
    a("v_lshl_add_u32 v5, v6, 6, v5")
    a(f"v_and_b32 v6, 3, v{V_N}")
    a(f"v_lshl_add_u32 v5, v6, 3, v5")
    a("s_and_b32 s9, s3, 1")
    a("s_lshl_b32 s9, s9, 6")
    a(f"v_xor_b32 v{vT}, s9, v5")
    a(f"v_xor_b32 v{vT + 1}, 32, v{vT}")
    a("s_lshr_b32 s8, s3, 1")
    a("s_mul_i32 s8, s8, 28672")
    a(f"s_add_u32 s8, s8, {L_XB}")
    xfrag16_base(a, vXr, "s8")
    a("s_lshl_b32 s8, s3, 11")
    a(f"s_add_u32 s8, s8, {L_QF}")
    a(f"v_lshlrev_b32 v5, 9, v{V_G}")
    a(f"v_lshl_add_u32 v5, v{V_N}, 4, v5")
    a("v_add_u32 v13, s8, v5")
    for (k0, k1, cnt) in STAGES:
        a.wait_vm(toks[k1 - 1])
        arrive(a, cnt)
        wait_cnt(a, cnt, 8)
        if k0 == 0:
            stamp(a, 3)
        a.lg = 0
        lt = {}

        def rd(s_):
            for f in range(2):
                a(f"ds_read_b128 {rng(XF(s_ % 3, f), 4)}, v{vXr} offset:{f * 14336 + s_ * 1024}")
            t = None
            for nt in range(2):
                for u in range(2):
                    r = WF(s_ % 3, nt) + 2 * u
                    t = a.one(f"ds_read_b64_tr_b16 v[{r}:{r + 1}], v{vT + nt} offset:{s_ * 4096 + u * 512}")
            lt[s_] = t
        rd(k0)
        rd(k0 + 1)
        for s_ in range(k0, k1):
            if s_ + 2 < k1:
                rd(s_ + 2)
            a.wait_lg(lt[s_])
            for f in range(2):
                for nt in range(2):
                    d = ACC(f, nt)
                    c = "0" if s_ == 0 else rng(d, 4)
                    a(f"{MF16} {rng(d, 4)}, {rng(WF(s_ % 3, nt), 4)}, {rng(XF(s_ % 3, f), 4)}, {c}")
    for f in range(2):
        b = ACC(f, 0)
        pk = 20 + 4 * f
        for r in range(4):
            a(f"v_cvt_pk_bf16_f32 v{pk + r}, v{b + 2 * r}, v{b + 2 * r + 1}")
        a(f"v_cndmask_b32 v{pk + 2}, v{pk + 2}, 0, s[72:73]")
        a(f"v_cndmask_b32 v{pk + 3}, v{pk + 3}, 0, s[72:73]")
        a(f"ds_write_b128 v13, {rng(pk, 4)} offset:{256 * f}")
    a("s_waitcnt lgkmcnt(0)")
    arrive(a, C_QF)
    stamp(a, 4)
    attention(a)
    out_proj(a)


QR = lambda i, h: 16 + 8 * i + 4 * h
O = lambda i: 48 + 16 * i
S = lambda b: 112 + 16 * b
P = 144
KB = lambda c, h: 152 + 16 * c + 4 * h
VB = lambda c, h: 152 + 16 * c + 8 + 4 * h


def attention(a):
    a.vm = a.lg = 0
    L16 = V_L16
    a("s_lshl_b32 s13, s3, 16")
    a(f"s_add_u32 s56, s{P_WS}, s13")
    a(f"s_addc_u32 s57, s{P_WS + 1}, 0")
    a(f"s_add_u32 s56, s56, {KV_OFF}")
    a(f"s_addc_u32 s57, s57, 0")
    a("s_mov_b32 s58, 65536")
    a("s_mov_b32 s59, 0x00020000")

    def ldk(c):
        a(f"buffer_load_dwordx4 {rng(KB(c, 0), 4)}, v{L16}, s[56:59], s15 offen sc1")
        return a.one(f"buffer_load_dwordx4 {rng(KB(c, 1), 4)}, v{L16}, s[56:59], s15 offen offset:1024 sc1")

    def ldv(c):
        a(f"buffer_load_dwordx4 {rng(VB(c, 0), 4)}, v{L16}, s[56:59], s15 offen offset:2048 sc1")
        return a.one(f"buffer_load_dwordx4 {rng(VB(c, 1), 4)}, v{L16}, s[56:59], s15 offen offset:3072 sc1")

    for r in range(64):
        a(f"v_mov_b32 v{O(0) + r}, 0")
    for r in range(4):
        a(f"v_mov_b32 v{VB(3, 1) + r}, 0")
        a(f"v_mov_b32 v{P + 4 + r}, 0")
    a("s_lshl_b32 s8, s3, 2")
    a(f"v_add_u32 v6, s8, v{V_CNT}")
    wait_cnt(a, C_KV0, 0, st=S_NONCE, nz=True, vbase=6)
    stamp(a, 5)
    a("s_mov_b32 s15, 0")
    tok_kv0 = None
    for c in range(4):
        ldk(c)
        if c < 3:
            t = ldv(c)
            if c == 0:
                tok_kv0 = t
            a("s_add_u32 s15, s15, 4096")
    for i in range(4):
        a(f"s_add_u32 s{8 + i}, s3, {i + 1}")
        a(f"s_and_b32 s{8 + i}, s{8 + i}, 3")
    a(f"v_cmp_le_u32 s[74:75], 32, v{V_LANE}")
    wait_cnt(a, C_QF, 4)
    for i in range(4):
        a(f"s_lshl_b32 s14, s{8 + i}, 11")
        a(f"s_add_u32 s14, s14, {L_QF}")
        a(f"v_add_u32 v13, s14, v{L16}")
        a(f"ds_read_b128 {rng(QR(i, 0), 4)}, v13")
        a(f"ds_read_b128 {rng(QR(i, 1), 4)}, v13 offset:1024")
    a("s_waitcnt lgkmcnt(0)")
    arrive(a, C_QRD)
    a.wait_vm(tok_kv0)
    a(f"{MF32} {rng(S(0), 16)}, {rng(KB(0, 0), 4)}, {rng(QR(0, 0), 4)}, 0")
    a(f"{MF32} {rng(S(0), 16)}, {rng(KB(0, 1), 4)}, {rng(QR(0, 1), 4)}, {rng(S(0), 16)}")
    a("s_mov_b32 s14, 4")
    a("s_setprio 1")
    stamp(a, 6)
    a.fence()
    a.raw(".p2align 6")
    a.label("F_LOOP", flush=False)

    def ex(cur, k0, pk):
        for k in range(k0, k0 + 4):
            a(f"v_exp_f32 v{cur + k}, v{cur + k}")
        a(f"v_cvt_pk_bf16_f32 v{P + pk}, v{cur + k0}, v{cur + k0 + 1}")
        a(f"v_cvt_pk_bf16_f32 v{P + pk + 1}, v{cur + k0 + 2}, v{cur + k0 + 3}")

    def body():
        for ls in range(16):
            c, i = divmod(ls, 4)
            cur, nxt = S(ls % 2), S((ls + 1) % 2)
            cn, inx = divmod((ls + 1) % 16, 4)
            cp, ip = divmod((ls - 1) % 16, 4)
            if i == 3:
                a("s_waitcnt vmcnt(10)")
            a(f"{MF32} {rng(nxt, 16)}, {rng(KB(cn, 0), 4)}, {rng(QR(inx, 0), 4)}, 0")
            ex(cur, 0, 0)
            a(f"{MF32} {rng(nxt, 16)}, {rng(KB(cn, 1), 4)}, {rng(QR(inx, 1), 4)}, {rng(nxt, 16)}")
            if i == 2:
                ldk(c)
            ex(cur, 4, 2)
            a(f"{MF32} {rng(O(ip), 16)}, {rng(VB(cp, 1), 4)}, {rng(P + 4, 4)}, {rng(O(ip), 16)}")
            if i == 0:
                ldv(cp)
                a("s_add_u32 s15, s15, 4096")
            ex(cur, 8, 4)
            a(f"{MF32} {rng(O(i), 16)}, {rng(VB(c, 0), 4)}, {rng(P, 4)}, {rng(O(i), 16)}")
            ex(cur, 12, 6)

    n0 = a.nops
    body()
    assert a.nops == n0, "unexpected nops in attention loop"
    save = (list(a.out), list(a.hist), a.vm, a.lg)
    body()
    assert a.nops == n0, "unexpected nops across the attention back edge"
    a.out, a.hist, a.vm, a.lg = save
    a("s_sub_u32 s14, s14, 1")
    a("s_cmp_lg_u32 s14, 0")
    a("s_cbranch_scc1 F_LOOP")
    a(f"{MF32} {rng(O(3), 16)}, {rng(VB(3, 1), 4)}, {rng(P + 4, 4)}, {rng(O(3), 16)}")
    a("s_setprio 2")
    stamp(a, 7)
    wait_cnt(a, C_WO, 4)
    for i in range(3):
        a(f"s_mul_i32 s14, s{8 + i}, 12288")
        a(f"s_add_u32 s14, s14, {L_BRED}")
        a(f"v_add_u32 v13, s14, v{L16}")
        for qd in range(4):
            a(f"ds_write_b128 v13, {rng(O(i) + 4 * qd, 4)} offset:{i * 4096 + qd * 1024}")
    a("s_mul_i32 s14, s3, 12288")
    a(f"s_add_u32 s14, s14, {L_BRED}")
    a(f"v_add_u32 v13, s14, v{L16}")
    srd(a, 60, P_WS, 0x200000, OF_OFF)
    a("s_waitcnt lgkmcnt(0)")
    arrive(a, C_RED)
    wait_cnt(a, C_RED, 4)
    a.lg = 0
    toks = []
    for i in range(3):
        for qd in range(4):
            toks.append(a.one(f"ds_read_b128 {rng(O(i) + 4 * qd, 4)}, v13 offset:{i * 4096 + qd * 1024}"))
    a(f"s_lshl_b32 s14, s{S_PG}, 1")
    a("s_lshr_b32 s12, s3, 1")
    a("s_add_u32 s14, s14, s12")
    a("s_lshl_b32 s14, s14, 4")
    a(f"s_lshl_b32 s12, s{S_HP}, 1")
    a("s_add_u32 s14, s14, s12")
    a("s_and_b32 s12, s3, 1")
    a("s_add_u32 s14, s14, s12")
    a("s_lshl_b32 s12, s14, 6")
    a("s_lshl_b32 s14, s14, 11")
    F = O(3)
    for i in range(3):
        for qd in range(4):
            a.wait_lg(toks[4 * i + qd])
            for r in range(0, 4, 2):
                x, y = F + 4 * qd + r, O(i) + 4 * qd + r
                a(f"v_pk_add_f32 v[{x}:{x + 1}], v[{x}:{x + 1}], v[{y}:{y + 1}]")
    arrive(a, C_RED2)
    a(f"v_mov_b32 v12, v{F + 12}")
    a(f"v_mov_b32 v13, v{F + 12}")
    a("v_permlane32_swap_b32 v12, v13")
    a("v_rcp_f32 v13, v13")
    for r in range(16):
        a(f"v_mul_f32 v{F + r}, v{F + r}, v13")
    for r in range(8):
        a(f"v_cvt_pk_bf16_f32 v{P + r}, v{F + 2 * r}, v{F + 2 * r + 1}")
    a(f"v_cndmask_b32 v{P + 6}, v{P + 6}, 0, s[74:75]")
    a(f"v_cndmask_b32 v{P + 7}, v{P + 7}, 0, s[74:75]")
    a(f"buffer_store_dwordx4 {rng(P, 4)}, v{L16}, s[60:63], s14 offen sc1")
    a(f"buffer_store_dwordx4 {rng(P + 4, 4)}, v{L16}, s[60:63], s14 offen offset:1024 sc1")
    stamp(a, 8)
    a(f"v_mov_b32 v5, s{S_NONCE}")
    a("v_mov_b32 v6, 0")
    a(f"s_add_u32 s12, s12, {OFL_OFF}")
    a("s_waitcnt vmcnt(0)")
    a("s_mov_b64 exec, 1")
    a("buffer_store_dword v5, v6, s[64:67], s12 offen sc1")
    a("s_mov_b64 exec, -1")


def out_proj(a):
    L16 = V_L16
    vW, vR, vTk, vTs, vO = 16, 17, 18, 19, 20
    a(f"s_cmp_eq_u32 s{S_HP}, 7")
    a("s_cbranch_scc1 F_BEND")
    a(f"v_and_b32 v5, 7, v{V_LANE}")
    a("v_lshlrev_b32 v21, 6, v5")
    a(f"s_lshl_b32 s14, s{S_PG}, 1")
    a("s_and_b32 s9, s3, 1")
    a("s_add_u32 s14, s14, s9")
    a("s_lshl_b32 s14, s14, 4")
    a("s_lshr_b32 s10, s3, 1")
    a("s_lshl_b32 s12, s10, 3")
    a("s_add_u32 s14, s14, s12")
    a("s_lshl_b32 s12, s14, 6")
    a(f"s_add_u32 s12, s12, {OFL_OFF}")
    a("s_lshl_b32 s14, s14, 11")
    a(f"v_lshrrev_b32 v5, 1, v{V_G}")
    a(f"v_lshrrev_b32 v7, 2, v{V_N}")
    a("v_lshl_add_u32 v5, v5, 2, v7")
    a("v_lshlrev_b32 v5, 7, v5")
    a(f"v_lshrrev_b32 v7, 3, v{V_N}")
    a("v_lshl_add_u32 v5, v7, 6, v5")
    a(f"v_and_b32 v7, 1, v{V_G}")
    a("v_lshl_add_u32 v5, v7, 5, v5")
    a(f"v_and_b32 v7, 3, v{V_N}")
    a("v_lshl_add_u32 v5, v7, 3, v5")
    a("s_lshl_b32 s13, s10, 6")
    a("v_xor_b32 v5, s13, v5")
    a("s_mul_i32 s13, s10, 28672")
    a(f"v_add_u32 v{vTk}, s13, v5")
    a(f"v_xor_b32 v{vTs}, 64, v{vTk}")
    WFR = lambda ks, q: 88 + 8 * ks + 4 * q
    for ks in range(16):
        hl, half = divmod(ks, 2)
        for q in range(2):
            for u in range(2):
                r = WFR(ks, q) + 2 * u
                a(f"ds_read_b64_tr_b16 v[{r}:{r + 1}], v{vTs if q else vTk} offset:{(28 * hl + 16 * half + 8 * u) * 128}")
    srd(a, 52, P_OUT, OUT_BYTES)
    a(f"v_lshrrev_b32 v5, 5, v{V_LANE}")
    a(f"v_mul_u32_u24 v{vO}, {4 * 3584}, v5")
    a(f"v_and_b32 v5, 31, v{V_LANE}")
    a(f"v_lshl_add_u32 v{vO}, v5, 2, v{vO}")
    a(f"s_lshl_b32 s8, s{S_PG}, 1")
    a("s_add_u32 s8, s8, s9")
    a(f"s_mul_i32 s8, s8, {32 * 3584}")
    a(f"s_lshl_b32 s13, s{S_HP}, 8")
    a("s_add_u32 s8, s8, s13")
    a("s_lshl_b32 s13, s10, 7")
    a("s_add_u32 s8, s8, s13")
    a("s_add_u32 s13, s8, 1792")
    a("s_lshl_b32 s8, s3, 12")
    a(f"s_add_u32 s8, s8, {L_PX}")
    a(f"v_add_u32 v{vW}, s8, v{L16}")
    a("s_xor_b32 s8, s3, 2")
    a("s_lshl_b32 s8, s8, 12")
    a(f"s_add_u32 s8, s8, {L_PX}")
    a(f"v_add_u32 v{vR}, s8, v{L16}")
    a("s_lshl_b32 s8, s9, 2")
    a(f"v_add_u32 v22, s8, v{V_CNT}")
    wait_cnt(a, C_RED2, 4)
    poll_flags(a, 21, 64, "s12", sleep=1)
    stamp(a, 9)
    a.vm = 0
    OFR = lambda ks: 24 + 4 * ks
    toks = []
    for hl in range(8):
        a(f"buffer_load_dwordx4 {rng(OFR(2 * hl), 4)}, v{L16}, s[60:63], s14 offen offset:{(hl % 2) * 2048} sc1")
        toks.append(a.one(f"buffer_load_dwordx4 {rng(OFR(2 * hl + 1), 4)}, v{L16}, s[60:63], s14 offen offset:{(hl % 2) * 2048 + 1024} sc1"))
        if hl % 2 == 1 and hl < 7:
            a("s_add_u32 s14, s14, 4096")
    acc = lambda q: 216 + 16 * q
    for ks in range(16):
        if ks % 2 == 0:
            a.wait_vm(toks[ks // 2])
        for q in (1, 0):
            d = acc(q)
            c = "0" if ks == 0 else rng(d, 16)
            a(f"{MF32} {rng(d, 16)}, {rng(OFR(ks), 4)}, {rng(WFR(ks, q), 4)}, {c}")
    stamp(a, 10)
    for qd in range(4):
        a(f"ds_write_b128 v{vW}, {rng(acc(1) + 4 * qd, 4)} offset:{qd * 1024}")
    a("s_waitcnt lgkmcnt(0)")
    a("s_mov_b64 exec, 1")
    a(f"ds_add_u32 v22, v{V_ONE} offset:{4 * C_PX0}")
    a("s_mov_b64 exec, -1")
    wait_cnt(a, C_PX0, 2, vbase=22, sleep=0)
    a.lg = 0
    toks = []
    for qd in range(4):
        toks.append(a.one(f"ds_read_b128 {rng(24 + 4 * qd, 4)}, v{vR} offset:{qd * 1024}"))
    for qd in range(4):
        a.wait_lg(toks[qd])
        b = acc(0) + 4 * qd
        for r in range(0, 4, 2):
            a(f"v_pk_add_f32 v[{b + r}:{b + r + 1}], v[{b + r}:{b + r + 1}], v[{24 + 4 * qd + r}:{25 + 4 * qd + r}]")
        a(f"buffer_store_dword v{b}, v{vO}, s[52:55], s13 offen")
        a(f"buffer_store_dword v{b + 1}, v{vO}, s[52:55], s13 offen offset:3584")
        a(f"s_add_u32 s13, s13, {2 * 3584}")
        a(f"buffer_store_dword v{b + 2}, v{vO}, s[52:55], s13 offen")
        a(f"buffer_store_dword v{b + 3}, v{vO}, s[52:55], s13 offen offset:3584")
        if qd < 3:
            a(f"s_add_u32 s13, s13, {6 * 3584}")
    stamp(a, 11)
    a.label("F_BEND")
    stamp_flush(a, 0, 12)
    a("s_endpgm")


from gen_fa import role_a, role_a_front, role_a_kv
```

```python
from gen_f import *

S_WA = 5
EG_OFF = 0x340000
EG_BYTES = 32 * 448 * 16
HF_OFF = H_OFF
HF_BYTES = 32 * 2 * 28 * 2048

MR, MI, M16R, M16I, M64R, M64I, MQR, MQI, KR, KI = 16, 17, 18, 19, 20, 21, 22, 23, 24, 25


def role_a_front(a):
    a.vm = a.lg = 0
    a(f"s_sub_u32 s{S_WA}, s3, 4")
    srd(a, 52, P_BX, X_BYTES)
    a(f"s_lshl_b32 s8, s{S_PG}, 6")
    a(f"s_lshl_b32 s9, s{S_WA}, 4")
    a("s_add_u32 s8, s8, s9")
    a(f"v_lshrrev_b32 v5, 2, v{V_LANE}")
    a("v_add_u32 v5, s8, v5")
    a("v_mul_u32_u24 v5, 896, v5")
    a(f"v_sub_u32 v6, 0, v{V_G}")
    a(f"v_xor_b32 v6, v6, v{V_LANE}")
    a("v_and_b32 v6, 3, v6")
    a("v_lshl_add_u32 v12, v6, 4, v5")
    a(f"s_mul_i32 s10, s{S_WA}, 14336")
    a(f"s_add_u32 s10, s10, {L_XB}")
    a(f"s_lshl_b32 s12, s{S_ROT}, 7")
    a(f"s_lshr_b32 s13, s{S_HP}, 1")
    a(f"s_cmp_eq_u32 s13, s{S_WA}")
    a("s_cbranch_scc1 F_AX")
    wait_cnt(a, C_WKV0, 4, sleep=2)
    a.label("F_AX", flush=False)
    a("s_setprio 3")
    a("s_mov_b32 m0, s10")
    toks = []
    for s_ in range(14):
        toks.append(a.one("buffer_load_dwordx4 v12, s[52:55], s12 offen lds"))
        if s_ < 13:
            a("s_add_u32 m0, m0, 1024")
            rot_step(a, 12, 64, 896)
    a(f"s_cmp_eq_u32 s13, s{S_WA}")
    a("s_cbranch_scc1 F_KVW")
    vm_save = a.vm
    for (k0, k1, cnt) in STAGES:
        a.wait_vm(toks[k1 - 1])
        arrive(a, cnt)
    a("s_branch F_APOLL")
    return (toks, vm_save)


def role_a_kv(a, st):
    a.vm = st[1]
    kv_wave(a, st[0])
    a("s_branch F_APOLL")


def prefetch_w(a, ptrs):
    for i, p in enumerate(ptrs):
        srd(a, 56, p, W_BYTES)
        a(f"buffer_load_dword v{124 + i}, v{V_PF}, s[56:59], 0 offen")


P1MODE = int(os.environ.get("P1MODE", "1"))


def prefetch_xa(a):
    srd(a, 56, P_AX, X_BYTES)
    a(f"s_mul_i32 s8, s{S_PG}, 448")
    a(f"s_mul_i32 s9, s{S_HP}, 56")
    a("s_add_u32 s8, s8, s9")
    a(f"s_mul_i32 s9, s{S_WA}, 14")
    a("s_add_u32 s8, s8, s9")
    a(f"v_min_u32 v5, 13, v{V_LANE}")
    a("v_add_lshl_u32 v5, v5, s8, 7")
    a("buffer_load_dword v127, v5, s[56:59], 0 offen")


def role_a(a, with_a):
    a.label("F_APOLL")
    a.vm = 0
    a("s_setprio 2")
    srd(a, 64, P_WS, FLG_BYTES, FLG_OFF)
    if with_a:
        lam_setup(a)
    wait_cnt(a, C_NONCE, 0, st=S_NONCE, nz=True, sleep=2)
    stamp(a, 4)
    if with_a and P1MODE == 1:
        prefetch_xa(a)
        prefetch_w(a, [P_BRE, P_BIM])
    a("s_sleep 12")
    a(f"v_lshlrev_b32 v6, 6, v{V_LANE}")
    a(f"s_lshl_b32 s8, s{S_WA}, 12")
    poll_flags(a, 6, 64, "s8", sleep=4)
    a(f"s_lshl_b32 s8, s{S_WA}, 2")
    a(f"v_add_u32 v6, s8, v{V_CNT}")
    a(f"v_mov_b32 v5, s{S_NONCE}")
    a(f"ds_write_b32 v6, v5 offset:{4 * C_KV0}")
    stamp(a, 5)
    wait_cnt(a, C_QRD, 4, sleep=2)
    if with_a and P1MODE == 2:
        prefetch_xa(a)
        prefetch_w(a, [P_BRE, P_BIM])
        a("s_waitcnt vmcnt(0)")
    if with_a:
        a(f"s_cmp_eq_u32 s{S_HP}, 7")
        a("s_cbranch_scc1 F_AWO")
        a1(a)
        a("s_setprio 0")
        a3(a)
        stamp_flush(a, 0, 12)
        a("s_endpgm")
        a.label("F_AWO")
        a("s_sleep 64")
        for p in (P_CRE, P_CIM, P_WO):
            prefetch_w(a, [p])
            a("s_waitcnt vmcnt(0)")
            a("s_sleep 16")
        arrive(a, C_WO)
    else:
        wo_load(a)
    stamp_flush(a, 0, 12)
    a("s_endpgm")


def wo_load(a):
    srd(a, 52, P_WO, W_BYTES)
    a(f"v_lshrrev_b32 v5, 3, v{V_LANE}")
    a(f"s_mul_i32 s9, s{S_WA}, 112")
    a("v_add_u32 v5, s9, v5")
    a("v_mul_u32_u24 v5, 896, v5")
    a(f"v_and_b32 v7, 1, v{V_G}")
    a("v_lshlrev_b32 v7, 2, v7")
    a(f"v_and_b32 v6, 7, v{V_LANE}")
    a("v_xor_b32 v7, v7, v6")
    a("v_lshl_add_u32 v5, v7, 4, v5")
    a(f"s_lshl_b32 s9, s{S_HP}, 7")
    a("v_add_u32 v12, s9, v5")
    a(f"s_mul_i32 m0, s{S_WA}, 14336")
    a("s_mov_b32 s12, 0")
    for i in range(14):
        a("buffer_load_dwordx4 v12, s[52:55], s12 offen lds")
        if i < 13:
            a("s_add_u32 m0, m0, 1024")
            a(f"s_add_u32 s12, s12, {8 * 896}")
    a("s_waitcnt vmcnt(0)")
    arrive(a, C_WO)


def kv_wave(a, toks):
    a.label("F_KVW")
    XF = lambda b: 48 + 4 * b
    WF = lambda b, nt: 80 + 8 * b + 4 * nt
    ACC = lambda nt: 112 + 4 * nt
    vT, vXr = 26, 28
    stamp(a, 2)
    a("v_mov_b32 v30, 0")
    a(f"v_lshrrev_b32 v5, 2, v{V_N}")
    a(f"v_lshl_add_u32 v5, v{V_G}, 3, v5")
    a("v_lshlrev_b32 v5, 6, v5")
    a(f"v_and_b32 v6, 1, v{V_G}")
    a("v_lshl_add_u32 v5, v6, 5, v5")
    a(f"v_and_b32 v6, 3, v{V_N}")
    a("v_lshl_add_u32 v5, v6, 3, v5")
    a(f"v_add_u32 v{vT}, {L_WKV}, v5")
    a(f"v_xor_b32 v{vT + 1}, 32, v{vT}")
    xfrag16_base(a, vXr, "s10")
    srd(a, 60, P_WS, 0x40000, KV_OFF)
    srd(a, 64, P_WS, FLG_BYTES, FLG_OFF)
    a(f"v_cmp_eq_u32 s[72:73], 3, v{V_G}")
    a(f"s_lshl_b32 s8, s{S_PG}, 1")
    a(f"s_lshr_b32 s9, s{S_WA}, 1")
    a("s_add_u32 s8, s8, s9")
    a("s_lshl_b32 s8, s8, 12")
    a(f"s_and_b32 s9, s{S_WA}, 1")
    a(f"s_bitcmp1_b32 s{S_HP}, 0")
    a("s_cbranch_scc1 F_VJOB")

    def kv_mfma(is_v):
        for (k0, k1, cnt) in ((0, 8, C_WKV0), (8, 14, C_WKV1)):
            wait_cnt(a, cnt, 4, sleep=0)
            if k0 == 8:
                a("buffer_load_dword v31, v30, s[68:71], 0 offen sc1")
            a.lg = 0
            lt = {}

            def rd(s_):
                a.wait_vm(toks[s_])
                for (q0, q1, c2) in STAGES:
                    if s_ == q1 - 1:
                        arrive(a, c2)
                a(f"ds_read_b128 {rng(XF(s_ % 3), 4)}, v{vXr} offset:{s_ * 1024}")
                t = None
                for nt in range(2):
                    for u in range(2):
                        r = WF(s_ % 3, nt) + 2 * u
                        t = a.one(f"ds_read_b64_tr_b16 v[{r}:{r + 1}], v{vT + nt} offset:{s_ * 2048 + u * 256}")
                lt[s_] = t
            rd(k0)
            rd(k0 + 1)
            for s_ in range(k0, k1):
                if s_ + 2 < k1:
                    rd(s_ + 2)
                a.wait_lg(lt[s_])
                for nt in range(2):
                    d = ACC(nt)
                    c = "0" if s_ == 0 else rng(d, 4)
                    w, x = rng(WF(s_ % 3, nt), 4), rng(XF(s_ % 3), 4)
                    a(f"{MF16} {rng(d, 4)}, {x if is_v else w}, {w if is_v else x}, {c}")

    vm_save = a.vm
    a("s_lshl_b32 s9, s9, 8")
    a("s_add_u32 s8, s8, s9")
    a(f"v_lshlrev_b32 v29, 9, v{V_G}")
    a(f"v_lshl_add_u32 v29, v{V_N}, 4, v29")
    a(f"s_mov_b32 s14, {f32(CSCALE)}")
    a("v_mov_b32 v6, 0x3f803f80")
    a("v_mov_b32 v7, 0x00003f80")
    kv_mfma(False)
    for r in range(8):
        a(f"v_mul_f32 v{ACC(0) + r}, s14, v{ACC(0) + r}")
    for r in range(4):
        a(f"v_cvt_pk_bf16_f32 v{8 + r}, v{ACC(0) + 2 * r}, v{ACC(0) + 2 * r + 1}")
    a("v_cndmask_b32 v10, v10, v6, s[72:73]")
    a("v_cndmask_b32 v11, v11, v7, s[72:73]")
    a("buffer_store_dwordx4 v[8:11], v29, s[60:63], s8 offen sc1")
    a("s_branch F_KVPUB")
    a.label("F_VJOB")
    a.vm = vm_save
    a("s_lshl_b32 s9, s9, 10")
    a("s_add_u32 s8, s8, s9")
    a(f"v_and_b32 v5, 1, v{V_G}")
    a("v_lshlrev_b32 v5, 9, v5")
    a(f"v_lshl_add_u32 v5, v{V_N}, 4, v5")
    a(f"v_lshrrev_b32 v6, 1, v{V_G}")
    a("v_lshl_add_u32 v29, v6, 3, v5")
    a(f"v_cmp_le_u32 s[74:75], 12, v{V_N}")
    a(f"v_cmp_eq_u32 vcc, 12, v{V_N}")
    a("v_mov_b32 v6, 0x3f803f80")
    a("v_cndmask_b32 v6, 0, v6, vcc")
    kv_mfma(True)
    for r in range(4):
        a(f"v_cvt_pk_bf16_f32 v{8 + r}, v{ACC(0) + 2 * r}, v{ACC(0) + 2 * r + 1}")
    a("v_cndmask_b32 v10, v10, v6, s[74:75]")
    a("v_cndmask_b32 v11, v11, v6, s[74:75]")
    a("buffer_store_dwordx2 v[8:9], v29, s[60:63], s8 offen offset:2048 sc1")
    a("buffer_store_dwordx2 v[10:11], v29, s[60:63], s8 offen offset:2304 sc1")
    a.label("F_KVPUB")
    stamp(a, 3)
    a(f"s_lshl_b32 s8, s{S_PG}, 3")
    a(f"s_add_u32 s8, s8, s{S_HP}")
    a("s_lshl_b32 s8, s8, 6")
    a(f"s_mov_b32 s79, {SPIN}")
    a("v_mov_b32 v6, 0")
    a("s_waitcnt vmcnt(0)")
    a.label("F_NP", flush=False)
    a(f"v_readfirstlane_b32 s{S_NONCE}, v31")
    a(f"s_cmp_lg_u32 s{S_NONCE}, 0")
    a("s_cbranch_scc1 F_NOK")
    a("buffer_load_dword v31, v6, s[68:71], 0 offen sc1")
    a("s_waitcnt vmcnt(0)")
    a("s_sub_u32 s79, s79, 1")
    a("s_cmp_lg_u32 s79, 0")
    a("s_cbranch_scc1 F_NP")
    a.label("F_NOK", flush=False)
    a("s_mov_b64 exec, 1")
    a(f"buffer_store_dword v31, v6, s[64:67], s8 offen offset:{KVF_OFF} sc1")
    a(f"ds_write_b32 v{V_CNT}, v31 offset:{4 * C_NONCE}")
    a("s_mov_b64 exec, -1")


V_P = 26


def lam_setup(a):
    a(f"s_lshl_b32 s8, s{S_HP}, 6")
    a(f"s_lshl_b32 s9, s{S_WA}, 4")
    a("s_add_u32 s8, s8, s9")
    a(f"v_add_u32 v{V_P}, s8, v{V_N}")
    a(f"v_min_u32 v{V_P}, 447, v{V_P}")
    a(f"v_lshlrev_b32 v5, 1, v{V_P}")
    LD, LR, LI, A2, TH, T0, T1 = 8, 9, 10, 11, 27, 6, 7
    a(f"global_load_ushort v{LD}, v5, s[{P_LDT}:{P_LDT + 1}]")
    a(f"global_load_ushort v{LR}, v5, s[{P_LRE}:{P_LRE + 1}]")
    a(f"global_load_ushort v{LI}, v5, s[{P_LIM}:{P_LIM + 1}]")
    a("s_waitcnt vmcnt(0)")
    lam_base(a, LD, LR, LI, A2, TH, T0)
    lam_pow(a, A2, TH, 1, MR, MI, T0)
    lam_pow(a, A2, TH, 16, M16R, M16I, T0)
    lam_pow(a, A2, TH, 64, M64R, M64I, T0)
    a(f"v_lshlrev_b32 v{T1}, 9, v{V_G}")
    a(f"v_cvt_f32_u32 v{T1}, v{T1}")
    lam_pow(a, A2, TH, f"v{T1}", MQR, MQI, T0)
    a(f"v_add_f32 v{T0}, -1.0, v{MR}")
    a(f"v_mul_f32 v{T1}, v{LR}, v{LR}")
    a(f"v_fma_f32 v{T1}, v{LI}, v{LI}, v{T1}")
    a(f"v_rcp_f32 v{T1}, v{T1}")
    a(f"v_mul_f32 v{KR}, v{T0}, v{LR}")
    a(f"v_fma_f32 v{KR}, -v{MI}, v{LI}, v{KR}")
    a(f"v_mul_f32 v{KI}, v{T0}, v{LI}")
    a(f"v_fma_f32 v{KI}, -v{MI}, v{LR}, -v{KI}")
    a(f"v_add_f32 v{T1}, v{T1}, v{T1}")
    a(f"v_mul_f32 v{KR}, v{KR}, v{T1}")
    a(f"v_mul_f32 v{KI}, v{KI}, v{T1}")


CF = lambda kk, b: 128 + 8 * kk + 4 * b
AREA = 21504
ASPACE = int(os.environ.get("ASPACE", "1"))


def a1(a):
    a.vm = a.lg = 0
    stamp(a, 6)
    vXd, vBd, vXr, vBr, vCd, vCr = 32, 33, 34, 36, 38, 120
    D0, D1 = 40, 56
    FX = lambda b, tau, sg: 72 + 24 * b + 8 * sg + 4 * tau
    FB = lambda b, sg: 72 + 24 * b + 16 + 4 * sg
    srd(a, 52, P_AX, X_BYTES)
    srd(a, 56, P_BRE, W_BYTES)
    srd(a, 60, P_BIM, W_BYTES)
    a(f"v_xor_b32 v7, v{V_G}, v{V_LANE}")
    a("v_and_b32 v7, 3, v7")
    a("v_lshlrev_b32 v7, 4, v7")
    a(f"v_and_b32 v5, 1, v{V_G}")
    a("v_lshlrev_b32 v5, 5, v5")
    a(f"v_lshrrev_b32 v6, 1, v{V_G}")
    a("v_lshl_add_u32 v5, v6, 2, v5")
    a(f"v_lshrrev_b32 v6, 2, v{V_N}")
    a("v_add_u32 v5, v5, v6")
    a(f"s_lshl_b32 s8, s{S_PG}, 6")
    a(f"s_lshl_b32 s9, s{S_WA}, 3")
    a("s_add_u32 s8, s8, s9")
    a("v_add_u32 v5, s8, v5")
    a("v_mul_u32_u24 v5, 896, v5")
    a(f"v_add_u32 v{vXd}, v5, v7")
    a(f"s_lshl_b32 s8, s{S_HP}, 6")
    a(f"s_lshl_b32 s9, s{S_WA}, 4")
    a("s_add_u32 s9, s8, s9")
    a(f"v_lshrrev_b32 v6, 2, v{V_LANE}")
    a("v_add_u32 v5, s9, v6")
    a("v_mul_u32_u24 v5, 896, v5")
    a(f"v_add_u32 v{vBd}, v5, v7")
    a("v_add_u32 v5, s8, v6")
    a("v_mul_u32_u24 v5, 896, v5")
    a(f"s_and_b32 s9, s{S_WA}, 1")
    a("s_mul_i32 s9, s9, 448")
    a("v_add3_u32 v" + str(vCd) + ", v5, v7, s9")
    a(f"s_lshl_b32 s10, s{S_WA}, 10")
    a(f"s_add_u32 s10, s10, {L_XB}")
    a(f"s_mul_i32 s11, s{S_WA}, {AREA}")
    a(f"s_lshl_b32 s12, s{S_ROT}, 7")
    tokx, tokb = {}, {}

    def dma_b(s_, unit, sk):
        a(f"s_add_u32 m0, s11, {2048 * unit}")
        a("s_nop 0")
        a(f"buffer_load_dwordx4 v{vBd}, s[56:59], s{sk} offen lds")
        a(f"s_add_u32 m0, s11, {2048 * unit + 1024}")
        a("s_nop 0")
        tokb[s_] = a.one(f"buffer_load_dwordx4 v{vBd}, s[60:63], s{sk} offen lds")

    for s_ in range(14):
        if s_ == 10:
            a("s_mov_b32 s13, s12")
        a(f"s_add_u32 m0, s10, {4096 * s_}")
        a("s_nop 0")
        tokx[s_] = a.one(f"buffer_load_dwordx4 v{vXd}, s[52:55], s12 offen lds")
        if s_ < 10:
            dma_b(s_, s_, 12)
        if s_ < 13:
            rot_step(a, 12, 64, 896)
        if s_ in (2, 4, 6, 8):
            a.wait_vm(tokb[s_ - 2])
    a(f"v_and_b32 v5, 1, v{V_G}")
    a("v_lshlrev_b32 v5, 10, v5")
    a(f"v_lshl_add_u32 v5, v{V_N}, 6, v5")
    a(f"v_lshrrev_b32 v6, 2, v{V_N}")
    a(f"v_lshrrev_b32 v7, 1, v{V_G}")
    a("v_xor_b32 v6, v6, v7")
    a("v_lshl_add_u32 v5, v6, 4, v5")
    a("v_xor_b32 v6, 32, v5")
    a(f"v_add_u32 v{vXr}, {L_XB}, v5")
    a(f"v_add_u32 v{vXr + 1}, {L_XB}, v6")
    a(f"v_add_u32 v{vBr}, s11, v5")
    a(f"v_add_u32 v{vBr + 1}, s11, v6")
    a(f"s_and_b32 s9, s{S_WA}, 1")
    a("s_lshl_b32 s9, s9, 11")
    a("s_xor_b32 s8, s9, 2048")
    for sg in range(2):
        a(f"v_add_u32 v{vCr + 2 * sg}, s9, v{vBr + sg}")
        a(f"v_add_u32 v{vCr + 2 * sg + 1}, s8, v{vBr + sg}")
    for (k0, k1, cnt) in ((0, 5, C_XA0), (5, 10, C_XA1), (10, 14, C_XA2)):
        a.wait_vm(max(tokx[k1 - 1], tokb[k1 - 1]))
        arrive(a, cnt)
        wait_cnt(a, cnt, 4)
        a.lg = 0
        lt = {}
        if k0 >= 5:
            for i, p in enumerate((P_CRE, P_CIM) if k0 == 5 else (P_WO,)):
                srd(a, 68, p, W_BYTES)
                a(f"buffer_load_dword v{124 + i}, v{V_PF}, s[68:71], 0 offen")

        def rd(s_):
            t = None
            for sg in range(2):
                for tau in range(2):
                    a(f"ds_read_b128 {rng(FX(s_ % 2, tau, sg), 4)}, v{vXr + sg} offset:{s_ * 4096 + tau * 2048}")
                t = a.one(f"ds_read_b128 {rng(FB(s_ % 2, sg), 4)}, v{vBr + sg} offset:{(s_ % 10) * 2048}")
            lt[s_] = t
        rd(k0)
        for s_ in range(k0, k1):
            if s_ + 1 < k1:
                rd(s_ + 1)
            a.wait_lg(lt[s_])
            if s_ < 4:
                dma_b(10 + s_, s_, 13)
                rot_step(a, 13, 64, 896)
            for sg in range(2):
                for tau in range(2):
                    d = (D0, D1)[tau]
                    c = "0" if s_ == 0 and sg == 0 else rng(d, 16)
                    a(f"{MF32} {rng(d, 16)}, {rng(FX(s_ % 2, tau, sg), 4)}, {rng(FB(s_ % 2, sg), 4)}, {c}")
                    if ASPACE:
                        a(f"s_sleep {ASPACE}")
    arrive(a, C_G1)
    stamp(a, 7)
    a(f"s_cmp_lt_u32 s{S_WA}, 2")
    a(f"s_cselect_b32 s56, s{P_CRE}, s{P_CIM}")
    a(f"s_cselect_b32 s57, s{P_CRE + 1}, s{P_CIM + 1}")
    tokc = {}

    def dma_c(cb):
        for rb in range(4):
            a(f"s_add_u32 m0, s11, {(cb % 5) * 4096 + rb * 1024}")
            a(f"s_mov_b32 s12, {rb * 16 * 896 + cb * 64}")
            tokc[cb] = a.one(f"buffer_load_dwordx4 v{vCd}, s[56:59], s12 offen lds")

    def rd_c(cb):
        for sg in range(2):
            for b in range(2):
                a(f"ds_read_b128 {rng(CF(2 * cb + sg, b), 4)}, v{vCr + 2 * sg + b} offset:{(cb % 5) * 4096}")

    for cb in range(3):
        dma_c(cb)
    for r in range(16):
        a(f"v_permlane16_swap_b32 v{D0 + r}, v{D1 + r}")
    T0, T1, SR, SI = 6, 7, 28, 29
    for r in range(16):
        ur, ui = D0 + r, D1 + r
        a(f"v_mul_f32 v{T0}, v{KI}, v{ui}")
        a(f"v_mul_f32 v{T1}, v{KI}, v{ur}")
        a(f"v_fma_f32 v{ur}, v{KR}, v{ur}, -v{T0}")
        a(f"v_fma_f32 v{ui}, -v{KR}, v{ui}, -v{T1}")
        if r == 0:
            continue
        pr, pi = (D0, D1) if r == 1 else (SR, SI)
        cmad(a, SR, SI, MR, MI, pr, pi, ur, ui, 8, 9)
    a(f"s_lshl_b32 s8, s{S_WA}, 9")
    a(f"s_add_u32 s8, s8, {L_ASCR}")
    a(f"v_lshl_add_u32 v5, v{V_LANE}, 3, s8")
    a(f"ds_write_b64 v5, v[{SR}:{SI}]")
    a(f"v_lshl_add_u32 v5, v{V_N}, 3, s8")
    SQ = 104
    for q in range(4):
        a(f"ds_read_b64 v[{SQ + 2 * q}:{SQ + 2 * q + 1}], v5 offset:{128 * q}")
    srd(a, 60, P_WS, EG_BYTES, EG_OFF)
    a(f"s_mul_i32 s12, s{S_PG}, 7168")
    a(f"v_lshlrev_b32 v30, 4, v{V_P}")
    a(f"v_add_u32 v5, 1, v{V_G}")
    a(f"v_mul_u32_u24 v5, {8 * 7168}, v5")
    a("v_sub_u32 v5, v30, v5")
    a("v_add_u32 v31, s12, v5")
    a(f"v_mov_b32 v113, s{S_NONCE}")
    a(f"v_mov_b32 v115, s{S_NONCE}")
    a("s_waitcnt lgkmcnt(0)")
    cmad(a, 112, 114, M16R, M16I, SQ, SQ + 1, SQ + 2, SQ + 3, T0, T1)
    cmad(a, 112, 114, M16R, M16I, 112, 114, SQ + 4, SQ + 5, T0, T1)
    cmad(a, 112, 114, M16R, M16I, 112, 114, SQ + 6, SQ + 7, T0, T1)
    a("s_mov_b64 exec, 0xffff")
    a("buffer_store_dwordx4 v[112:115], v30, s[60:63], s12 offen sc1")
    a("s_mov_b64 exec, -1")
    stamp(a, 8)
    for cb in range(3, 5):
        dma_c(cb)
    EGR = 72
    a.wait_vm(tokc[1])
    a.lg = 0
    rd_c(0)
    rd_c(1)
    a("s_waitcnt lgkmcnt(0)")
    dma_c(5)
    dma_c(6)
    a.wait_vm(tokc[4])
    for cb in range(2, 5):
        rd_c(cb)
    a.wait_vm(tokc[6])
    rd_c(5)
    rd_c(6)
    a("s_waitcnt lgkmcnt(0)")
    arrive(a, C_CDONE)
    wait_cnt(a, C_CDONE, 4, sleep=2)
    wo_load(a)
    a(f"s_mov_b32 s79, {SPIN}")
    a.label("F_EP")
    a("v_mov_b32 v5, v31")
    for i in range(8):
        a(f"buffer_load_dwordx4 {rng(EGR + 4 * i, 4)}, v5, s[60:63], 0 offen sc1")
        if i < 7:
            a("v_add_u32 v5, 7168, v5")
    a("v_mov_b32 v5, v31")
    a("s_mov_b64 s[8:9], 0")
    a("s_waitcnt vmcnt(0)")
    for i in range(8):
        a(f"v_cmp_ne_u32 s[12:13], s{S_NONCE}, v{EGR + 4 * i + 1}")
        a(f"v_cmp_ne_u32 s[14:15], s{S_NONCE}, v{EGR + 4 * i + 3}")
        a("v_cmp_le_i32 vcc, 0, v5")
        if i < 7:
            a("v_add_u32 v5, 7168, v5")
        a("s_or_b64 s[12:13], s[12:13], s[14:15]")
        a("s_and_b64 s[12:13], s[12:13], vcc")
        a("s_or_b64 s[8:9], s[8:9], s[12:13]")
    a("s_cbranch_scc0 F_EOK")
    a("s_sleep 8")
    a("s_sub_u32 s79, s79, 1")
    a("s_cmp_lg_u32 s79, 0")
    a("s_cbranch_scc1 F_EP")
    a.label("F_EOK")
    stamp(a, 9)
    GR, GI = 28, 29
    cmad(a, GR, GI, M64R, M64I, EGR, EGR + 2, EGR + 4, EGR + 6, T0, T1)
    for i in range(2, 8):
        cmad(a, GR, GI, M64R, M64I, GR, GI, EGR + 4 * i, EGR + 4 * i + 2, T0, T1)
    a(f"v_mul_f32 v{T0}, v{MQI}, v{GI}")
    a(f"v_mul_f32 v{T1}, v{MQI}, v{GR}")
    a(f"v_fma_f32 v{GR}, v{MQR}, v{GR}, -v{T0}")
    a(f"v_fma_f32 v{GI}, v{MQR}, v{GI}, v{T1}")
    for x in (GR, GI):
        a(f"v_mov_b32 v{T0}, v{x}")
        a(f"v_permlane16_swap_b32 v{x}, v{T0}")
        a(f"v_add_f32 v{x}, v{x}, v{T0}")
        a(f"v_mov_b32 v{T0}, v{x}")
        a(f"v_permlane32_swap_b32 v{x}, v{T0}")
        a(f"v_add_f32 v{x}, v{x}, v{T0}")
    for q in range(3):
        a(f"v_cmp_lt_u32 vcc, {q}, v{V_G}")
        cmad(a, 8, 9, M16R, M16I, GR, GI, SQ + 2 * q, SQ + 2 * q + 1, T0, T1)
        a(f"v_cndmask_b32 v{GR}, v{GR}, v8, vcc")
        a(f"v_cndmask_b32 v{GI}, v{GI}, v9, vcc")
    PKR, PKI = 72, 80
    for r in range(16):
        pr, pi = (GR, GI) if r == 0 else (D0 + r - 1, D1 + r - 1)
        cmad(a, D0 + r, D1 + r, MR, MI, pr, pi, D0 + r, D1 + r, T0, T1)
        if r % 2 == 1:
            a(f"v_cvt_pk_bf16_f32 v{PKR + r // 2}, v{D0 + r - 1}, v{D0 + r}")
            a(f"v_cvt_pk_bf16_f32 v{PKI + r // 2}, v{D1 + r - 1}, v{D1 + r}")
    a(f"s_mul_i32 s8, s{S_WA}, 4608")
    a(f"s_add_u32 s8, s8, {L_ARED}")
    a(f"v_mul_u32_u24 v8, 144, v{V_N}")
    a(f"v_lshl_add_u32 v8, v{V_G}, 5, v8")
    a("v_add_u32 v8, s8, v8")
    a(f"v_lshrrev_b32 v9, 1, v{V_G}")
    a(f"v_lshrrev_b32 v10, 2, v{V_N}")
    a("v_lshl_add_u32 v9, v9, 3, v10")
    a("v_mul_u32_u24 v9, 144, v9")
    a(f"v_and_b32 v10, 1, v{V_N}")
    a("v_lshl_add_u32 v9, v10, 6, v9")
    a(f"v_and_b32 v10, 1, v{V_G}")
    a("v_lshl_add_u32 v9, v10, 4, v9")
    a(f"v_bfe_u32 v10, v{V_N}, 1, 1")
    a("v_lshl_add_u32 v9, v10, 3, v9")
    a("v_add_u32 v9, s8, v9")
    wait_cnt(a, C_G1, 4)
    a(f"ds_write_b128 v8, {rng(PKR, 4)}")
    a(f"ds_write_b128 v8, {rng(PKR + 4, 4)} offset:16")
    a(f"ds_write_b128 v8, {rng(PKI, 4)} offset:2304")
    a(f"ds_write_b128 v8, {rng(PKI + 4, 4)} offset:2320")
    HO = 88
    for part in range(2):
        for tau in range(2):
            for u in range(2):
                r = HO + 8 * part + 4 * tau + 2 * u
                a(f"ds_read_b64_tr_b16 v[{r}:{r + 1}], v9 offset:{part * 2304 + u * 576 + tau * 32}")
    srd(a, 60, P_WS, HF_BYTES, HF_OFF)
    a(f"s_lshl_b32 s8, s{S_HP}, 2")
    a(f"s_add_u32 s8, s8, s{S_WA}")
    a(f"s_mul_i32 s9, s{S_PG}, 56")
    a("s_add_u32 s9, s9, s8")
    a("s_lshl_b32 s9, s9, 11")
    a(f"s_add_u32 s12, s9, {28 * 2048}")
    a(f"s_mul_i32 s13, s{S_PG}, 28")
    a("s_add_u32 s13, s13, s8")
    a("s_lshl_b32 s13, s13, 6")
    a(f"s_add_u32 s13, s13, {HFL_OFF}")
    a("s_waitcnt lgkmcnt(0)")
    for part in range(2):
        for tau in range(2):
            a(f"buffer_store_dwordx4 {rng(HO + 8 * part + 4 * tau, 4)}, v{V_L16}, s[60:63], {'s12' if part else 's9'} offen offset:{1024 * tau} sc1")
    a(f"v_mov_b32 v5, s{S_NONCE}")
    a("v_mov_b32 v6, 0")
    a("s_waitcnt vmcnt(0)")
    a("s_mov_b64 exec, 1")
    a("buffer_store_dword v5, v6, s[64:67], s13 offen sc1")
    a("s_mov_b64 exec, -1")
    arrive(a, C_ARED)
    stamp(a, 10)


def a3(a):
    vH0, vH1, vO, vX, vD = 16, 17, 18, 19, 20
    acc = lambda ta, b: 40 + 32 * ta + 16 * b
    a(f"v_min_u32 v5, 13, v{V_LANE}")
    a("v_lshlrev_b32 v21, 6, v5")
    a(f"s_and_b32 s9, s{S_WA}, 1")
    a(f"s_lshr_b32 s10, s{S_WA}, 1")
    a("s_mul_i32 s8, s9, 14")
    a(f"s_mul_i32 s13, s{S_PG}, 28")
    a("s_add_u32 s13, s13, s8")
    a("s_lshl_b32 s13, s13, 6")
    a(f"s_add_u32 s13, s13, {HFL_OFF}")
    a(f"s_lshl_b32 s12, s{S_PG}, 1")
    a("s_add_u32 s12, s12, s10")
    a("s_mul_i32 s12, s12, 28")
    a("s_add_u32 s12, s12, s8")
    a("s_lshl_b32 s12, s12, 11")
    a("s_lshl_b32 s8, s10, 10")
    a(f"v_add_u32 v{vH0}, s8, v{V_L16}")
    a(f"v_xor_b32 v{vH1}, 1024, v{vH0}")
    a(f"v_lshrrev_b32 v5, 5, v{V_LANE}")
    a("v_lshlrev_b32 v5, 5, v5")
    a(f"s_lshl_b32 s8, s{S_PG}, 6")
    a("s_lshl_b32 s14, s10, 4")
    a("s_add_u32 s8, s8, s14")
    a("v_add_u32 v5, s8, v5")
    a(f"v_and_b32 v6, 31, v{V_LANE}")
    a(f"s_lshl_b32 s8, s{S_HP}, 6")
    a("s_lshl_b32 s14, s9, 5")
    a("s_add_u32 s8, s8, s14")
    a("v_add_u32 v6, s8, v6")
    a(f"v_mul_u32_u24 v{vO}, 3584, v5")
    a(f"v_lshl_add_u32 v{vO}, v6, 2, v{vO}")
    a(f"v_mul_u32_u24 v{vX}, 896, v5")
    a(f"v_lshl_add_u32 v{vX}, v6, 1, v{vX}")
    a("v_lshlrev_b32 v6, 1, v6")
    a(f"global_load_ushort v{vD}, v6, s[{P_DSK}:{P_DSK + 1}]")
    srd(a, 52, P_AX, X_BYTES)
    srd(a, 56, P_OUT, OUT_BYTES)
    poll_flags(a, 21, 64, "s13", sleep=8)
    stamp(a, 11)
    a.vm = 0
    pool = [24, 32, 104, 112, 120, 240, 248]
    hreg, tok = {}, {}
    nxt = [0]

    def ldh():
        kk = nxt[0]
        r = pool.pop(0)
        hreg[kk] = r
        off = (kk % 2) * 2048
        a(f"buffer_load_dwordx4 {rng(r, 4)}, v{vH0}, s[60:63], s12 offen offset:{off} sc1")
        tok[kk] = a.one(f"buffer_load_dwordx4 {rng(r + 4, 4)}, v{vH1}, s[60:63], s12 offen offset:{off} sc1")
        if kk % 2 == 1:
            a("s_add_u32 s12, s12, 4096")
        nxt[0] += 1

    while pool:
        ldh()
    XS = None
    for kk in range(14):
        a.wait_vm(tok[kk])
        for ta in range(2):
            for b in range(2):
                d = acc(ta, b)
                c = "0" if kk == 0 else rng(d, 16)
                a(f"{MF32} {rng(d, 16)}, {rng(hreg[kk] + 4 * ta, 4)}, {rng(CF(kk, b), 4)}, {c}")
        pool.append(hreg[kk])
        pool.append(CF(kk, 0))
        while pool and nxt[0] < 14:
            ldh()
        if kk == 7:
            XS = CF(6, 0)
            for r in range(16):
                if r % 4 == 0:
                    a(f"s_mov_b32 s8, {896 * r}")
                a(f"buffer_load_ushort v{XS + r}, v{vX}, s[52:55], s8 offen offset:{896 * (r % 4)}")
    a("s_setprio 2")
    wait_cnt(a, C_ARED, 4)
    for j in range(1, 4):
        a(f"s_xor_b32 s8, s{S_WA}, {j}")
        a("s_mul_i32 s8, s8, 12288")
        a(f"s_add_u32 s8, s8, {L_ARED}")
        a(f"v_add_u32 v5, s8, v{V_L16}")
        for qd in range(4):
            a(f"ds_write_b128 v5, {rng(acc(j // 2, j % 2) + 4 * qd, 4)} offset:{(j - 1) * 4096 + qd * 1024}")
    a(f"s_mul_i32 s8, s{S_WA}, 12288")
    a(f"s_add_u32 s8, s8, {L_ARED}")
    a(f"v_add_u32 v21, s8, v{V_L16}")
    a(f"v_lshlrev_b32 v{vD}, 16, v{vD}")
    F = acc(0, 0)
    a("s_waitcnt vmcnt(0)")
    for r in range(16):
        a(f"v_lshlrev_b32 v{XS + r}, 16, v{XS + r}")
        a(f"v_fmac_f32 v{F + r}, v{XS + r}, v{vD}")
    a("s_waitcnt lgkmcnt(0)")
    arrive(a, C_ARED)
    wait_cnt(a, C_ARED, 8)
    a.lg = 0
    toks = {}
    for qd in range(4):
        for j in range(1, 4):
            toks[qd, j] = a.one(f"ds_read_b128 {rng(acc(j // 2, j % 2) + 4 * qd, 4)}, v21 offset:{(j - 1) * 4096 + qd * 1024}")
    a("s_mov_b32 s8, 0")
    for qd in range(4):
        a.wait_lg(toks[qd, 3])
        for j in range(1, 4):
            for r in range(0, 4, 2):
                x, y = F + 4 * qd + r, acc(j // 2, j % 2) + 4 * qd + r
                a(f"v_pk_add_f32 v[{x}:{x + 1}], v[{x}:{x + 1}], v[{y}:{y + 1}]")
        for r in range(4):
            a(f"buffer_store_dword v{F + 4 * qd + r}, v{vO}, s[56:59], s8 offen offset:{3584 * (r % 2)}")
            if r % 2 == 1:
                a("s_add_u32 s8, s8, 7168")
    stamp(a, 13)
```

```python
from gen_common import *

K1_LDS = 114688 + 2048
MF16 = "v_mfma_f32_16x16x32_bf16"


def swap23(a, vd, vs, t):
    a(f"v_and_b32 v{vd}, 0xfffffff3, v{vs}")
    a(f"v_and_b32 v{t}, 4, v{vs}")
    a(f"v_lshl_or_b32 v{vd}, v{t}, 1, v{vd}")
    a(f"v_and_b32 v{t}, 8, v{vs}")
    a(f"v_lshrrev_b32 v{t}, 1, v{t}")
    a(f"v_or_b32 v{vd}, v{vd}, v{t}")


def sum_over_G(a, x, t):
    a(f"v_mov_b32 v{t}, v{x}")
    a(f"v_permlane16_swap_b32 v{x}, v{t}")
    a(f"v_add_f32 v{x}, v{x}, v{t}")
    a(f"v_mov_b32 v{t}, v{x}")
    a(f"v_permlane32_swap_b32 v{x}, v{t}")
    a(f"v_add_f32 v{x}, v{x}, v{t}")


def gen_k1(a, a_only=False):
    a.raw(".globl k1_kernel\n.p2align 8\n.type k1_kernel,@function\nk1_kernel:")
    a("s_cmp_ge_u32 s2, 256")
    a("s_cbranch_scc1 K1_END")
    stamp(a, 0)
    load_args(a)
    a("v_lshrrev_b32 v5, 6, v0")
    a("v_and_b32 v1, 63, v0")
    a("v_readfirstlane_b32 s3, v5")
    a("v_and_b32 v2, 15, v0")
    a("v_bfe_u32 v3, v0, 4, 2")
    a("v_lshlrev_b32 v4, 4, v0")
    a("s_and_b32 s4, s2, 7")
    a("s_lshr_b32 s5, s2, 3")
    if a_only:
        a("s_cmp_ge_u32 s5, 14")
        a("s_cbranch_scc1 K1_END")
    a("s_cmp_ge_u32 s5, 30")
    a("s_cbranch_scc1 K1_KV")
    a("s_cmp_ge_u32 s5, 14")
    a("s_cbranch_scc1 K1_Q")
    role_a1(a)
    role_q(a)
    role_kv(a)
    a.label("K1_END")
    a("s_endpgm")


def role_a1(a):
    a.label("K1_A1")
    a.vm = a.lg = 0
    code_prefetch(a, "K1_A1", 6144, 4, 8, 6, 256)
    a("s_cmp_ge_u32 s5, 7")
    a("s_cselect_b32 s8, 1, 0")
    a("s_mul_i32 s9, s8, 7")
    a("s_sub_u32 s9, s5, s9")
    a("s_lshl_b32 s10, s4, 1")
    a("s_add_u32 s8, s8, s10")
    a("s_lshl_b32 s10, s8, 7")
    a("s_lshl_b32 s11, s9, 6")
    a("s_lshl_b32 s12, s3, 4")
    a("s_add_u32 s11, s11, s12")
    vX, vB, vP, vL0, vL1, vS = 12, 13, 14, 15, 16, 17
    a("v_lshrrev_b32 v5, 2, v2")
    a("v_and_b32 v6, 3, v2")
    a("v_lshl_add_u32 v5, v5, 5, v6")
    a("v_add_u32 v5, s10, v5")
    a("v_mul_u32_u24 v5, 896, v5")
    a(f"v_lshl_add_u32 v{vX}, v3, 4, v5")
    a(f"v_add_u32 v6, s11, v2")
    a(f"v_mul_u32_u24 v5, 896, v6")
    a(f"v_lshl_add_u32 v{vB}, v3, 4, v5")
    a(f"v_lshlrev_b32 v{vP}, 1, v6")
    a(f"v_lshlrev_b32 v{vL0}, 4, v1")
    a(f"v_add_u32 v{vL1}, 57344, v{vL0}")
    a("s_lshr_b32 s12, s10, 2")
    a("v_lshlrev_b32 v5, 3, v3")
    a("v_add_u32 v5, s12, v5")
    a("v_mul_u32_u24 v5, 448, v5")
    a(f"v_add_lshl_u32 v{vS}, v5, v6, 4")
    a("s_mul_i32 s13, s3, 7168")
    a("s_lshr_b32 s14, s3, 1")
    a("s_mul_i32 s14, s14, 3584")
    a("s_and_b32 s15, s3, 1")
    a("s_mul_i32 s15, s15, 448")
    a("s_add_u32 s14, s14, s15")
    a("s_waitcnt lgkmcnt(0)")
    stamp(a, 1)
    srd(a, 52, P_AX, X_BYTES)
    vLD, vLR, vLI = 18, 19, 20
    a(f"global_load_ushort v{vLD}, v{vP}, s[{P_LDT}:{P_LDT + 1}]")
    a(f"global_load_ushort v{vLR}, v{vP}, s[{P_LRE}:{P_LRE + 1}]")
    tok_par = a.one(f"global_load_ushort v{vLI}, v{vP}, s[{P_LIM}:{P_LIM + 1}]")

    def dma_stage(g):
        tok = None
        a(f"s_add_u32 m0, s13, {28672 * g}")
        a(f"s_add_u32 s15, s14, {7168 * g}")
        for j in range(7):
            tok = a.one(f"buffer_load_dwordx4 v{vX}, s[52:55], s15 offen lds")
            if j < 6:
                a("s_add_u32 m0, m0, 1024")
                a("s_add_u32 s15, s15, 64")
        return tok

    BR, BI = 64, 120
    tok_st = [None] * 4
    tok_st[0] = dma_stage(0)
    tok_b = []
    for ks in range(14):
        a(f"global_load_dwordx4 v[{BR + 4 * ks}:{BR + 4 * ks + 3}], v{vB}, s[{P_BRE}:{P_BRE + 1}] offset:{64 * ks}")
        tok_b.append(a.one(f"global_load_dwordx4 v[{BI + 4 * ks}:{BI + 4 * ks + 3}], v{vB}, s[{P_BIM}:{P_BIM + 1}] offset:{64 * ks}"))
    for g in range(1, 4):
        tok_st[g] = dma_stage(g)
    srd(a, 56, P_WS, 512 * 448 * 16, BUP_OFF)
    srd(a, 60, P_WS, 128 * 448 * 8, PFX_OFF)
    srd(a, 64, P_WS, 16 * 448 * 8, E128_OFF)
    vA2, vTH, vMR, vMI, vM16R, vM16I, vM32R, vM32I, vKR, vKI = 21, 22, 23, 24, 25, 26, 27, 28, 29, 30
    T0, T1, T2, T3 = 5, 6, 7, 31
    stamp(a, 2)
    a.wait_vm(tok_par)
    stamp(a, 3)
    lam_base(a, vLD, vLR, vLI, vA2, vTH, T0)
    lam_pow(a, vA2, vTH, 1, vMR, vMI, T0)
    lam_pow(a, vA2, vTH, 16, vM16R, vM16I, T0)
    lam_pow(a, vA2, vTH, 32, vM32R, vM32I, T0)
    a(f"v_add_f32 v{T0}, -1.0, v{vMR}")
    a(f"v_mul_f32 v{T1}, v{vLR}, v{vLR}")
    a(f"v_fma_f32 v{T1}, v{vLI}, v{vLI}, v{T1}")
    a(f"v_rcp_f32 v{T1}, v{T1}")
    a(f"v_mul_f32 v{vKR}, v{T0}, v{vLR}")
    a(f"v_fma_f32 v{vKR}, -v{vMI}, v{vLI}, v{vKR}")
    a(f"v_mul_f32 v{vKI}, v{T0}, v{vLI}")
    a(f"v_fma_f32 v{vKI}, -v{vMI}, v{vLR}, -v{vKI}")
    a(f"v_add_f32 v{T1}, v{T1}, v{T1}")
    a(f"v_mul_f32 v{vKR}, v{vKR}, v{T1}")
    a(f"v_mul_f32 v{vKI}, v{vKI}, v{T1}")
    G = [(32, 33), (34, 35)]
    vS16R, vS16I = 36, 37
    a(f"v_mov_b32 v{G[0][0]}, 0")
    a(f"v_mov_b32 v{G[0][1]}, 0")
    ACC = [(40, 44), (48, 52)]
    PK = [56, 60]
    AR = 176
    NR = 8
    bt = (8, 9, 10, 11)

    def scan_ops(i):
        ops = []
        ar, ai = ACC[i % 2]
        pk = PK[i % 2]
        for r in range(4):
            cur, nxt = G[r % 2], G[(r + 1) % 2]
            br, bi_, t0, t1 = bt
            ops.append(f"v_mul_f32 v{t0}, v{vKI}, v{ai + r}")
            ops.append(f"v_mul_f32 v{t1}, v{vKI}, v{ar + r}")
            ops.append(f"v_fma_f32 v{br}, v{vKR}, v{ar + r}, -v{t0}")
            ops.append(f"v_fma_f32 v{bi_}, -v{vKR}, v{ai + r}, -v{t1}")
            ops.append(f"v_fma_f32 v{t0}, v{vMR}, v{cur[0]}, v{br}")
            ops.append(f"v_fma_f32 v{t1}, v{vMR}, v{cur[1]}, v{bi_}")
            ops.append(f"v_cvt_pk_bf16_f32 v{pk + r}, v{br}, v{bi_}")
            ops.append(f"v_fma_f32 v{nxt[0]}, -v{vMI}, v{cur[1]}, v{t0}")
            ops.append(f"v_fma_f32 v{nxt[1]}, v{vMI}, v{cur[0]}, v{t1}")
        ops.append(f"s_mov_b32 s15, {7168 * i}")
        ops.append(f"buffer_store_dwordx4 v[{pk}:{pk + 3}], v{vS}, s[56:59], s15 offen")
        if i == 3:
            ops.append(f"v_mov_b32 v{vS16R}, v{G[0][0]}")
            ops.append(f"v_mov_b32 v{vS16I}, v{G[0][1]}")
        return ops

    def rd(f):
        base, off = (vL0, f * 1024) if f < 56 else (vL1, (f - 56) * 1024)
        r = AR + 4 * (f % NR)
        return a.one(f"ds_read_b128 v[{r}:{r + 3}], v{base} offset:{off}")

    AHEAD = 6
    pending = []
    for g in range(4):
        a.wait_vm(tok_st[g])
        a("s_barrier")
        if g in (0, 3):
            stamp(a, 4 if g == 0 else 5)
        f0 = 28 * g
        toks = {}
        for f in range(f0, f0 + AHEAD):
            toks[f] = rd(f)
        for f in range(f0, f0 + 28):
            i, ks = divmod(f, 14)
            if ks == 0 and i > 0:
                assert not pending or i % 2 == 0 or True
            if f + AHEAD < f0 + 28:
                toks[f + AHEAD] = rd(f + AHEAD)
            if g == 0 and i == 0:
                a.wait_vm(tok_b[ks])
            a.wait_lg(toks[f])
            r = AR + 4 * (f % NR)
            ar, ai = ACC[i % 2]
            cr = "0" if ks == 0 else f"v[{ar}:{ar + 3}]"
            ci = "0" if ks == 0 else f"v[{ai}:{ai + 3}]"
            a(f"{MF16} v[{ar}:{ar + 3}], v[{r}:{r + 3}], v[{BR + 4 * ks}:{BR + 4 * ks + 3}], {cr}")
            if ks >= 2 and pending:
                a(pending.pop(0))
                if pending:
                    a(pending.pop(0))
            a(f"{MF16} v[{ai}:{ai + 3}], v[{r}:{r + 3}], v[{BI + 4 * ks}:{BI + 4 * ks + 3}], {ci}")
            if ks >= 2 and pending:
                a(pending.pop(0))
                if pending:
                    a(pending.pop(0))
            if ks == 13:
                assert not pending
                pending = scan_ops(i)
    for op in pending:
        a(op)
    SR, SI = G[0]
    vA = T2
    a("s_lshl_b32 s15, s3, 9")
    a("s_add_u32 s15, s15, 114688")
    a(f"v_lshl_add_u32 v{vA}, v1, 3, s15")
    a(f"ds_write_b64 v{vA}, v[{SR}:{SI}]")
    a(f"v_lshl_add_u32 v{vA}, v2, 3, s15")
    a("s_waitcnt lgkmcnt(0)")
    a(f"ds_read_b64 v[40:41], v{vA}")
    a(f"ds_read_b64 v[42:43], v{vA} offset:128")
    a(f"ds_read_b64 v[44:45], v{vA} offset:256")
    a("v_cmp_lt_u32 s[70:71], 0, v3")
    a("v_cmp_lt_u32 s[72:73], 1, v3")
    a("v_cmp_lt_u32 s[74:75], 2, v3")
    a("s_lshl_b32 s12, s8, 3")
    a("v_lshlrev_b32 v46, 1, v3")
    a("v_add_u32 v46, s12, v46")
    a("v_mul_u32_u24 v46, 448, v46")
    a(f"v_lshrrev_b32 v47, 1, v{vP}")
    a("v_add_lshl_u32 v46, v46, v47, 3")
    a("s_mul_i32 s12, s8, 448")
    a("v_add_lshl_u32 v47, v47, s12, 3")
    a("v_mov_b32 v48, 0x7fffff00")
    a("v_cndmask_b32 v47, v48, v47, s[74:75]")
    a("s_waitcnt lgkmcnt(0)")
    XR, XI = 50, 51
    a(f"v_cndmask_b32 v{XR}, 0, v40, s[70:71]")
    a(f"v_cndmask_b32 v{XI}, 0, v41, s[70:71]")
    for (sr, m) in ((42, 72), (44, 74)):
        cmad(a, 52, 53, vM32R, vM32I, XR, XI, sr, sr + 1, T0, T1)
        a(f"v_cndmask_b32 v{XR}, v{XR}, v52, s[{m}:{m + 1}]")
        a(f"v_cndmask_b32 v{XI}, v{XI}, v53, s[{m}:{m + 1}]")
    a(f"buffer_store_dwordx2 v[{XR}:{XI}], v46, s[60:63], 0 offen")
    cmad(a, 52, 53, vM16R, vM16I, XR, XI, vS16R, vS16I, T0, T1)
    cmad(a, 54, 55, vM32R, vM32I, XR, XI, SR, SI, T0, T1)
    a(f"buffer_store_dwordx2 v[52:53], v46, s[60:63], 0 offen offset:3584")
    a(f"buffer_store_dwordx2 v[54:55], v47, s[64:67], 0 offen")
    stamp(a, 6)
    stamp_flush(a, 0, 7)
    a("s_endpgm")


def role_q(a):
    a.label("K1_Q")
    a.vm = a.lg = 0
    code_prefetch(a, "K1_Q", 4096, 4, 8, 6, 256)
    a("s_sub_u32 s5, s5, 14")
    a("s_lshr_b32 s8, s5, 2")
    a("s_lshl_b32 s9, s4, 2")
    a("s_add_u32 s8, s8, s9")
    a("s_and_b32 s9, s5, 3")
    a("s_lshr_b32 s10, s3, 1")
    a("s_lshl_b32 s11, s8, 1")
    a("s_add_u32 s10, s10, s11")
    a("s_and_b32 s11, s3, 1")
    VQ = 12
    vXo, vT, vT2 = 19, 20, 21
    a("s_mul_i32 s12, s9, 224")
    a("s_lshl_b32 s13, s3, 6")
    a("s_movk_i32 s14, 4682")

    def vq(q):
        a(f"v_add_u32 v5, s13, v1")
        if q:
            a(f"v_add_u32 v5, {256 * q}, v5")
        a("v_mul_lo_u32 v6, v5, s14")
        a("v_lshrrev_b32 v6, 16, v6")
        a("v_mul_u32_u24 v7, 14, v6")
        a("v_sub_u32 v5, v5, v7")
        swap23(a, 7, 6, 22)
        a("v_mul_u32_u24 v7, 896, v7")
        a("v_lshl_add_u32 v7, v5, 4, v7")
        a(f"v_add_u32 v{VQ + q}, s12, v7")

    vq(0)
    a("s_lshl_b32 s15, s10, 5")
    a("v_add_u32 v5, s15, v2")
    a("v_mul_u32_u24 v5, 896, v5")
    a(f"v_lshl_add_u32 v{vXo}, v3, 4, v5")
    a(f"v_add_u32 v23, {16 * 896}, v{vXo}")
    a("s_waitcnt lgkmcnt(0)")
    stamp(a, 1)
    srd(a, 52, P_WQ, W_BYTES)
    XF = 64
    xf = lambda f, ks: XF + 56 * f + 4 * ks
    tok_st = []
    a("s_lshl_b32 m0, s3, 10")
    for st in range(4):
        a(f"s_mov_b32 s15, {128 * 896 * st}")
        for q in range(7 if st < 3 else 4):
            if st == 0 and q:
                vq(q)
            a(f"buffer_load_dwordx4 v{VQ + q}, s[52:55], s15 offen lds")
            a("s_add_u32 m0, m0, 4096")
        for ks in range(4 * st, min(14, 4 * st + 4)):
            a(f"global_load_dwordx4 v[{xf(0, ks)}:{xf(0, ks) + 3}], v{vXo}, s[{P_BX}:{P_BX + 1}] offset:{64 * ks}")
            tok = a.one(f"global_load_dwordx4 v[{xf(1, ks)}:{xf(1, ks) + 3}], v23, s[{P_BX}:{P_BX + 1}] offset:{64 * ks}")
        tok_st.append(tok)
    a("v_lshrrev_b32 v5, 1, v3")
    a("v_and_b32 v6, 1, v3")
    a("v_lshlrev_b32 v5, 4, v5")
    a("v_lshl_add_u32 v5, v6, 2, v5")
    a("v_lshrrev_b32 v6, 2, v2")
    a("v_add_u32 v5, v5, v6")
    a("v_mul_u32_u24 v5, 224, v5")
    a("v_and_b32 v6, 3, v2")
    a("v_lshl_add_u32 v5, v6, 3, v5")
    a("s_mul_i32 s15, s11, 112")
    a(f"v_add_u32 v{vT}, s15, v5")
    a(f"v_add_u32 v{vT2}, {7 * 7168}, v{vT}")
    srd(a, 56, P_WS, 0x200000, QF_OFF)
    a("s_lshl_b32 s12, s9, 2")
    a("s_lshl_b32 s13, s11, 1")
    a("s_add_u32 s12, s12, s13")
    a("s_lshl_b32 s12, s12, 6")
    a("s_add_u32 s12, s12, s10")
    a("s_lshl_b32 s12, s12, 11")
    a("v_lshlrev_b32 v5, 9, v3")
    a("v_lshl_add_u32 v5, v2, 4, v5")
    vSt = 22
    a(f"v_add_u32 v{vSt}, s12, v5")
    a("v_cmp_eq_u32 s[70:71], 3, v3")
    ACC = 24
    acc = lambda hh, nt, f: ACC + 16 * hh + 8 * nt + 4 * f
    WF = 176
    wf = lambda b, hh, nt: WF + 16 * b + 8 * hh + 4 * nt

    def rdw(ks):
        base = vT if ks < 7 else vT2
        tok = None
        for hh in range(2):
            for nt in range(2):
                for u in range(2):
                    off = (ks % 7) * 7168 + u * 1792 + hh * 56 + nt * 32
                    r = wf(ks % 2, hh, nt) + 2 * u
                    tok = a.one(f"ds_read_b64_tr_b16 v[{r}:{r + 1}], v{base} offset:{off}")
        return tok

    for st in range(4):
        if st == 0:
            stamp(a, 2)
            stamp(a, 3)
        a.wait_vm(tok_st[st])
        a("s_barrier")
        if st in (0, 3):
            stamp(a, 4 if st == 0 else 5)
        k0, k1 = 4 * st, min(14, 4 * st + 4)
        tok = rdw(k0)
        for ks in range(k0, k1):
            nxt = rdw(ks + 1) if ks + 1 < k1 else None
            a.wait_lg(tok)
            for hh in range(2):
                for nt in range(2):
                    for f in range(2):
                        d = acc(hh, nt, f)
                        c = "0" if ks == 0 else f"v[{d}:{d + 3}]"
                        w = wf(ks % 2, hh, nt)
                        a(f"{MF16} v[{d}:{d + 3}], v[{w}:{w + 3}], v[{xf(f, ks)}:{xf(f, ks) + 3}], {c}")
            tok = nxt
    n = 0
    for hh in range(2):
        for f in range(2):
            lo, hi = acc(hh, 0, f), acc(hh, 1, f)
            ss, t, pk = 5, 6, 56 + 4 * (n % 2)
            for r in range(4):
                a(f"v_cndmask_b32 v{hi + r}, v{hi + r}, 0, s[70:71]")
            a(f"v_mul_f32 v{ss}, v{lo}, v{lo}")
            for r in range(1, 4):
                a(f"v_fmac_f32 v{ss}, v{lo + r}, v{lo + r}")
            for r in range(4):
                a(f"v_fmac_f32 v{ss}, v{hi + r}, v{hi + r}")
            sum_over_G(a, ss, t)
            a(f"v_sqrt_f32 v{ss}, v{ss}")
            a(f"v_cvt_pk_bf16_f32 v{pk}, v{lo}, v{lo + 1}")
            a(f"v_mul_f32 v{ss}, {f32(1.02)}, v{ss}")
            a(f"v_cvt_pk_bf16_f32 v{pk + 1}, v{lo + 2}, v{lo + 3}")
            a(f"v_cndmask_b32 v{hi}, v{hi}, v{ss}, s[70:71]")
            a(f"v_cvt_pk_bf16_f32 v{pk + 3}, v{hi + 2}, v{hi + 3}")
            a(f"v_cvt_pk_bf16_f32 v{pk + 2}, v{hi}, v{hi + 1}")
            a(f"s_mov_b32 s15, {hh * 64 * 2048}")
            a(f"buffer_store_dwordx4 v[{pk}:{pk + 3}], v{vSt}, s[56:59], s15 offen offset:{256 * f}")
            n += 1
    stamp(a, 6)
    stamp_flush(a, 0, 7)
    a("s_endpgm")


def role_kv(a):
    a.label("K1_KV")
    a.vm = a.lg = 0
    code_prefetch(a, "K1_KV", 4096, 4, 8, 6, 256)
    a("s_sub_u32 s5, s5, 30")
    a("s_lshl_b32 s8, s4, 1")
    a("s_add_u32 s8, s8, s5")
    a("s_lshl_b32 s10, s8, 2")
    a("s_add_u32 s10, s10, s3")
    a("s_and_b32 s11, s3, 1")
    a("s_lshl_b32 s13, s11, 6")
    a("s_movk_i32 s14, 10923")
    VQ = 12
    vXo, vT, vT2 = 19, 20, 21
    for q in range(3):
        a(f"v_add_u32 v5, s13, v1")
        if q:
            a(f"v_add_u32 v5, {128 * q}, v5")
        a("v_mul_lo_u32 v6, v5, s14")
        a("v_lshrrev_b32 v6, 16, v6")
        a("v_mul_u32_u24 v7, 6, v6")
        a("v_sub_u32 v5, v5, v7")
        swap23(a, 7, 6, 22)
        a("v_mul_u32_u24 v7, 56, v7")
        a(f"v_lshl_add_u32 v{VQ + q}, v5, 4, v7")
    a("v_lshrrev_b32 v5, 3, v2")
    a("v_and_b32 v6, 7, v2")
    a("v_lshl_add_u32 v16, v5, 4, v6")
    a("s_lshl_b32 s15, s10, 5")
    a("v_add_u32 v5, s15, v16")
    a("v_mul_u32_u24 v5, 896, v5")
    a(f"v_lshl_add_u32 v{vXo}, v3, 4, v5")
    a(f"v_add_u32 v23, {8 * 896}, v{vXo}")
    a("s_waitcnt lgkmcnt(0)")
    stamp(a, 1)
    a("s_cmp_lt_u32 s3, 2")
    a(f"s_cselect_b32 s52, s{P_WK}, s{P_WV}")
    a(f"s_cselect_b32 s53, s{P_WK + 1}, s{P_WV + 1}")
    a(f"s_mov_b32 s54, {WKV_BYTES}")
    a("s_mov_b32 s55, 0x00020000")
    a("s_cselect_b32 s12, 0, 43008")
    a("s_lshl_b32 s13, s11, 10")
    a("s_add_u32 m0, s12, s13")
    XF = 64
    xf = lambda f, ks: XF + 56 * f + 4 * ks
    tok_st = []
    i = 0
    for st in range(4):
        for _ in range(6 if st < 3 else 3):
            if i % 3 == 0:
                a(f"s_mov_b32 s15, {64 * 56 * (i // 3)}")
            a(f"buffer_load_dwordx4 v{VQ + i % 3}, s[52:55], s15 offen lds")
            a("s_add_u32 m0, m0, 2048")
            i += 1
        for ks in range(4 * st, min(14, 4 * st + 4)):
            a(f"global_load_dwordx4 v[{xf(0, ks)}:{xf(0, ks) + 3}], v{vXo}, s[{P_BX}:{P_BX + 1}] offset:{64 * ks}")
            tok = a.one(f"global_load_dwordx4 v[{xf(1, ks)}:{xf(1, ks) + 3}], v23, s[{P_BX}:{P_BX + 1}] offset:{64 * ks}")
        tok_st.append(tok)
    a("v_lshrrev_b32 v5, 1, v3")
    a("v_and_b32 v6, 1, v3")
    a("v_lshlrev_b32 v5, 4, v5")
    a("v_lshl_add_u32 v5, v6, 2, v5")
    a("v_lshrrev_b32 v6, 2, v2")
    a("v_add_u32 v5, v5, v6")
    a("v_mul_u32_u24 v5, 96, v5")
    a("v_and_b32 v6, 3, v2")
    a(f"v_lshl_add_u32 v{vT}, v6, 3, v5")
    a(f"v_add_u32 v{vT2}, 43008, v{vT}")
    srd(a, 56, P_WS, 0x40000, KV_OFF)
    srd(a, 60, P_WS, 256, KMAX_OFF)
    a("s_lshl_b32 s12, s10, 12")
    a("v_lshlrev_b32 v5, 9, v3")
    a("v_lshl_add_u32 v17, v16, 4, v5")
    a("v_add_u32 v17, s12, v17")
    a("v_lshl_add_u32 v18, v2, 4, v5")
    a("v_add_u32 v18, s12, v18")
    a("v_cmp_eq_u32 s[70:71], 3, v3")
    a("v_cmp_le_u32 s[72:73], 12, v2")
    a("v_cmp_eq_u32 vcc, 12, v2")
    a("v_mov_b32 v5, 0x3f803f80")
    a("v_cndmask_b32 v22, 0, v5, vcc")
    ACC = 24
    acc = lambda hh, nt, f: ACC + 16 * hh + 8 * nt + 4 * f
    WF = 176
    wf = lambda b, hh, nt: WF + 16 * b + 8 * hh + 4 * nt

    def rdw(ks):
        tok = None
        for hh in range(2):
            for nt in range(2):
                for u in range(2):
                    off = ks * 3072 + u * 768 + nt * 32
                    r = wf(ks % 2, hh, nt) + 2 * u
                    tok = a.one(f"ds_read_b64_tr_b16 v[{r}:{r + 1}], v{vT2 if hh else vT} offset:{off}")
        return tok

    for st in range(4):
        if st == 0:
            stamp(a, 2)
            stamp(a, 3)
        a.wait_vm(tok_st[st])
        a("s_barrier")
        if st in (0, 3):
            stamp(a, 4 if st == 0 else 5)
        k0, k1 = 4 * st, min(14, 4 * st + 4)
        tok = rdw(k0)
        for ks in range(k0, k1):
            nxt = rdw(ks + 1) if ks + 1 < k1 else None
            a.wait_lg(tok)
            for hh in range(2):
                for nt in range(2):
                    for f in range(2):
                        d = acc(hh, nt, f)
                        c = "0" if ks == 0 else f"v[{d}:{d + 3}]"
                        w = f"v[{wf(ks % 2, hh, nt)}:{wf(ks % 2, hh, nt) + 3}]"
                        x = f"v[{xf(f, ks)}:{xf(f, ks) + 3}]"
                        if hh == 0:
                            a(f"{MF16} v[{d}:{d + 3}], {w}, {x}, {c}")
                        else:
                            a(f"{MF16} v[{d}:{d + 3}], {x}, {w}, {c}")
            tok = nxt
    a(f"s_mov_b32 s14, {f32(CSCALE)}")
    a("v_mov_b32 v12, 0x3f803f80")
    a("v_mov_b32 v13, 0x00003f80")
    for f in range(2):
        lo, hi = acc(0, 0, f), acc(0, 1, f)
        ss, t, pk = 8 + f, 6, 56 + 4 * f
        for r in range(4):
            a(f"v_mul_f32 v{lo + r}, s14, v{lo + r}")
        for r in range(4):
            a(f"v_mul_f32 v{hi + r}, s14, v{hi + r}")
        for r in range(4):
            a(f"v_cndmask_b32 v{hi + r}, v{hi + r}, 0, s[70:71]")
        a(f"v_mul_f32 v{ss}, v{lo}, v{lo}")
        for r in range(1, 4):
            a(f"v_fmac_f32 v{ss}, v{lo + r}, v{lo + r}")
        for r in range(4):
            a(f"v_fmac_f32 v{ss}, v{hi + r}, v{hi + r}")
        a(f"v_cvt_pk_bf16_f32 v{pk}, v{lo}, v{lo + 1}")
        a(f"v_cvt_pk_bf16_f32 v{pk + 1}, v{lo + 2}, v{lo + 3}")
        a(f"v_cvt_pk_bf16_f32 v{pk + 2}, v{hi}, v{hi + 1}")
        a(f"v_cvt_pk_bf16_f32 v{pk + 3}, v{hi + 2}, v{hi + 3}")
        a(f"v_cndmask_b32 v{pk + 2}, v{pk + 2}, v12, s[70:71]")
        a(f"v_cndmask_b32 v{pk + 3}, v{pk + 3}, v13, s[70:71]")
        a(f"buffer_store_dwordx4 v[{pk}:{pk + 3}], v17, s[56:59], 0 offen offset:{128 * f}")
        sum_over_G(a, ss, t)
    for nt in range(2):
        fa, fb = acc(1, nt, 0), acc(1, nt, 1)
        pk = 64 + 4 * nt
        a(f"v_cvt_pk_bf16_f32 v{pk}, v{fa}, v{fa + 1}")
        a(f"v_cvt_pk_bf16_f32 v{pk + 1}, v{fa + 2}, v{fa + 3}")
        a(f"v_cvt_pk_bf16_f32 v{pk + 2}, v{fb}, v{fb + 1}")
        a(f"v_cvt_pk_bf16_f32 v{pk + 3}, v{fb + 2}, v{fb + 3}")
        if nt == 1:
            for r in range(4):
                a(f"v_cndmask_b32 v{pk + r}, v{pk + r}, v22, s[72:73]")
        a(f"buffer_store_dwordx4 v[{pk}:{pk + 3}], v18, s[56:59], 0 offen offset:{2048 + 256 * nt}")
    a("v_max_f32 v8, v8, v9")
    for sh in (8, 4, 2, 1):
        a(f"v_mov_b32_dpp v9, v8 row_ror:{sh} row_mask:0xf bank_mask:0xf")
        a("v_max_f32 v8, v8, v9")
    a("s_lshl_b32 s12, s10, 2")
    a("v_mov_b32 v9, s12")
    a("v_cmp_eq_u32 vcc, 0, v1")
    a("v_mov_b32 v10, 0x7fffff00")
    a("v_cndmask_b32 v9, v10, v9, vcc")
    a("buffer_store_dword v8, v9, s[60:63], 0 offen")
    stamp(a, 6)
    stamp_flush(a, 0, 7)
    a("s_endpgm")
```

```python
from gen_common import *

K2_LDS = 49152 + 256
MF32 = "v_mfma_f32_32x32x16_bf16"


def rng(r, n):
    return f"v[{r}:{r + n - 1}]"


def gen_k2(a, a_only=False):
    a.raw(".globl k2_kernel\n.p2align 8\n.type k2_kernel,@function\nk2_kernel:")
    a.hist = []
    a("s_cmp_ge_u32 s2, 256")
    a("s_cbranch_scc1 K2_END")
    stamp(a, 0)
    load_args(a)
    a("v_lshrrev_b32 v5, 6, v0")
    a("v_and_b32 v1, 63, v0")
    a("v_readfirstlane_b32 s3, v5")
    a("v_and_b32 v4, 255, v0")
    a("v_lshlrev_b32 v4, 4, v4")
    a("v_lshlrev_b32 v2, 4, v1")
    a("s_cmp_ge_u32 s3, 4")
    a("s_cbranch_scc1 K2_SCAN")
    if a_only:
        a("s_branch K2_END")
    role_attn(a)
    role_scan(a)
    a.label("K2_END")
    a("s_endpgm")


def role_attn(a):
    a.label("K2_ATT")
    a.vm = a.lg = 0
    code_prefetch(a, "K2_ATT", 8192, 4, 8, 6, 256)
    QR = lambda i, h: 16 + 8 * i + 4 * h
    O = lambda i: 48 + 16 * i
    S = lambda b: 112 + 16 * b
    P = 144
    KB = lambda c, h: 152 + 16 * c + 4 * h
    VB = lambda c, h: 152 + 16 * c + 8 + 4 * h
    for i in range(4):
        a(f"s_add_u32 s{8 + i}, s3, {i + 1}")
        a(f"s_and_b32 s{8 + i}, s{8 + i}, 3")
    a("s_lshl_b32 s12, s2, 13")
    a("v_lshlrev_b32 v3, 2, v1")
    a("s_lshl_b32 s13, s3, 16")
    a("s_waitcnt lgkmcnt(0)")
    stamp(a, 1)
    srd(a, 52, P_WS, 0x200000, QF_OFF)
    a(f"s_add_u32 s56, s{P_WS}, s13")
    a(f"s_addc_u32 s57, s{P_WS + 1}, 0")
    a(f"s_add_u32 s56, s56, {KV_OFF}")
    a(f"s_addc_u32 s57, s57, 0")
    a("s_mov_b32 s58, 65536")
    a("s_mov_b32 s59, 0x00020000")
    srd(a, 60, P_WS, 256, KMAX_OFF)
    tok_km = a.one("buffer_load_dword v12, v3, s[60:63], 0 offen")
    for i in range(4):
        a(f"s_lshl_b32 s14, s{8 + i}, 11")
        a("s_add_u32 s14, s14, s12")
        a(f"buffer_load_dwordx4 {rng(QR(i, 0), 4)}, v2, s[52:55], s14 offen")
        tok_q = a.one(f"buffer_load_dwordx4 {rng(QR(i, 1), 4)}, v2, s[52:55], s14 offen offset:1024")

    def ldk(c):
        a(f"buffer_load_dwordx4 {rng(KB(c, 0), 4)}, v2, s[56:59], s15 offen")
        return a.one(f"buffer_load_dwordx4 {rng(KB(c, 1), 4)}, v2, s[56:59], s15 offen offset:1024")

    def ldv(c):
        a(f"buffer_load_dwordx4 {rng(VB(c, 0), 4)}, v2, s[56:59], s15 offen offset:2048")
        return a.one(f"buffer_load_dwordx4 {rng(VB(c, 1), 4)}, v2, s[56:59], s15 offen offset:3072")

    a("s_mov_b32 s15, 0")
    tok_kv0 = None
    for c in range(4):
        ldk(c)
        if c < 3:
            t = ldv(c)
            if c == 0:
                tok_kv0 = t
            a("s_add_u32 s15, s15, 4096")
    for r in range(64):
        a(f"v_mov_b32 v{O(0) + r}, 0")
    for r in range(4):
        a(f"v_mov_b32 v{VB(3, 1) + r}, 0")
        a(f"v_mov_b32 v{P + 4 + r}, 0")
    srd(a, 64, P_WS, 0x200000, OF_OFF)
    a("v_cmp_le_u32 s[70:71], 32, v1")
    stamp(a, 2)
    a.wait_vm(tok_km)
    stamp(a, 3)
    for sh in (8, 4, 2, 1):
        a(f"v_mov_b32_dpp v13, v12 row_ror:{sh} row_mask:0xf bank_mask:0xf")
        a("v_max_f32 v12, v12, v13")
    a("v_mov_b32 v13, v12")
    a("v_permlane16_swap_b32 v12, v13")
    a("v_max_f32 v12, v12, v13")
    a("v_mov_b32 v13, v12")
    a("v_permlane32_swap_b32 v12, v13")
    a("v_max_f32 v12, v12, v13")
    a("v_sqrt_f32 v12, v12")
    a(f"v_mul_f32 v12, {f32(-1.01)}, v12")
    a.wait_vm(tok_q)
    for i in range(4):
        q = QR(i, 1) + 2
        a(f"v_lshlrev_b32 v13, 16, v{q}")
        a("v_mul_f32 v13, v13, v12")
        a("v_cvt_pk_bf16_f32 v13, v13, 0")
        a(f"v_cndmask_b32 v{q}, v{q}, v13, s[70:71]")
    a.wait_vm(tok_kv0)
    a(f"{MF32} {rng(S(0), 16)}, {rng(KB(0, 0), 4)}, {rng(QR(0, 0), 4)}, 0")
    a(f"{MF32} {rng(S(0), 16)}, {rng(KB(0, 1), 4)}, {rng(QR(0, 1), 4)}, {rng(S(0), 16)}")
    a("s_mov_b32 s14, 4")
    stamp(a, 4)
    stamp(a, 12, True)
    a.fence()
    a.raw(".p2align 6")
    a.label("K2_LOOP", flush=False)

    def ex(cur, k0, pk):
        for k in range(k0, k0 + 4):
            a(f"v_exp_f32 v{cur + k}, v{cur + k}")
        a(f"v_cvt_pk_bf16_f32 v{P + pk}, v{cur + k0}, v{cur + k0 + 1}")
        a(f"v_cvt_pk_bf16_f32 v{P + pk + 1}, v{cur + k0 + 2}, v{cur + k0 + 3}")

    def body():
        for ls in range(16):
            c, i = divmod(ls, 4)
            cur, nxt = S(ls % 2), S((ls + 1) % 2)
            cn, inx = divmod((ls + 1) % 16, 4)
            cp, ip = divmod((ls - 1) % 16, 4)
            if i == 3:
                a("s_waitcnt vmcnt(10)")
            a(f"{MF32} {rng(nxt, 16)}, {rng(KB(cn, 0), 4)}, {rng(QR(inx, 0), 4)}, 0")
            ex(cur, 0, 0)
            a(f"{MF32} {rng(nxt, 16)}, {rng(KB(cn, 1), 4)}, {rng(QR(inx, 1), 4)}, {rng(nxt, 16)}")
            if i == 2:
                ldk(c)
            ex(cur, 4, 2)
            a(f"{MF32} {rng(O(ip), 16)}, {rng(VB(cp, 1), 4)}, {rng(P + 4, 4)}, {rng(O(ip), 16)}")
            if i == 0:
                ldv(cp)
                a("s_add_u32 s15, s15, 4096")
            ex(cur, 8, 4)
            a(f"{MF32} {rng(O(i), 16)}, {rng(VB(c, 0), 4)}, {rng(P, 4)}, {rng(O(i), 16)}")
            ex(cur, 12, 6)

    n0 = a.nops
    body()
    assert a.nops == n0, "unexpected nops in attention loop"
    save = (list(a.out), list(a.hist), a.vm, a.lg)
    body()
    assert a.nops == n0, "unexpected nops across the attention back edge"
    a.out, a.hist, a.vm, a.lg = save
    a("s_sub_u32 s14, s14, 1")
    a("s_cmp_lg_u32 s14, 0")
    a("s_cbranch_scc1 K2_LOOP")
    a(f"{MF32} {rng(O(3), 16)}, {rng(VB(3, 1), 4)}, {rng(P + 4, 4)}, {rng(O(3), 16)}")
    stamp(a, 5)
    stamp(a, 13, True)
    for i in range(3):
        a(f"s_mul_i32 s14, s{8 + i}, 12288")
        a(f"v_add_u32 v13, s14, v2")
        for qd in range(4):
            a(f"ds_write_b128 v13, {rng(O(i) + 4 * qd, 4)} offset:{i * 4096 + qd * 1024}")
    a("s_mul_i32 s14, s3, 12288")
    a("v_add_u32 v13, s14, v2")
    a("s_waitcnt lgkmcnt(0)")
    a("s_barrier")
    toks = []
    for i in range(3):
        for qd in range(4):
            toks.append(a.one(f"ds_read_b128 {rng(O(i) + 4 * qd, 4)}, v13 offset:{i * 4096 + qd * 1024}"))
    a("s_lshl_b32 s14, s2, 2")
    a("s_add_u32 s14, s14, s3")
    a("s_and_b32 s12, s14, 63")
    a("s_lshr_b32 s14, s14, 6")
    a("s_lshl_b32 s12, s12, 4")
    a("s_add_u32 s14, s14, s12")
    a("s_lshl_b32 s14, s14, 11")
    F = O(3)
    for i in range(3):
        for qd in range(4):
            a.wait_lg(toks[4 * i + qd])
            for r in range(0, 4, 2):
                x, y = F + 4 * qd + r, O(i) + 4 * qd + r
                a(f"v_pk_add_f32 v[{x}:{x + 1}], v[{x}:{x + 1}], v[{y}:{y + 1}]")
    a(f"v_mov_b32 v12, v{F + 12}")
    a(f"v_mov_b32 v13, v{F + 12}")
    a("v_permlane32_swap_b32 v12, v13")
    a("v_rcp_f32 v13, v13")
    for r in range(16):
        a(f"v_mul_f32 v{F + r}, v{F + r}, v13")
    for r in range(8):
        a(f"v_cvt_pk_bf16_f32 v{P + r}, v{F + 2 * r}, v{F + 2 * r + 1}")
    a(f"v_cndmask_b32 v{P + 6}, v{P + 6}, 0, s[70:71]")
    a(f"v_cndmask_b32 v{P + 7}, v{P + 7}, 0, s[70:71]")
    a(f"buffer_store_dwordx4 {rng(P, 4)}, v2, s[64:67], s14 offen")
    a(f"buffer_store_dwordx4 {rng(P + 4, 4)}, v2, s[64:67], s14 offen offset:1024")
    stamp(a, 6)
    stamp_flush(a, 1, 7)
    a("s_endpgm")


def role_scan(a):
    a.label("K2_SCAN")
    a.vm = a.lg = 0
    a("s_lshl_b32 s8, s2, 2")
    a("s_add_u32 s8, s8, s3")
    a("s_sub_u32 s8, s8, 4")
    a("s_cmp_ge_u32 s8, 896")
    a("s_cbranch_scc1 K2_END")
    if os.environ.get("NOSCAN"):
        a("s_branch K2_END")
    a("s_setprio 3")
    code_prefetch(a, "K2_SCAN", 4096, 4, 8, 6, 256)
    a("s_mul_i32 s9, s8, 9363")
    a("s_lshr_b32 s9, s9, 16")
    a("s_mul_i32 s10, s9, 7")
    a("s_sub_u32 s10, s8, s10")
    a("s_lshl_b32 s10, s10, 6")
    a("v_add_u32 v3, s10, v1")
    a("v_lshlrev_b32 v12, 1, v3")
    a("v_lshlrev_b32 v13, 3, v3")
    a("v_lshlrev_b32 v14, 4, v3")
    a("s_lshr_b32 s11, s9, 3")
    a("s_and_b32 s12, s9, 7")
    a("s_lshl_b32 s12, s12, 4")
    a("s_waitcnt lgkmcnt(0)")
    stamp(a, 1)
    vLD, vLR, vLI = 16, 17, 18
    a(f"global_load_ushort v{vLD}, v12, s[{P_LDT}:{P_LDT + 1}]")
    a(f"global_load_ushort v{vLR}, v12, s[{P_LRE}:{P_LRE + 1}]")
    tok_par = a.one(f"global_load_ushort v{vLI}, v12, s[{P_LIM}:{P_LIM + 1}]")
    srd(a, 52, P_WS, 16 * 448 * 8, E128_OFF)
    srd(a, 56, P_WS, 128 * 448 * 8, PFX_OFF)
    srd(a, 60, P_WS, 512 * 448 * 16, BUP_OFF)
    srd(a, 64, P_WS, 2048 * 1792, H_OFF)
    E = 32
    tok_e = []
    for j in range(15):
        a(f"s_mov_b32 s13, {3584 * j}")
        tok_e.append(a.one(f"buffer_load_dwordx2 v[{E + 2 * j}:{E + 2 * j + 1}], v13, s[52:55], s13 offen"))
    a("s_mul_i32 s13, s9, 3584")
    tok_p = a.one("buffer_load_dwordx2 v[62:63], v13, s[56:59], s13 offen")
    BU = 64
    a("s_mul_i32 s13, s9, 28672")
    tok_bu = []
    for q in range(4):
        tok_bu.append(a.one(f"buffer_load_dwordx4 {rng(BU + 4 * q, 4)}, v14, s[60:63], s13 offen"))
        if q < 3:
            a("s_add_u32 s13, s13, 7168")
    vA2, vTH, MR, MI, M128R, M128I, MJR, MJI, GR, GI, T0, T1, T2, T3 = 19, 20, 21, 22, 23, 24, 25, 26, 27, 28, 29, 30, 31, 15
    stamp(a, 2)
    a.wait_vm(tok_par)
    stamp(a, 3)
    lam_base(a, vLD, vLR, vLI, vA2, vTH, T0)
    lam_pow(a, vA2, vTH, 1, MR, MI, T0)
    lam_pow(a, vA2, vTH, 128, M128R, M128I, T0)
    a(f"v_cvt_f32_u32 v{T1}, s12")
    lam_pow(a, vA2, vTH, f"v{T1}", MJR, MJI, T0)
    a(f"v_mov_b32 v{GR}, 0")
    a(f"v_mov_b32 v{GI}, 0")
    a.wait_vm(tok_p)
    stamp(a, 4)
    for j in range(15):
        a(f"s_cmp_le_u32 s11, {j}")
        a("s_cbranch_scc1 K2_SC_H")
        cmad(a, GR, GI, M128R, M128I, GR, GI, E + 2 * j, E + 2 * j + 1, T0, T1)
    a.label("K2_SC_H", flush=False)
    cmad(a, GR, GI, MJR, MJI, GR, GI, 62, 63, T0, T1)
    stamp(a, 5)
    a("s_mul_i32 s13, s9, 28672")
    PKR = [80, 81, 82, 83]
    for t in range(16):
        if t % 4 == 0:
            a.wait_vm(tok_bu[t // 4])
        w = BU + t
        a(f"v_lshlrev_b32 v{T2}, 16, v{w}")
        a(f"v_and_b32 v{T3}, 0xffff0000, v{w}")
        cmad(a, GR, GI, MR, MI, GR, GI, T2, T3, T0, T1)
        pk = PKR[t % 4]
        a(f"v_cvt_pk_bf16_f32 v{pk}, v{GR}, v{GI}")
        o = (t % 2) * 1792
        a(f"buffer_store_short v{pk}, v12, s[64:67], s13 offen offset:{o}")
        a(f"buffer_store_short_d16_hi v{pk}, v12, s[64:67], s13 offen offset:{o + 896}")
        if t % 2 == 1 and t < 15:
            a("s_add_u32 s13, s13, 3584")
    stamp(a, 6)
    stamp_flush(a, 1, 7)
    a("s_endpgm")
```

```python
from gen_common import *

K3_LDS = 4 * 17408
MF16 = "v_mfma_f32_16x16x32_bf16"
MF32 = "v_mfma_f32_32x32x16_bf16"


def rng(r, n):
    return f"v[{r}:{r + n - 1}]"


def gen_k3(a, a_only=False):
    a.raw(".globl k3_kernel\n.p2align 8\n.type k3_kernel,@function\nk3_kernel:")
    a.hist = []
    a(f"s_cmp_ge_u32 s2, {224 if a_only else 448}")
    a("s_cbranch_scc1 K3_END")
    stamp(a, 0)
    load_args(a)
    a("v_lshrrev_b32 v5, 6, v0")
    a("v_and_b32 v1, 63, v0")
    a("v_readfirstlane_b32 s3, v5")
    a("v_and_b32 v2, 15, v0")
    a("v_bfe_u32 v3, v0, 4, 2")
    a("v_lshlrev_b32 v4, 4, v0")
    a("s_cmp_ge_u32 s2, 224")
    a("s_cselect_b32 s8, 224, 0")
    a("s_sub_u32 s8, s2, s8")
    a("s_and_b32 s4, s8, 7")
    a("s_lshr_b32 s5, s8, 3")
    a("s_mul_i32 s8, s5, 9363")
    a("s_lshr_b32 s8, s8, 16")
    a("s_mul_i32 s9, s8, 7")
    a("s_sub_u32 s9, s5, s9")
    a("s_lshl_b32 s4, s4, 2")
    a("s_add_u32 s8, s8, s4")
    a("s_lshl_b32 s10, s8, 6")
    a("s_lshl_b32 s11, s9, 6")
    a("s_mul_i32 s12, s3, 17408")
    a("s_cmp_ge_u32 s2, 224")
    a("s_cbranch_scc1 K3_OP")
    role_a3(a)
    role_op(a)
    a.label("K3_END")
    a("s_endpgm")


def final_addr(a, vR, vRow):
    a("s_lshl_b32 s13, s3, 4")
    a(f"v_add_u32 v5, s13, v3")
    a(f"v_mul_u32_u24 v{vR}, 272, v5")
    a(f"v_lshl_add_u32 v{vR}, v2, 4, v{vR}")
    a(f"v_add_u32 v{vRow}, s10, v5")


def final_reduce(a, vR, R):
    toks = []
    for q in range(4):
        for src in range(4):
            toks.append(a.one(f"ds_read_b128 {rng(R + 16 * q + 4 * src, 4)}, v{vR} offset:{src * 17408 + q * 1088}"))
    return toks


def role_a3(a):
    a.label("K3_A3")
    a.vm = a.lg = 0
    code_prefetch(a, "K3_A3", 4096, 4, 8, 6, 256)
    vH, vC, vW, vR, vRow, vX, vO = 12, 13, 14, 15, 6, 7, 16
    a("v_add_u32 v5, s10, v2")
    a("v_mul_u32_u24 v5, 1792, v5")
    a("s_mul_i32 s13, s3, 448")
    a("v_lshl_add_u32 v5, v3, 4, v5")
    a(f"v_add_u32 v{vH}, s13, v5")
    a("v_add_u32 v5, s11, v2")
    a("v_mul_u32_u24 v5, 896, v5")
    a("s_and_b32 s13, s3, 1")
    a("s_mul_i32 s13, s13, 448")
    a("v_lshl_add_u32 v5, v3, 4, v5")
    a(f"v_add_u32 v{vC}, s13, v5")
    for i in range(1, 4):
        a(f"s_mov_b32 s{72 + i}, {28672 * i}")
        a(f"s_mov_b32 s{76 + i}, {14336 * i}")
    a("s_waitcnt lgkmcnt(0)")
    stamp(a, 1)
    srd(a, 52, P_WS, 2048 * 1792, H_OFF)
    a("s_cmp_lt_u32 s3, 2")
    a(f"s_cselect_b32 s56, s{P_CRE}, s{P_CIM}")
    a(f"s_cselect_b32 s57, s{P_CRE + 1}, s{P_CIM + 1}")
    a(f"s_mov_b32 s58, {W_BYTES}")
    a("s_mov_b32 s59, 0x00020000")
    ACC = 24
    acc = lambda dt, tt: ACC + 16 * dt + 4 * tt
    BUF = 88
    NB = 5
    cf = lambda ks, dt: BUF + 32 * (ks % NB) + 4 * dt
    hf = lambda ks, tt: BUF + 32 * (ks % NB) + 16 + 4 * tt

    def ld(ks):
        tok = None
        for i in range(4):
            so = "0" if i == 0 else f"s{76 + i}"
            a(f"buffer_load_dwordx4 {rng(cf(ks, i), 4)}, v{vC}, s[56:59], {so} offen offset:{64 * ks}")
            so = "0" if i == 0 else f"s{72 + i}"
            tok = a.one(f"buffer_load_dwordx4 {rng(hf(ks, i), 4)}, v{vH}, s[52:55], {so} offen offset:{64 * ks}")
        return tok

    toks = {}
    for ks in range(NB):
        toks[ks] = ld(ks)
    final_addr(a, vR, vRow)
    a(f"v_mul_u32_u24 v{vX}, 896, v{vRow}")
    a("v_lshlrev_b32 v5, 2, v2")
    a("v_add_u32 v5, s11, v5")
    a(f"v_lshl_add_u32 v{vX}, v5, 1, v{vX}")
    a(f"v_mul_u32_u24 v{vO}, 3584, v{vRow}")
    a(f"v_lshl_add_u32 v{vO}, v5, 2, v{vO}")
    a("v_lshlrev_b32 v5, 1, v5")
    srd(a, 60, P_AX, X_BYTES)
    srd(a, 64, P_OUT, OUT_BYTES)
    a(f"global_load_dwordx2 v[18:19], v5, s[{P_DSK}:{P_DSK + 1}]")
    for q in range(4):
        a(f"s_mov_b32 s13, {q * 4 * 896}")
        a(f"buffer_load_dwordx2 v[{248 + 2 * q}:{249 + 2 * q}], v{vX}, s[60:63], s13 offen")
    a("v_mul_u32_u24 v5, 272, v2")
    a("v_lshl_add_u32 v5, v3, 4, v5")
    a(f"v_add_u32 v{vW}, s12, v5")
    for ks in range(7):
        if ks == 0:
            stamp(a, 2)
        a.wait_vm(toks[ks])
        if ks in (0, 6):
            stamp(a, 3 if ks == 0 else 4)
        for dt in range(4):
            for tt in range(4):
                d = acc(dt, tt)
                c = "0" if ks == 0 else rng(d, 4)
                a(f"{MF16} {rng(d, 4)}, {rng(cf(ks, dt), 4)}, {rng(hf(ks, tt), 4)}, {c}")
        if ks + NB < 7:
            toks[ks + NB] = ld(ks + NB)
    for dt in range(4):
        for tt in range(4):
            a(f"ds_write_b128 v{vW}, {rng(acc(dt, tt), 4)} offset:{tt * 4352 + dt * 64}")
    a("v_lshlrev_b32 v20, 16, v18")
    a("v_and_b32 v21, 0xffff0000, v18")
    a("v_lshlrev_b32 v22, 16, v19")
    a("v_and_b32 v23, 0xffff0000, v19")
    a("s_waitcnt lgkmcnt(0)")
    a("s_barrier")
    stamp(a, 5)
    R = BUF
    toks = final_reduce(a, vR, R)
    for q in range(4):
        b = R + 16 * q
        x = 248 + 2 * q
        a(f"v_lshlrev_b32 v8, 16, v{x}")
        a(f"v_and_b32 v9, 0xffff0000, v{x}")
        a(f"v_lshlrev_b32 v10, 16, v{x + 1}")
        a(f"v_and_b32 v11, 0xffff0000, v{x + 1}")
        a.wait_lg(toks[4 * q + 3])
        for r in range(0, 4, 2):
            a(f"v_pk_add_f32 v[{b + r}:{b + r + 1}], v[{b + r}:{b + r + 1}], v[{b + 4 + r}:{b + 5 + r}]")
            a(f"v_pk_add_f32 v[{b + 8 + r}:{b + 9 + r}], v[{b + 8 + r}:{b + 9 + r}], v[{b + 12 + r}:{b + 13 + r}]")
        for r in range(0, 4, 2):
            a(f"v_pk_fma_f32 v[{b + r}:{b + r + 1}], v[{8 + r}:{9 + r}], v[{20 + r}:{21 + r}], v[{b + r}:{b + r + 1}]")
        for r in range(0, 4, 2):
            a(f"v_pk_add_f32 v[{b + r}:{b + r + 1}], v[{b + r}:{b + r + 1}], v[{b + 8 + r}:{b + 9 + r}]")
        a(f"s_mov_b32 s13, {q * 4 * 3584}")
        a(f"buffer_store_dwordx4 {rng(b, 4)}, v{vO}, s[64:67], s13 offen")
    stamp(a, 6)
    stamp_flush(a, 2, 7)
    a("s_endpgm")


def role_op(a):
    a.label("K3_OP")
    a.vm = a.lg = 0
    code_prefetch(a, "K3_OP", 4096, 4, 8, 6, 256)
    vD, vL, vW, vR, vRow, vT0, vT1, vO = 12, 13, 14, 15, 6, 17, 18, 16
    a("v_lshrrev_b32 v5, 3, v1")
    a("s_mul_i32 s13, s3, 112")
    a("v_add_u32 v5, s13, v5")
    a("v_mul_u32_u24 v5, 896, v5")
    a("v_and_b32 v7, 1, v3")
    a("v_lshlrev_b32 v7, 2, v7")
    a("v_and_b32 v19, 7, v1")
    a("v_xor_b32 v7, v7, v19")
    a("v_lshl_add_u32 v5, v7, 4, v5")
    a("s_lshl_b32 s13, s11, 1")
    a(f"v_add_u32 v{vD}, s13, v5")
    a(f"v_lshlrev_b32 v{vL}, 4, v1")
    a("s_lshl_b32 s14, s8, 16")
    a("s_lshl_b32 s13, s3, 13")
    a("s_add_u32 s14, s14, s13")
    a("s_waitcnt lgkmcnt(0)")
    stamp(a, 1)
    srd(a, 52, P_WO, W_BYTES)
    srd(a, 56, P_WS, 0x200000, OF_OFF)
    OFR = 88
    of = lambda pt, ks: OFR + 32 * pt + 4 * ks
    a("s_mov_b32 m0, s12")
    a("s_mov_b32 s15, 0")
    toks = []
    nd = 0
    for hl in range(4):
        while nd * 8 < 28 * hl + 32:
            a(f"buffer_load_dwordx4 v{vD}, s[52:55], s15 offen lds")
            a("s_add_u32 m0, m0, 1024")
            a(f"s_add_u32 s15, s15, {8 * 896}")
            nd += 1
        for pt in range(2):
            a(f"s_add_u32 s13, s14, {pt * 32768 + hl * 2048}")
            a(f"buffer_load_dwordx4 {rng(of(pt, 2 * hl), 4)}, v{vL}, s[56:59], s13 offen")
            tok = a.one(f"buffer_load_dwordx4 {rng(of(pt, 2 * hl + 1), 4)}, v{vL}, s[56:59], s13 offen offset:1024")
        toks.append(tok)
    assert nd == 15
    final_addr(a, vR, vRow)
    a("v_lshlrev_b32 v5, 2, v2")
    a("v_add_u32 v5, s11, v5")
    a(f"v_mul_u32_u24 v{vO}, 3584, v{vRow}")
    a(f"v_lshl_add_u32 v{vO}, v5, 2, v{vO}")
    srd(a, 64, P_OUT, OUT_BYTES)
    a("v_lshrrev_b32 v5, 1, v3")
    a("v_lshrrev_b32 v7, 2, v2")
    a("v_lshl_add_u32 v5, v5, 2, v7")
    a("v_lshlrev_b32 v5, 7, v5")
    a("v_lshrrev_b32 v7, 3, v2")
    a("v_lshl_add_u32 v5, v7, 6, v5")
    a("v_and_b32 v7, 1, v3")
    a("v_lshl_add_u32 v5, v7, 5, v5")
    a("v_and_b32 v7, 3, v2")
    a("v_lshl_add_u32 v5, v7, 3, v5")
    a("v_xor_b32 v7, 64, v5")
    a(f"v_add_u32 v{vT0}, s12, v5")
    a(f"v_add_u32 v{vT1}, s12, v7")
    a("v_and_b32 v5, 31, v1")
    a("v_mul_u32_u24 v5, 272, v5")
    a("v_lshrrev_b32 v7, 5, v1")
    a("v_lshl_add_u32 v5, v7, 4, v5")
    a(f"v_add_u32 v{vW}, s12, v5")
    ACC = 24
    acc = lambda nt, pt: ACC + 32 * nt + 16 * pt
    WF = 152
    wf = lambda hl, half, nt: WF + 16 * (hl % 2) + 8 * half + 4 * nt
    for hl in range(4):
        if hl == 0:
            stamp(a, 2)
        a.wait_vm(toks[hl])
        if hl in (0, 3):
            stamp(a, 3 if hl == 0 else 4)
        tk = []
        for half in range(2):
            for nt in range(2):
                for u in range(2):
                    r = wf(hl, half, nt) + 2 * u
                    t = a.one(f"ds_read_b64_tr_b16 v[{r}:{r + 1}], v{vT1 if nt else vT0} offset:{(28 * hl + 16 * half + 8 * u) * 128}")
            tk.append(t)
        for half in range(2):
            a.wait_lg(tk[half])
            for nt in range(2):
                for pt in range(2):
                    d = acc(nt, pt)
                    c = "0" if hl == 0 and half == 0 else rng(d, 16)
                    a(f"{MF32} {rng(d, 16)}, {rng(wf(hl, half, nt), 4)}, {rng(of(pt, 2 * hl + half), 4)}, {c}")
    for nt in range(2):
        for pt in range(2):
            for q in range(4):
                a(f"ds_write_b128 v{vW}, {rng(acc(nt, pt) + 4 * q, 4)} offset:{pt * 8704 + nt * 128 + q * 32}")
    a("s_waitcnt lgkmcnt(0)")
    a("s_barrier")
    stamp(a, 5)
    R = OFR
    toks = final_reduce(a, vR, R)
    for q in range(4):
        b = R + 16 * q
        a.wait_lg(toks[4 * q + 3])
        for r in range(0, 4, 2):
            a(f"v_pk_add_f32 v[{b + r}:{b + r + 1}], v[{b + r}:{b + r + 1}], v[{b + 4 + r}:{b + 5 + r}]")
            a(f"v_pk_add_f32 v[{b + 8 + r}:{b + 9 + r}], v[{b + 8 + r}:{b + 9 + r}], v[{b + 12 + r}:{b + 13 + r}]")
        for r in range(0, 4, 2):
            a(f"v_pk_add_f32 v[{b + r}:{b + r + 1}], v[{b + r}:{b + r + 1}], v[{b + 8 + r}:{b + 9 + r}]")
        a(f"s_mov_b32 s13, {q * 4 * 3584}")
        a(f"buffer_store_dwordx4 {rng(b, 4)}, v{vO}, s[64:67], s13 offen offset:1792")
    stamp(a, 6)
    stamp_flush(a, 2, 7)
    a("s_endpgm")
```

```python
import sys
import gen_common
from gen_common import *
from gen_k1 import gen_k1, K1_LDS
from gen_k2 import gen_k2, K2_LDS
from gen_k3 import gen_k3, K3_LDS
from gen_f import gen_f, F_LDS

NAME = "concat_heads__ssm_conv_s5__grouped_kv_mqa__prompt"
WITH_A = os.environ.get("WITH_A", "0") == "1"
ref = open(f"cdna_kernels/{NAME}.s.ref").read().split("\n")
head = [l for l in ref if l.startswith(";") and "@launch" not in l and "Override" not in l and "grid=ceil" not in l]
a = Asm()
a.raw("\n".join(head))
a.raw(f"; @launch kernel=f_kernel grid=(256,1,1) block=(512,1,1) lds={F_LDS}")
if not WITH_A:
    a.raw(f"; @launch kernel=k1_kernel grid=(256,1,1) block=(256,1,1) lds={K1_LDS}")
    a.raw(f"; @launch kernel=k2_kernel grid=(256,1,1) block=(512,1,1) lds={K2_LDS}")
    a.raw(f"; @launch kernel=k3_kernel grid=(224,1,1) block=(256,1,1) lds={K3_LDS}")
a.raw('.amdgcn_target "amdgcn-amd-amdhsa--gfx950"\n.text')
gen_f(a, "f_kernel", WITH_A)
if not WITH_A:
    gen_common.STAMPS = False
    a.hist = []
    gen_k1(a, True)
    gen_k2(a, True)
    gen_k3(a, True)
a.raw(".p2align 8\n.fill 4096, 4, 0xbf800000")
a.raw('.section .rodata,"a"')
a.raw(kernel_desc("f_kernel", 256))
if not WITH_A:
    a.raw(kernel_desc("k1_kernel", 208))
    a.raw(kernel_desc("k2_kernel", 216))
    a.raw(kernel_desc("k3_kernel", 256))
out = sys.argv[1] if len(sys.argv) > 1 else f"cdna_kernels/{NAME}.s"
open(out, "w").write(a.text())
print("wrote", out, "nops", a.nops)
```

```python
import sys
from gen_common import *
src, outp, idx, wv, K = sys.argv[1], sys.argv[2], int(sys.argv[3]), int(sys.argv[4]), int(sys.argv[5])
use_min = len(sys.argv) > 6
s = open(src).read()
code = f"""
.globl d_kernel
.p2align 8
.type d_kernel,@function
d_kernel:
    s_cmp_ge_u32 s2, 1
    s_cbranch_scc1 D_END
    s_load_dwordx2 s[4:5], s[0:1], 128
    v_mov_b32 v1, 0
    v_mov_b32 v2, -1
    v_mov_b32 v3, {'-1' if use_min else '0'}
    ds_write_b64 v1, v[2:3]
    s_waitcnt lgkmcnt(0)
    s_add_u32 s8, s4, {TS_OFF}
    s_addc_u32 s9, s5, 0
    s_mov_b32 s10, 0x100000
    s_mov_b32 s11, 0x00020000
    v_lshlrev_b32 v4, 9, v0
    buffer_load_dword v5, v4, s[8:11], 0 offen offset:{wv * 64}
    buffer_load_dword v6, v4, s[8:11], 0 offen offset:{wv * 64 + idx * 4}
    s_barrier
    s_waitcnt vmcnt(0)
    v_bfe_u32 v7, v0, 3, 3
    v_cmp_ne_u32 vcc, 7, v7
    s_and_saveexec_b64 s[20:21], vcc
    ds_min_u32 v1, v5
    ds_{'min' if use_min else 'max'}_u32 v1, v6 offset:4
    s_mov_b64 exec, s[20:21]
    s_waitcnt lgkmcnt(0)
    s_barrier
    ds_read_b64 v[2:3], v1
    s_memrealtime s[12:13]
    s_waitcnt lgkmcnt(0)
    v_sub_u32 v2, v3, v2
    s_nop 1
    v_readfirstlane_b32 s14, v2
    s_nop 3
    s_min_u32 s14, s14, 10000
    s_mul_i32 s14, s14, {K}
D_L:
    s_memrealtime s[16:17]
    s_waitcnt lgkmcnt(0)
    s_sub_u32 s18, s16, s12
    s_cmp_lt_u32 s18, s14
    s_cbranch_scc1 D_L
D_END:
    s_endpgm
"""
s = s.replace('.amdgcn_target', "; @launch kernel=d_kernel grid=(1,1,1) block=(256,1,1) lds=64\n.amdgcn_target", 1)
s = s.replace('.section .rodata,"a"', code + '.section .rodata,"a"', 1)
s += kernel_desc("d_kernel", 16)
open(outp, "w").write(s)
```

```python
from gen_common import *

MF16 = "v_mfma_f32_16x16x32_bf16"
MF32 = "v_mfma_f32_32x32x16_bf16"
ENV = lambda k, d: int(os.environ.get(k, str(d)))
ASPACE = ENV("ASPACE", 1)
PFW1 = ENV("PFW1", 1)
OSC1 = " sc1" if ENV("OSC1", 0) else ""
POLLD = ENV("POLLD", 0)
EPD = ENV("EPD", 0)
THR = ENV("THR", 4)
BPRI = ENV("BPRI", 1)

L_WQ = 0
L_WKV = 57344
L_QF = 86016
L_XB = 94208
L_KVP = 151552
L_ASCR = 157696
L_BRED = 57856
L_PX = L_BRED
L_ARED = 107008
L_MISC = 163584
F_LDS = 163840
(C_ST0, C_ST1, C_ST2, C_QF, C_RED, C_WO, C_RED2, C_NONCE, C_BAD, C_PX0, C_PX1, C_KVL, C_KVP,
 C_XA0, C_XA1, C_XA2, C_G1, C_ARED, C_CDONE) = range(19)

FLG_OFF = 0x300000
KVF_OFF = 0
OFL_OFF = 0x4000
HFL_OFF = 0x14000
FLG_BYTES = 0x24000
EG_OFF = 0x340000
EG_BYTES = 32 * 448 * 16
HF_OFF = H_OFF
HF_BYTES = 32 * 2 * 28 * 2048
SPIN = 1 << 14

S_WA, S_PG, S_HP, S_ROT, S_NONCE = 5, 50, 51, 76, 77
V_PF, V_LANE, V_N, V_G, V_L16, V_CNT, V_ONE = 0, 1, 2, 3, 4, 14, 15
STAGES = [(0, 6, C_ST0), (6, 10, C_ST1), (10, 14, C_ST2)]


M1, M16, M64, MQ, K1, K2, GS = 16, 18, 20, 22, 24, 26, 28
V_P16 = 30
vXd, vBd, vXr, vBr, vCs = 32, 34, 36, 8, 12
VBRH = [31, 245, 246, 247]
vCd, vWo, vTw, vTr, vEA = 240, 242, 243, 244, 248
vH0, vH1, vO3, vX3, vF3, vD3 = 120, 121, 122, 123, 124, 125
EMASK = [18, 20, 30, 34, 36, 38, 40, 46]
CF = lambda kk, b: 128 + 8 * kk + 4 * b
UNIT = [4, 0, 1, 2, 3, 4, 0]


def rng(r, n):
    return f"v[{r}:{r + n - 1}]"


_uid = [0]


def uid(p):
    _uid[0] += 1
    return f"{p}_{_uid[0]}"


def arrive(a, c, vbase=V_CNT):
    a("s_mov_b64 exec, 1")
    a(f"ds_add_u32 v{vbase}, v{V_ONE} offset:{4 * c}")
    a("s_mov_b64 exec, -1")


def wait_cnt(a, c, target, vt=5, st=78, sleep=1, nz=False, vbase=V_CNT):
    l, d = uid("LW"), uid("LD")
    a(f"s_mov_b32 s79, {SPIN}")
    a.label(l, flush=False)
    a(f"ds_read_b32 v{vt}, v{vbase} offset:{4 * c}")
    a("s_waitcnt lgkmcnt(0)")
    a(f"v_readfirstlane_b32 s{st}, v{vt}")
    a(f"s_cmp_lg_u32 s{st}, 0" if nz else f"s_cmp_ge_u32 s{st}, {target}")
    a(f"s_cbranch_scc1 {d}")
    a(f"s_sleep {sleep}")
    a("s_sub_u32 s79, s79, 1")
    a("s_cmp_lg_u32 s79, 0")
    a(f"s_cbranch_scc1 {l}")
    a.label(d, flush=False)


def poll_flags(a, vaddr, srd_, soff, vt=5, sleep=2):
    l, d = uid("PW"), uid("PD")
    a(f"s_mov_b32 s79, {SPIN}")
    a.label(l, flush=False)
    a(f"buffer_load_dword v{vt}, v{vaddr}, s[{srd_}:{srd_ + 3}], {soff} offen sc1")
    a("s_waitcnt vmcnt(0)")
    a(f"v_cmp_ne_u32 vcc, s{S_NONCE}, v{vt}")
    a(f"s_cbranch_vccz {d}")
    a(f"s_sleep {sleep}")
    a("s_sub_u32 s79, s79, 1")
    a("s_cmp_lg_u32 s79, 0")
    a(f"s_cbranch_scc1 {l}")
    a.label(d, flush=False)


def rot_step(a, sk, step, wrap):
    a(f"s_add_u32 s{sk}, s{sk}, {step}")
    a(f"s_cmp_ge_u32 s{sk}, {wrap}")
    a(f"s_cselect_b32 s{sk}, 0, s{sk}")


def blk_dma_voffset(a, vd, vrow, rows2=8):
    a(f"v_mul_u32_u24 v5, 896, v{vrow}")
    a(f"v_and_b32 v6, 7, v{V_LANE}")
    a(f"v_xor_b32 v6, v6, v{V_G}")
    a(f"v_lshl_add_u32 v{vd}, v6, 4, v5")
    a(f"v_xor_b32 v6, 4, v6")
    a(f"v_lshl_add_u32 v5, v6, 4, v5")
    a(f"v_add_u32 v{vd + 1}, {896 * rows2}, v5")


def xb_dma_voffset(a, vd, s_row0):
    a(f"v_lshrrev_b32 v7, 3, v{V_LANE}")
    a(f"v_add_u32 v7, {s_row0}, v7")
    blk_dma_voffset(a, vd, 7)


def xfrag16_base(a, vd, base):
    a(f"v_lshrrev_b32 v5, 1, v{V_N}")
    a(f"v_xor_b32 v5, v5, v{V_G}")
    a("v_lshlrev_b32 v5, 4, v5")
    a(f"v_lshl_add_u32 v5, v{V_N}, 7, v5")
    a(f"v_add_u32 v{vd}, {base}, v5")
    a(f"v_xor_b32 v{vd + 1}, 64, v{vd}")


def prefetch_w(a, ptr, sr, vd):
    srd(a, sr, ptr, W_BYTES)
    a(f"buffer_load_dword v{vd}, v{V_PF}, s[{sr}:{sr + 3}], 0 offen")


def prefetch_xa(a, sr, vd):
    srd(a, sr, P_AX, X_BYTES)
    a(f"s_mul_i32 s8, s{S_PG}, 448")
    a(f"s_mul_i32 s9, s{S_HP}, 56")
    a("s_add_u32 s8, s8, s9")
    a(f"s_mul_i32 s9, s{S_WA}, 14")
    a("s_add_u32 s8, s8, s9")
    a(f"v_min_u32 v5, 13, v{V_LANE}")
    a("v_add_lshl_u32 v5, v5, s8, 7")
    a(f"buffer_load_dword v{vd}, v5, s[{sr}:{sr + 3}], 0 offen")


def gen_g(a, name):
    a.raw(f".globl {name}\n.p2align 8\n.type {name},@function\n{name}:")
    a.hist = []
    a("s_cmp_ge_u32 s2, 256")
    a("s_cbranch_scc1 F_END")
    stamp(a, 0)
    load_args(a)
    a("s_memrealtime s[6:7]")
    a("v_lshrrev_b32 v5, 6, v0")
    a(f"v_and_b32 v{V_LANE}, 63, v0")
    a("v_readfirstlane_b32 s3, v5")
    a(f"v_and_b32 v{V_N}, 15, v0")
    a(f"v_bfe_u32 v{V_G}, v0, 4, 2")
    a(f"v_lshlrev_b32 v{V_L16}, 4, v{V_LANE}")
    a(f"v_mov_b32 v{V_CNT}, {L_MISC}")
    a(f"v_mov_b32 v{V_ONE}, 1")
    a(f"v_lshl_add_u32 v5, v{V_LANE}, 2, v{V_CNT}")
    a("v_mov_b32 v6, 0")
    a("ds_write_b32 v5, v6")
    a("s_and_b32 s4, s2, 7")
    a("s_lshr_b32 s12, s2, 3")
    a("s_getpc_b64 s[10:11]")
    a("s_lshl_b32 s9, s12, 10")
    a("v_and_b32 v5, 7, v0")
    a("v_lshl_add_u32 v5, v5, 7, s9")
    a("s_cmp_lg_u32 s3, 3")
    a("s_cbranch_scc1 F_NPF")
    a("global_load_dword v8, v5, s[10:11]")
    a.label("F_NPF", flush=False)
    a("s_lshr_b32 s8, s12, 3")
    a(f"s_lshl_b32 s{S_PG}, s4, 2")
    a(f"s_add_u32 s{S_PG}, s{S_PG}, s8")
    a(f"s_and_b32 s{S_HP}, s12, 7")
    a(f"s_and_b32 s{S_WA}, s3, 3")
    a("s_lshl_b32 s8, s8, 1")
    a(f"s_add_u32 s8, s8, s{S_HP}")
    a("s_add_u32 s8, s8, s4")
    a("s_mul_i32 s9, s8, 9363")
    a("s_lshr_b32 s9, s9, 16")
    a("s_mul_i32 s9, s9, 7")
    a(f"s_sub_u32 s{S_ROT}, s8, s9")
    a("s_mul_i32 s9, s12, 98")
    a(f"s_mul_i32 s8, s{S_WA}, 25")
    a("s_add_u32 s9, s9, s8")
    a(f"v_add_u32 v5, s9, v{V_LANE}")
    a("v_lshlrev_b32 v5, 7, v5")
    a(f"v_cmp_gt_u32 vcc, 25, v{V_LANE}")
    a("v_mov_b32 v6, 0x7f000000")
    a(f"v_cndmask_b32 v{V_PF}, v6, v5, vcc")
    a("s_cmp_lt_u32 s3, 4")
    a("s_cbranch_scc1 F_B")
    a_front(a)
    a.label("F_B")
    b_front(a)
    attention(a)
    out_proj(a)
    a_main(a)
    a.label("F_END")
    a("s_endpgm")


def a_front(a):
    a.vm = a.lg = 0
    a("s_setprio 3")
    vXd, vWd, vT, vXr, vSt = 12, 16, 17, 22, 20
    XF = lambda i: 48 + 4 * i
    WF = lambda i, nt: 64 + 8 * i + 4 * nt
    ACC = 112
    a(f"s_lshr_b32 s14, s{S_HP}, 1")
    a(f"s_lshl_b32 s8, s{S_PG}, 6")
    a("s_lshl_b32 s9, s14, 4")
    a("s_add_u32 s8, s8, s9")
    xb_dma_voffset(a, vXd, "s8")
    a(f"v_lshrrev_b32 v5, 2, v{V_LANE}")
    a("v_mul_u32_u24 v5, 56, v5")
    a(f"v_and_b32 v6, 2, v{V_G}")
    a(f"v_and_b32 v7, 3, v{V_LANE}")
    a("v_xor_b32 v6, v6, v7")
    a(f"v_lshl_add_u32 v{vWd}, v6, 4, v5")
    a(f"s_lshl_b32 s10, s{S_WA}, 12")
    a(f"s_add_u32 s10, s10, {L_WKV}")
    a(f"s_lshl_b32 s11, s{S_WA}, 13")
    a("s_lshl_b32 s9, s14, 11")
    a("s_add_u32 s11, s11, s9")
    a(f"s_add_u32 s11, s11, {L_XB}")
    a(f"s_add_u32 s15, s{S_ROT}, s{S_WA}")
    a(f"s_lshl_b32 s8, s{S_HP}, 6")
    a(f"s_lshl_b32 s9, s{S_WA}, 4")
    a("s_add_u32 s9, s8, s9")
    a(f"v_add_u32 v5, s9, v{V_N}")
    a("v_min_u32 v5, 447, v5")
    a("v_lshlrev_b32 v5, 1, v5")
    a(f"s_and_b32 s9, s{S_WA}, 1")
    a("s_lshl_b32 s9, s9, 5")
    a("s_add_u32 s9, s8, s9")
    a(f"v_and_b32 v6, 31, v{V_LANE}")
    a("v_add_u32 v6, s9, v6")
    a("v_min_u32 v6, 447, v6")
    a("v_lshlrev_b32 v6, 1, v6")
    a("s_waitcnt lgkmcnt(0)")
    stamp(a, 1)
    a(f"global_load_ushort v100, v5, s[{P_LDT}:{P_LDT + 1}]")
    a(f"global_load_ushort v101, v5, s[{P_LRE}:{P_LRE + 1}]")
    a(f"global_load_ushort v102, v5, s[{P_LIM}:{P_LIM + 1}]")
    a(f"global_load_ushort v{vD3}, v6, s[{P_DSK}:{P_DSK + 1}]")
    srd(a, 52, P_BX, X_BYTES)
    a(f"s_bitcmp1_b32 s{S_HP}, 0")
    a(f"s_cselect_b32 s56, s{P_WV}, s{P_WK}")
    a(f"s_cselect_b32 s57, s{P_WV + 1}, s{P_WK + 1}")
    a(f"s_mov_b32 s58, {WKV_BYTES}")
    a("s_mov_b32 s59, 0x00020000")
    toks = {}
    for i in (1, 0):
        if i == 1:
            a(f"s_cmp_eq_u32 s{S_WA}, 3")
            a("s_cbranch_scc1 F_A3S")
        a(f"s_add_u32 s12, s15, {4 * i}")
        a("s_sub_u32 s13, s12, 7")
        a("s_cselect_b32 s12, s12, s13")
        a(f"s_add_u32 m0, s11, {32768 * i}")
        a("s_mul_i32 s13, s12, 3584")
        a("s_lshl_b32 s12, s12, 7")
        a(f"buffer_load_dwordx4 v{vXd}, s[52:55], s12 offen lds")
        a("s_add_u32 m0, m0, 1024")
        a("s_nop 0")
        a(f"buffer_load_dwordx4 v{vXd + 1}, s[52:55], s12 offen lds")
        a(f"s_add_u32 m0, s10, {16384 * i}")
        for q in range(4):
            if q:
                a("s_add_u32 m0, m0, 128")
            toks[i] = a.one(f"buffer_load_dwordx4 v{vWd}, s[56:59], s13 offen offset:{896 * q} lds")
        if i == 1:
            a.label("F_A3S", flush=False)
    a("s_barrier")
    stamp(a, 2)
    a(f"v_lshrrev_b32 v5, 2, v{V_N}")
    a(f"v_lshl_add_u32 v5, v{V_G}, 3, v5")
    a("v_lshlrev_b32 v5, 6, v5")
    a(f"v_and_b32 v6, 1, v{V_G}")
    a("v_lshl_add_u32 v5, v6, 5, v5")
    a(f"v_and_b32 v6, 3, v{V_N}")
    a("v_lshl_add_u32 v5, v6, 3, v5")
    a(f"v_add_u32 v{vT}, s10, v5")
    a(f"v_xor_b32 v{vT + 1}, 32, v{vT}")
    xfrag16_base(a, vXr, "s11")
    for r in range(8):
        a(f"v_mov_b32 v{ACC + r}, 0")
    a(f"s_lshl_b32 s8, s{S_WA}, 11")
    a(f"s_add_u32 s8, s8, {L_KVP}")
    a(f"v_add_u32 v21, s8, v{V_L16}")
    srd(a, 60, P_WS, 0x40000, KV_OFF)
    srd(a, 64, P_WS, FLG_BYTES, FLG_OFF)
    srd(a, 68, P_DBG, 256)
    a(f"s_lshl_b32 s8, s{S_PG}, 1")
    a("s_lshr_b32 s9, s14, 1")
    a("s_add_u32 s8, s8, s9")
    a("s_lshl_b32 s8, s8, 12")
    a("s_and_b32 s9, s14, 1")
    a("v_mov_b32 v30, 0")

    def reads(i):
        t = None
        for e in range(2):
            a(f"ds_read_b128 {rng(XF(2 * i + e), 4)}, v{vXr + e} offset:{32768 * i}")
            for nt in range(2):
                for u in range(2):
                    r = WF(2 * i + e, nt) + 2 * u
                    t = a.one(f"ds_read_b64_tr_b16 v[{r}:{r + 1}], v{vT + nt} offset:{16384 * i + 2048 * e + u * 256}")
        return t

    a(f"s_cmp_eq_u32 s{S_WA}, 3")
    a("s_cbranch_scc1 F_A3R")
    a.wait_vm(toks[1])
    reads(1)
    a.label("F_A3R", flush=False)
    a.wait_vm(toks[0])
    reads(0)
    arrive(a, C_KVL)
    stamp(a, 3)

    def mfmas(is_v):
        lab = uid("F_MS")
        a(f"s_cmp_eq_u32 s{S_WA}, 3")
        a(f"s_cbranch_scc1 {lab}")
        for i in (3, 2, 1, 0):
            if i == 3:
                a("s_waitcnt lgkmcnt(11)")
            if i == 1:
                a.label(lab, flush=False)
                a("s_waitcnt lgkmcnt(0)")
            for nt in range(2):
                d = ACC + 4 * nt
                w, x = rng(WF(i, nt), 4), rng(XF(i), 4)
                a(f"{MF16} {rng(d, 4)}, {x if is_v else w}, {w if is_v else x}, {rng(d, 4)}")

    a(f"s_bitcmp1_b32 s{S_HP}, 0")
    a("s_cbranch_scc1 F_VM")
    mfmas(False)
    a("s_branch F_KVM")
    a.label("F_VM", flush=False)
    mfmas(True)
    a.label("F_KVM")
    a(f"s_cmp_eq_u32 s{S_WA}, 3")
    a("s_cbranch_scc1 F_KVF")
    a(f"ds_write_b128 v21, {rng(ACC, 4)}")
    a(f"ds_write_b128 v21, {rng(ACC + 4, 4)} offset:1024")
    a("s_waitcnt lgkmcnt(0)")
    arrive(a, C_KVP)
    a("s_branch F_AM")
    a.label("F_KVF")
    a("buffer_load_dword v31, v30, s[68:71], 0 offen sc1")
    a(f"v_add_u32 v21, {L_KVP}, v{V_L16}")
    a(f"v_cmp_eq_u32 s[72:73], 3, v{V_G}")
    a(f"v_cmp_le_u32 s[74:75], 12, v{V_N}")
    wait_cnt(a, C_KVP, 3, sleep=0)
    for q in range(6):
        a(f"ds_read_b128 {rng(48 + 4 * q, 4)}, v21 offset:{1024 * q}")
    a(f"s_lshl_b32 s12, s{S_PG}, 3")
    a(f"s_add_u32 s12, s12, s{S_HP}")
    a("s_lshl_b32 s12, s12, 6")
    a(f"s_bitcmp1_b32 s{S_HP}, 0")
    a("s_cbranch_scc1 F_VE")

    def adds():
        a("s_waitcnt lgkmcnt(0)")
        for q in range(3):
            for r in range(0, 8, 2):
                a(f"v_pk_add_f32 v[{ACC + r}:{ACC + r + 1}], v[{ACC + r}:{ACC + r + 1}], v[{48 + 8 * q + r}:{49 + 8 * q + r}]")

    a("s_lshl_b32 s9, s9, 8")
    a("s_add_u32 s8, s8, s9")
    a(f"v_lshlrev_b32 v{vSt}, 9, v{V_G}")
    a(f"v_lshl_add_u32 v{vSt}, v{V_N}, 4, v{vSt}")
    a(f"s_mov_b32 s14, {f32(CSCALE)}")
    a("v_mov_b32 v6, 0x3f803f80")
    a("v_mov_b32 v7, 0x00003f80")
    adds()
    for r in range(8):
        a(f"v_mul_f32 v{ACC + r}, s14, v{ACC + r}")
    for r in range(4):
        a(f"v_cvt_pk_bf16_f32 v{8 + r}, v{ACC + 2 * r}, v{ACC + 2 * r + 1}")
    a("v_cndmask_b32 v10, v10, v6, s[72:73]")
    a("v_cndmask_b32 v11, v11, v7, s[72:73]")
    a(f"buffer_store_dwordx4 v[8:11], v{vSt}, s[60:63], s8 offen sc1")
    a("s_branch F_KVPUB")
    a.label("F_VE")
    a("s_lshl_b32 s9, s9, 10")
    a("s_add_u32 s8, s8, s9")
    a(f"v_and_b32 v5, 1, v{V_G}")
    a("v_lshlrev_b32 v5, 9, v5")
    a(f"v_lshl_add_u32 v5, v{V_N}, 4, v5")
    a(f"v_lshrrev_b32 v6, 1, v{V_G}")
    a(f"v_lshl_add_u32 v{vSt}, v6, 3, v5")
    a(f"v_cmp_eq_u32 vcc, 12, v{V_N}")
    a("v_mov_b32 v6, 0x3f803f80")
    a("v_cndmask_b32 v6, 0, v6, vcc")
    adds()
    for r in range(4):
        a(f"v_cvt_pk_bf16_f32 v{8 + r}, v{ACC + 2 * r}, v{ACC + 2 * r + 1}")
    a("v_cndmask_b32 v10, v10, v6, s[74:75]")
    a("v_cndmask_b32 v11, v11, v6, s[74:75]")
    a(f"buffer_store_dwordx2 v[8:9], v{vSt}, s[60:63], s8 offen offset:2048 sc1")
    a(f"buffer_store_dwordx2 v[10:11], v{vSt}, s[60:63], s8 offen offset:2304 sc1")
    a.label("F_KVPUB")
    stamp(a, 4)
    a(f"s_mov_b32 s79, {SPIN}")
    a("s_waitcnt vmcnt(0)")
    a.label("F_NP", flush=False)
    a(f"v_readfirstlane_b32 s{S_NONCE}, v31")
    a(f"s_cmp_lg_u32 s{S_NONCE}, 0")
    a("s_cbranch_scc1 F_NOK")
    a("buffer_load_dword v31, v30, s[68:71], 0 offen sc1")
    a("s_waitcnt vmcnt(0)")
    a("s_sub_u32 s79, s79, 1")
    a("s_cmp_lg_u32 s79, 0")
    a("s_cbranch_scc1 F_NP")
    a.label("F_NOK", flush=False)
    a("s_mov_b64 exec, 1")
    a(f"buffer_store_dword v31, v30, s[64:67], s12 offen offset:{KVF_OFF} sc1")
    a(f"ds_write_b32 v{V_CNT}, v31 offset:{4 * C_NONCE}")
    a("s_mov_b64 exec, -1")
    stamp(a, 2)
    a("s_branch F_AM")


def b_front(a):
    a.vm = a.lg = 0
    a("s_setprio 2")
    vWd, vXd, vQ, vT, vXr = 12, 28, 13, 16, 18
    a(f"v_lshrrev_b32 v5, 3, v{V_LANE}")
    a("s_lshl_b32 s9, s3, 3")
    a("v_add_u32 v6, s9, v5")
    a("v_mul_u32_u24 v6, 896, v6")
    a(f"v_bfe_u32 v7, v{V_LANE}, 1, 2")
    a("v_bfe_u32 v5, v5, 1, 1")
    a("v_xor_b32 v7, v7, v5")
    a("s_and_b32 s9, s3, 1")
    a("s_lshl_b32 s9, s9, 1")
    a("v_xor_b32 v7, s9, v7")
    a("v_lshrrev_b32 v5, 1, v7")
    a("v_mul_u32_u24 v5, 56, v5")
    a("v_add_u32 v6, v6, v5")
    a("v_and_b32 v5, 1, v7")
    a("v_lshl_add_u32 v6, v5, 5, v6")
    a(f"v_and_b32 v5, 1, v{V_LANE}")
    a("v_lshl_add_u32 v6, v5, 4, v6")
    a(f"s_mul_i32 s9, s{S_HP}, 112")
    a(f"v_add_u32 v{vWd}, s9, v6")
    a(f"s_lshl_b32 s8, s{S_PG}, 6")
    a("s_lshl_b32 s9, s3, 4")
    a("s_add_u32 s8, s8, s9")
    xb_dma_voffset(a, vXd, "s8")
    a("s_waitcnt lgkmcnt(0)")
    stamp(a, 1)
    a("s_or_b32 s8, s2, s3")
    a("s_cmp_lg_u32 s8, 0")
    a("s_cbranch_scc1 F_NN")
    srd(a, 68, P_DBG, 256)
    a("s_or_b32 s8, s6, 1")
    a("v_mov_b32 v5, s8")
    a("v_mov_b32 v6, 0")
    a("buffer_store_dword v5, v6, s[68:71], 0 offen sc1")
    a.label("F_NN")
    srd(a, 52, P_WQ, W_BYTES)
    srd(a, 56, P_BX, X_BYTES)
    a(f"s_lshl_b32 s12, s{S_ROT}, 7")
    a("s_lshl_b32 s10, s3, 10")
    a("s_lshl_b32 s11, s3, 11")
    a("s_barrier")
    if ENV("QPF", 0):
        a(f"buffer_load_dword v9, v{V_PF}, s[52:55], 0 offen")
    if ENV("KVLW", 0):
        wait_cnt(a, C_KVL, 4)
    toks = {}
    BTHR = ENV("BTHR", 0)

    def bthr():
        if BTHR:
            a(f"s_waitcnt vmcnt({BTHR})")

    def dma_pair(p_):
        a(f"s_add_u32 m0, s11, {L_XB + 8192 * p_}")
        a("s_mul_i32 s13, s12, 448")
        a(f"buffer_load_dwordx4 v{vXd}, s[56:59], s12 offen lds")
        a("s_add_u32 m0, m0, 1024")
        a("s_nop 0")
        a(f"buffer_load_dwordx4 v{vXd + 1}, s[56:59], s12 offen lds")
        a(f"s_add_u32 m0, s10, {L_WQ + 8192 * p_}")
        if p_ < 6:
            rot_step(a, 12, 128, 896)
        bthr()
        a(f"buffer_load_dwordx4 v{vWd}, s[52:55], s13 offen lds")
        a("s_add_u32 m0, m0, 4096")
        a(f"s_add_u32 s13, s13, {32 * 896}")
        toks[2 * p_ + 1] = a.one(f"buffer_load_dwordx4 v{vWd}, s[52:55], s13 offen lds")
        bthr()

    NB0 = ENV("NB0", 7)
    for p_ in range(NB0):
        dma_pair(p_)
    stamp(a, 2)
    if PFW1 == 1:
        prefetch_xa(a, 60, 10)
        prefetch_w(a, P_BRE, 60, 11)
    srd(a, 64, P_WS, FLG_BYTES, FLG_OFF)
    a(f"v_cmp_eq_u32 s[72:73], 3, v{V_G}")
    a(f"v_lshrrev_b32 v5, 2, v{V_N}")
    a(f"v_lshl_add_u32 v5, v{V_G}, 3, v5")
    a("v_lshlrev_b32 v5, 7, v5")
    a(f"v_lshrrev_b32 v6, 3, v{V_N}")
    a("v_lshl_add_u32 v5, v6, 5, v5")
    a(f"v_and_b32 v6, 1, v{V_G}")
    a("v_lshl_add_u32 v5, v6, 6, v5")
    a(f"v_and_b32 v6, 3, v{V_N}")
    a("v_lshl_add_u32 v5, v6, 3, v5")
    a("s_and_b32 s9, s3, 1")
    a("s_lshl_b32 s9, s9, 6")
    a(f"v_xor_b32 v{vT}, s9, v5")
    a(f"v_xor_b32 v{vT + 1}, 32, v{vT}")
    a("s_lshr_b32 s8, s3, 1")
    a("s_lshl_b32 s8, s8, 12")
    a(f"s_add_u32 s8, s8, {L_XB}")
    xfrag16_base(a, vXr, "s8")
    a("s_lshl_b32 s8, s3, 11")
    a(f"s_add_u32 s8, s8, {L_QF}")
    a(f"v_lshlrev_b32 v5, 9, v{V_G}")
    a(f"v_lshl_add_u32 v5, v{V_N}, 4, v5")
    a(f"v_add_u32 v{vQ}, s8, v5")
    XF = lambda b, f: 48 + 8 * b + 4 * f
    WF = lambda b, nt: 80 + 8 * b + 4 * nt
    ACC = lambda f, nt: 112 + 8 * f + 4 * nt
    for (k0, k1, cnt) in STAGES:
        a.wait_vm(toks[k1 - 1])
        arrive(a, cnt)
        wait_cnt(a, cnt, 4, sleep=0)
        if k0 == 0:
            stamp(a, 3)
            for p_ in range(NB0, ENV("NB1", 7)):
                dma_pair(p_)
        if cnt == C_ST1:
            for p_ in range(max(NB0, ENV("NB1", 7)), 7):
                dma_pair(p_)
        a.lg = 0
        lt = {}

        def rd(s_):
            for f in range(2):
                a(f"ds_read_b128 {rng(XF(s_ % 3, f), 4)}, v{vXr + s_ % 2} offset:{(s_ // 2) * 8192 + f * 2048}")
            t = None
            for nt in range(2):
                for u in range(2):
                    r = WF(s_ % 3, nt) + 2 * u
                    t = a.one(f"ds_read_b64_tr_b16 v[{r}:{r + 1}], v{vT + nt} offset:{s_ * 4096 + u * 512}")
            lt[s_] = t
        rd(k0)
        rd(k0 + 1)
        for s_ in range(k0, k1):
            if s_ + 2 < k1:
                rd(s_ + 2)
            a.wait_lg(lt[s_])
            for f in range(2):
                for nt in range(2):
                    d = ACC(f, nt)
                    c = "0" if s_ == 0 else rng(d, 4)
                    a(f"{MF16} {rng(d, 4)}, {rng(WF(s_ % 3, nt), 4)}, {rng(XF(s_ % 3, f), 4)}, {c}")
    for f in range(2):
        b = ACC(f, 0)
        pk = 20 + 4 * f
        for r in range(4):
            a(f"v_cvt_pk_bf16_f32 v{pk + r}, v{b + 2 * r}, v{b + 2 * r + 1}")
        a(f"v_cndmask_b32 v{pk + 2}, v{pk + 2}, 0, s[72:73]")
        a(f"v_cndmask_b32 v{pk + 3}, v{pk + 3}, 0, s[72:73]")
        a(f"ds_write_b128 v{vQ}, {rng(pk, 4)} offset:{256 * f}")
    a("s_waitcnt lgkmcnt(0)")
    arrive(a, C_QF)
    stamp(a, 4)


QR = lambda i, h: 16 + 8 * i + 4 * h
O = lambda i: 48 + 16 * i
S = lambda b: 112 + 16 * b
P = 144
KB = lambda c, h: 152 + 16 * c + 4 * h
VB = lambda c, h: 152 + 16 * c + 8 + 4 * h


def attention(a):
    L16 = V_L16
    a("s_lshl_b32 s13, s3, 16")
    a(f"s_add_u32 s56, s{P_WS}, s13")
    a(f"s_addc_u32 s57, s{P_WS + 1}, 0")
    a(f"s_add_u32 s56, s56, {KV_OFF}")
    a("s_addc_u32 s57, s57, 0")
    a("s_mov_b32 s58, 65536")
    a("s_mov_b32 s59, 0x00020000")
    srd(a, 60, P_WS, 0x200000, OF_OFF)

    def ldk(c):
        a(f"buffer_load_dwordx4 {rng(KB(c, 0), 4)}, v{L16}, s[56:59], s15 offen sc1")
        return a.one(f"buffer_load_dwordx4 {rng(KB(c, 1), 4)}, v{L16}, s[56:59], s15 offen offset:1024 sc1")

    def ldv(c):
        a(f"buffer_load_dwordx4 {rng(VB(c, 0), 4)}, v{L16}, s[56:59], s15 offen offset:2048 sc1")
        return a.one(f"buffer_load_dwordx4 {rng(VB(c, 1), 4)}, v{L16}, s[56:59], s15 offen offset:3072 sc1")

    wait_cnt(a, C_NONCE, 0, st=S_NONCE, nz=True)
    a(f"v_lshlrev_b32 v6, 6, v{V_LANE}")
    a("s_lshl_b32 s8, s3, 12")
    if POLLD:
        a(f"s_sleep {POLLD}")
    a(f"buffer_load_dword v7, v6, s[64:67], s8 offen sc1")
    for r in range(64):
        a(f"v_mov_b32 v{O(0) + r}, 0")
    for r in range(4):
        a(f"v_mov_b32 v{VB(3, 1) + r}, 0")
        a(f"v_mov_b32 v{P + 4 + r}, 0")
    for i in range(4):
        a(f"s_add_u32 s{68 + i}, s3, {i + 1}")
        a(f"s_and_b32 s{68 + i}, s{68 + i}, 3")
    a(f"v_cmp_le_u32 s[74:75], 32, v{V_LANE}")
    wait_cnt(a, C_QF, 4, sleep=0)
    for i in range(4):
        a(f"s_lshl_b32 s14, s{68 + i}, 11")
        a(f"s_add_u32 s14, s14, {L_QF}")
        a(f"v_add_u32 v13, s14, v{L16}")
        a(f"ds_read_b128 {rng(QR(i, 0), 4)}, v13")
        a(f"ds_read_b128 {rng(QR(i, 1), 4)}, v13 offset:1024")
    a("s_mov_b32 s15, 0")
    a("s_waitcnt vmcnt(0)")
    a(f"v_cmp_ne_u32 vcc, s{S_NONCE}, v7")
    a("s_cbranch_vccz F_KVOK")
    poll_flags(a, 6, 64, "s8", sleep=2)
    a.label("F_KVOK", flush=False)
    stamp(a, 5)
    a.vm = a.lg = 0
    tok_kv0 = None
    for c in range(4):
        ldk(c)
        if c < 3:
            t = ldv(c)
            if c == 0:
                tok_kv0 = t
            a("s_add_u32 s15, s15, 4096")
    a("s_waitcnt lgkmcnt(0)")
    arrive(a, C_WO)
    a.wait_vm(tok_kv0)
    a(f"{MF32} {rng(S(0), 16)}, {rng(KB(0, 0), 4)}, {rng(QR(0, 0), 4)}, 0")
    a(f"{MF32} {rng(S(0), 16)}, {rng(KB(0, 1), 4)}, {rng(QR(0, 1), 4)}, {rng(S(0), 16)}")
    a("s_mov_b32 s14, 4")
    if ENV("VMST", 0):
        a("s_mov_b32 s93, 0")
        stamp(a, 2, True)
    a("s_setprio 1")
    stamp(a, 6)
    a.fence()
    a.raw(".p2align 6")
    a.label("F_LOOP", flush=False)

    def ex(cur, k0, pk):
        for k in range(k0, k0 + 4):
            a(f"v_exp_f32 v{cur + k}, v{cur + k}")
        a(f"v_cvt_pk_bf16_f32 v{P + pk}, v{cur + k0}, v{cur + k0 + 1}")
        a(f"v_cvt_pk_bf16_f32 v{P + pk + 1}, v{cur + k0 + 2}, v{cur + k0 + 3}")

    def body():
        for ls in range(16):
            c, i = divmod(ls, 4)
            cur, nxt = S(ls % 2), S((ls + 1) % 2)
            cn, inx = divmod((ls + 1) % 16, 4)
            cp, ip = divmod((ls - 1) % 16, 4)
            if i == 3:
                if ENV("VMST", 0) == 1:
                    a("s_memtime s[98:99]")
                    a("s_waitcnt lgkmcnt(0)")
                a("s_waitcnt vmcnt(10)")
                if ENV("VMST", 0) == 1:
                    a("s_memtime s[100:101]")
                    a("s_waitcnt lgkmcnt(0)")
                    a("s_sub_u32 s100, s100, s98")
                    a("s_add_u32 s93, s93, s100")
            a(f"{MF32} {rng(nxt, 16)}, {rng(KB(cn, 0), 4)}, {rng(QR(inx, 0), 4)}, 0")
            ex(cur, 0, 0)
            a(f"{MF32} {rng(nxt, 16)}, {rng(KB(cn, 1), 4)}, {rng(QR(inx, 1), 4)}, {rng(nxt, 16)}")
            if i == 2:
                if BPRI:
                    a("s_setprio 3")
                ldk(c)
                if BPRI:
                    a("s_setprio 1")
            if ls == 13:
                a(f"ds_read_b32 v12, v{V_CNT} offset:{4 * C_WO}")
            ex(cur, 4, 2)
            a(f"{MF32} {rng(O(ip), 16)}, {rng(VB(cp, 1), 4)}, {rng(P + 4, 4)}, {rng(O(ip), 16)}")
            if i == 0:
                if BPRI:
                    a("s_setprio 3")
                ldv(cp)
                if BPRI:
                    a("s_setprio 1")
                a("s_add_u32 s15, s15, 4096")
            ex(cur, 8, 4)
            a(f"{MF32} {rng(O(i), 16)}, {rng(VB(c, 0), 4)}, {rng(P, 4)}, {rng(O(i), 16)}")
            ex(cur, 12, 6)

    n0 = a.nops
    body()
    assert a.nops == n0, "unexpected nops in attention loop"
    save = (list(a.out), list(a.hist), a.vm, a.lg)
    body()
    assert a.nops == n0, "unexpected nops across the attention back edge"
    a.out, a.hist, a.vm, a.lg = save
    a("s_sub_u32 s14, s14, 1")
    a("s_cmp_lg_u32 s14, 0")
    a("s_cbranch_scc1 F_LOOP")
    a(f"{MF32} {rng(O(3), 16)}, {rng(VB(3, 1), 4)}, {rng(P + 4, 4)}, {rng(O(3), 16)}")
    a("s_setprio 3")
    if ENV("VMST", 0):
        stamp(a, 3, True)
    stamp(a, 7)
    a("s_waitcnt lgkmcnt(0)")
    a("v_readfirstlane_b32 s78, v12")
    a("s_cmp_ge_u32 s78, 8")
    a("s_cbranch_scc1 F_WOK")
    wait_cnt(a, C_WO, 8)
    a.label("F_WOK", flush=False)
    for i in range(3):
        a(f"s_mul_i32 s14, s{68 + i}, 12288")
        a(f"s_add_u32 s14, s14, {L_BRED}")
        a(f"v_add_u32 v13, s14, v{L16}")
        for qd in range(4):
            a(f"ds_write_b128 v13, {rng(O(i) + 4 * qd, 4)} offset:{i * 4096 + qd * 1024}")
    a("s_mul_i32 s14, s3, 12288")
    a(f"s_add_u32 s14, s14, {L_BRED}")
    a(f"v_add_u32 v13, s14, v{L16}")
    a(f"s_lshl_b32 s14, s{S_PG}, 1")
    a("s_lshr_b32 s12, s3, 1")
    a("s_add_u32 s14, s14, s12")
    a("s_lshl_b32 s14, s14, 4")
    a(f"s_lshl_b32 s12, s{S_HP}, 1")
    a("s_add_u32 s14, s14, s12")
    a("s_and_b32 s12, s3, 1")
    a("s_add_u32 s14, s14, s12")
    a("s_lshl_b32 s12, s14, 6")
    a(f"s_add_u32 s12, s12, {OFL_OFF}")
    a("s_lshl_b32 s14, s14, 11")
    a("s_waitcnt lgkmcnt(0)")
    arrive(a, C_RED)
    wait_cnt(a, C_RED, 4, sleep=0)
    a.lg = 0
    toks = []
    for qd in (3, 0, 1, 2):
        for i in range(3):
            t = a.one(f"ds_read_b128 {rng(O(i) + 4 * qd, 4)}, v13 offset:{i * 4096 + qd * 1024}")
        toks.append((qd, t))
    F = O(3)
    for n, (qd, t) in enumerate(toks):
        a.wait_lg(t)
        for i in range(3):
            for r in range(0, 4, 2):
                x, y = F + 4 * qd + r, O(i) + 4 * qd + r
                a(f"v_pk_add_f32 v[{x}:{x + 1}], v[{x}:{x + 1}], v[{y}:{y + 1}]")
        if n == 0:
            a(f"v_mov_b32 v12, v{F + 12}")
            a(f"v_mov_b32 v10, v{F + 12}")
            a("v_permlane32_swap_b32 v12, v10")
            a("v_rcp_f32 v10, v10")
    arrive(a, C_RED2)
    for r in range(0, 16, 2):
        a(f"v_pk_mul_f32 v[{F + r}:{F + r + 1}], v[{F + r}:{F + r + 1}], v[10:11] op_sel_hi:[1,0]")
    for r in range(8):
        a(f"v_cvt_pk_bf16_f32 v{P + r}, v{F + 2 * r}, v{F + 2 * r + 1}")
    a(f"v_cndmask_b32 v{P + 6}, v{P + 6}, 0, s[74:75]")
    a(f"v_cndmask_b32 v{P + 7}, v{P + 7}, 0, s[74:75]")
    a(f"buffer_store_dwordx4 {rng(P, 4)}, v{L16}, s[60:63], s14 offen sc1")
    a(f"buffer_store_dwordx4 {rng(P + 4, 4)}, v{L16}, s[60:63], s14 offen offset:1024 sc1")
    stamp(a, 8)


def out_proj(a):
    L16 = V_L16
    vW, vR, vTk, vTs, vO = 16, 17, 18, 19, 20
    a(f"v_mov_b32 v8, s{S_NONCE}")
    a("v_mov_b32 v9, 0")
    a("s_and_b32 s9, s3, 1")
    a("s_lshr_b32 s10, s3, 1")
    a(f"v_lshrrev_b32 v5, 1, v{V_G}")
    a(f"v_lshrrev_b32 v7, 2, v{V_N}")
    a("v_lshl_add_u32 v5, v5, 2, v7")
    a("v_lshlrev_b32 v5, 7, v5")
    a(f"v_lshrrev_b32 v7, 3, v{V_N}")
    a("v_lshl_add_u32 v5, v7, 6, v5")
    a(f"v_and_b32 v7, 1, v{V_G}")
    a("v_lshl_add_u32 v5, v7, 5, v5")
    a(f"v_and_b32 v7, 3, v{V_N}")
    a("v_lshl_add_u32 v5, v7, 3, v5")
    a("s_lshl_b32 s13, s10, 6")
    a("v_xor_b32 v5, s13, v5")
    a("s_mul_i32 s13, s10, 28672")
    a(f"v_add_u32 v{vTk}, s13, v5")
    a(f"v_xor_b32 v{vTs}, 64, v{vTk}")
    WFR = lambda ks, q: 88 + 8 * ks + 4 * q
    order = [ks for ks in range(16) if ks != 7] + [7]

    def rdw(ks):
        hl, half = divmod(ks, 2)
        for q in range(2):
            for u in range(2):
                r = WFR(ks, q) + 2 * u
                a(f"ds_read_b64_tr_b16 v[{r}:{r + 1}], v{vTs if q else vTk} offset:{(28 * hl + 16 * half + 8 * u) * 128}")

    for ks in order[:6]:
        rdw(ks)
    a("s_waitcnt vmcnt(0)")
    a("s_mov_b64 exec, 1")
    a("buffer_store_dword v8, v9, s[64:67], s12 offen sc1")
    a("s_mov_b64 exec, -1")
    a(f"s_cmp_eq_u32 s{S_HP}, 7")
    a("s_cbranch_scc1 F_BEND")
    for ks in order[6:]:
        rdw(ks)
    a(f"v_and_b32 v5, 7, v{V_LANE}")
    a("v_lshlrev_b32 v21, 6, v5")
    a(f"s_lshl_b32 s14, s{S_PG}, 1")
    a("s_add_u32 s14, s14, s9")
    a(f"s_mul_i32 s8, s14, {32 * 3584}")
    a("s_lshl_b32 s14, s14, 4")
    a("s_lshl_b32 s12, s10, 3")
    a("s_add_u32 s14, s14, s12")
    a("s_lshl_b32 s12, s14, 6")
    a(f"s_add_u32 s12, s12, {OFL_OFF}")
    a("s_lshl_b32 s14, s14, 11")
    srd(a, 52, P_OUT, OUT_BYTES)
    a(f"v_lshrrev_b32 v5, 5, v{V_LANE}")
    a(f"v_mul_u32_u24 v{vO}, {4 * 3584}, v5")
    a(f"v_and_b32 v5, 31, v{V_LANE}")
    a(f"v_lshl_add_u32 v{vO}, v5, 2, v{vO}")
    a(f"s_lshl_b32 s13, s{S_HP}, 8")
    a("s_add_u32 s8, s8, s13")
    a("s_lshl_b32 s13, s10, 7")
    a("s_add_u32 s8, s8, s13")
    a("s_add_u32 s13, s8, 1792")
    a("s_lshl_b32 s8, s3, 12")
    a(f"s_add_u32 s8, s8, {L_PX}")
    a(f"v_add_u32 v{vW}, s8, v{L16}")
    a("s_xor_b32 s8, s3, 2")
    a("s_lshl_b32 s8, s8, 12")
    a(f"s_add_u32 s8, s8, {L_PX}")
    a(f"v_add_u32 v{vR}, s8, v{L16}")
    a("s_lshl_b32 s8, s9, 2")
    a(f"v_add_u32 v22, s8, v{V_CNT}")
    wait_cnt(a, C_RED2, 4)
    poll_flags(a, 21, 64, "s12", sleep=1)
    stamp(a, 9)
    a.vm = 0
    OFR = lambda ks: 24 + 4 * ks
    toks = []
    for hl in range(8):
        a(f"buffer_load_dwordx4 {rng(OFR(2 * hl), 4)}, v{L16}, s[60:63], s14 offen offset:{(hl % 2) * 2048} sc1")
        toks.append(a.one(f"buffer_load_dwordx4 {rng(OFR(2 * hl + 1), 4)}, v{L16}, s[60:63], s14 offen offset:{(hl % 2) * 2048 + 1024} sc1"))
        if hl % 2 == 1 and hl < 7:
            a("s_add_u32 s14, s14, 4096")
    acc = lambda q: 216 + 16 * q
    for ks in range(16):
        if ks % 2 == 0:
            a.wait_vm(toks[ks // 2])
        for q in (1, 0):
            d = acc(q)
            c = "0" if ks == 0 else rng(d, 16)
            a(f"{MF32} {rng(d, 16)}, {rng(OFR(ks), 4)}, {rng(WFR(ks, q), 4)}, {c}")
    stamp(a, 10)
    for qd in range(4):
        a(f"ds_write_b128 v{vW}, {rng(acc(1) + 4 * qd, 4)} offset:{qd * 1024}")
    a("s_waitcnt lgkmcnt(0)")
    arrive(a, C_PX0, vbase=22)
    wait_cnt(a, C_PX0, 2, vbase=22, sleep=0)
    a.lg = 0
    toks = []
    for qd in range(4):
        toks.append(a.one(f"ds_read_b128 {rng(24 + 4 * qd, 4)}, v{vR} offset:{qd * 1024}"))
    for qd in range(4):
        a.wait_lg(toks[qd])
        b = acc(0) + 4 * qd
        for r in range(0, 4, 2):
            a(f"v_pk_add_f32 v[{b + r}:{b + r + 1}], v[{b + r}:{b + r + 1}], v[{24 + 4 * qd + r}:{25 + 4 * qd + r}]")
        a(f"buffer_store_dword v{b}, v{vO}, s[52:55], s13 offen{OSC1}")
        a(f"buffer_store_dword v{b + 1}, v{vO}, s[52:55], s13 offen offset:3584{OSC1}")
        a(f"s_add_u32 s13, s13, {2 * 3584}")
        a(f"buffer_store_dword v{b + 2}, v{vO}, s[52:55], s13 offen{OSC1}")
        a(f"buffer_store_dword v{b + 3}, v{vO}, s[52:55], s13 offen offset:3584{OSC1}")
        if qd < 3:
            a(f"s_add_u32 s13, s13, {6 * 3584}")
    stamp(a, 11)
    a.label("F_BEND")
    stamp_flush(a, 0, 12)
    a("s_endpgm")


_thr = [THR]


def thr(a):
    if _thr[0]:
        a(f"s_waitcnt vmcnt({_thr[0]})")


def pr(r):
    return f"v[{r}:{r + 1}]"


def pcmad(a, d, m, x, b, t):
    a(f"v_pk_fma_f32 {pr(t)}, {pr(m)}, {pr(x)}, {pr(b)} op_sel:[1,1,0] op_sel_hi:[1,0,1] neg_lo:[1,0,0]")
    a(f"v_pk_fma_f32 {pr(d)}, {pr(m)}, {pr(x)}, {pr(t)} op_sel_hi:[0,1,1]")


def a_main(a):
    a.label("F_AM")
    a.vm = a.lg = 0
    a("s_setprio 0")
    a(f"s_cmp_eq_u32 s{S_HP}, 7")
    a("s_cbranch_scc1 F_A7")
    a_setup(a)
    wait_cnt(a, C_NONCE, 0, st=S_NONCE, nz=True, sleep=2)
    a("s_setprio 2")
    stamp(a, 5)
    if PFW1 == 0:
        prefetch_xa(a, 68, 126)
        prefetch_w(a, P_BRE, 68, 127)
    if PFW1 < 2:
        prefetch_w(a, P_BIM, 68, 126)
    a1(a)
    a3(a)
    stamp_flush(a, 0, 12)
    a("s_endpgm")
    a.label("F_A7")
    wait_cnt(a, C_NONCE, 0, st=S_NONCE, nz=True, sleep=2)
    a("s_setprio 2")
    if PFW1 == 0:
        prefetch_xa(a, 68, 126)
        prefetch_w(a, P_BRE, 68, 127)
    if PFW1 < 2:
        prefetch_w(a, P_BIM, 68, 126)
    a("s_sleep 64")
    for p in (P_CRE, P_CIM, P_WO):
        prefetch_w(a, p, 68, 126)
        a("s_waitcnt vmcnt(0)")
        a("s_sleep 16")
    arrive(a, C_WO)
    stamp_flush(a, 0, 12)
    a("s_endpgm")


def a_setup(a):
    a(f"s_lshl_b32 s8, s{S_HP}, 6")
    a(f"s_lshl_b32 s9, s{S_WA}, 4")
    a("s_add_u32 s9, s8, s9")
    a(f"v_add_u32 v13, s9, v{V_N}")
    LD, LR, LI, A2, TH, T0, T1 = 100, 101, 102, 103, 104, 6, 7
    a(f"v_lshlrev_b32 v{V_P16}, 4, v13")
    a(f"s_and_b32 s14, s{S_WA}, 1")
    a(f"s_lshr_b32 s15, s{S_WA}, 1")
    xb_dma_voffset(a, vBd, "s9")
    xb_dma_voffset(a, vCd, "s8")
    a(f"v_and_b32 v7, 32, v{V_LANE}")
    a(f"v_bfe_u32 v6, v{V_LANE}, 3, 2")
    a(f"s_lshl_b32 s12, s{S_PG}, 6")
    a(f"s_lshl_b32 s9, s{S_WA}, 3")
    a("s_add_u32 s9, s12, s9")
    a("v_add3_u32 v7, v7, v6, s9")
    blk_dma_voffset(a, vXd, 7, rows2=4)
    a(f"v_and_b32 v5, 31, v{V_LANE}")
    a("v_bfe_u32 v6, v5, 1, 3")
    a(f"v_lshrrev_b32 v7, 5, v{V_LANE}")
    a("v_xor_b32 v6, v6, v7")
    a("v_lshlrev_b32 v6, 4, v6")
    a("v_lshl_add_u32 v5, v5, 7, v6")
    a(f"v_add_u32 v{vXr}, {L_XB}, v5")
    for sg in range(1, 4):
        a(f"v_xor_b32 v{vXr + sg}, {32 * sg}, v{vXr}")
    a(f"s_lshl_b32 s11, s{S_WA}, 12")
    a(f"s_lshl_b32 s10, s{S_WA}, 11")
    a(f"s_add_u32 s10, s10, {L_XB}")
    a(f"v_lshrrev_b32 v5, 3, v{V_LANE}")
    a(f"s_mul_i32 s9, s{S_WA}, 112")
    a("v_add_u32 v5, s9, v5")
    a("v_mul_u32_u24 v5, 896, v5")
    a(f"v_and_b32 v7, 1, v{V_G}")
    a("v_lshlrev_b32 v7, 2, v7")
    a(f"v_and_b32 v6, 7, v{V_LANE}")
    a("v_xor_b32 v7, v7, v6")
    a("v_lshl_add_u32 v5, v7, 4, v5")
    a(f"s_lshl_b32 s9, s{S_HP}, 7")
    a(f"v_add_u32 v{vWo}, s9, v5")
    a(f"s_mul_i32 s9, s{S_WA}, 4608")
    a(f"s_add_u32 s9, s9, {L_ARED}")
    a(f"v_mul_u32_u24 v5, 144, v{V_N}")
    a(f"v_lshl_add_u32 v5, v{V_G}, 5, v5")
    a(f"v_add_u32 v{vTw}, s9, v5")
    a(f"v_lshrrev_b32 v5, 1, v{V_G}")
    a(f"v_lshrrev_b32 v6, 2, v{V_N}")
    a("v_lshl_add_u32 v5, v5, 3, v6")
    a("v_mul_u32_u24 v5, 144, v5")
    a(f"v_and_b32 v6, 1, v{V_N}")
    a("v_lshl_add_u32 v5, v6, 6, v5")
    a(f"v_and_b32 v6, 1, v{V_G}")
    a("v_lshl_add_u32 v5, v6, 4, v5")
    a(f"v_bfe_u32 v6, v{V_N}, 1, 1")
    a("v_lshl_add_u32 v5, v6, 3, v5")
    a(f"v_add_u32 v{vTr}, s9, v5")
    a(f"v_min_u32 v5, 13, v{V_LANE}")
    a(f"v_lshlrev_b32 v{vF3}, 6, v5")
    a("s_lshl_b32 s9, s15, 10")
    a(f"v_add_u32 v{vH0}, s9, v{V_L16}")
    a(f"v_xor_b32 v{vH1}, 1024, v{vH0}")
    a(f"v_and_b32 v5, 32, v{V_LANE}")
    a("s_lshl_b32 s9, s15, 4")
    a("s_add_u32 s9, s12, s9")
    a("v_add_u32 v5, s9, v5")
    a(f"v_and_b32 v6, 31, v{V_LANE}")
    a("s_lshl_b32 s9, s14, 5")
    a("s_add_u32 s9, s8, s9")
    a("v_add_u32 v6, s9, v6")
    a(f"v_mul_u32_u24 v{vO3}, 3584, v5")
    a(f"v_lshl_add_u32 v{vO3}, v6, 2, v{vO3}")
    a(f"v_mul_u32_u24 v{vX3}, 896, v5")
    a(f"v_lshl_add_u32 v{vX3}, v6, 1, v{vX3}")
    a(f"v_add_u32 v5, 1, v{V_G}")
    a(f"v_mul_u32_u24 v5, {8 * 7168}, v5")
    a(f"v_sub_u32 v5, v{V_P16}, v5")
    a(f"s_mul_i32 s9, s{S_PG}, 7168")
    a(f"v_add_u32 v{vEA}, s9, v5")
    for i in range(1, 8):
        a(f"v_add_u32 v{vEA + i}, 7168, v{vEA + i - 1}")
    for i in range(8):
        a(f"v_cmp_le_i32 s[{EMASK[i]}:{EMASK[i] + 1}], 0, v{vEA + i}")
    a(f"v_lshlrev_b32 v{vD3}, 16, v{vD3}")
    lam_base(a, LD, LR, LI, A2, TH, T0)
    lam_pow(a, A2, TH, 1, M1, M1 + 1, T0)
    lam_pow(a, A2, TH, 16, M16, M16 + 1, T0)
    lam_pow(a, A2, TH, 64, M64, M64 + 1, T0)
    a(f"v_lshlrev_b32 v{T1}, 9, v{V_G}")
    a(f"v_cvt_f32_u32 v{T1}, v{T1}")
    lam_pow(a, A2, TH, f"v{T1}", MQ, MQ + 1, T0)
    a(f"v_add_f32 v{T0}, -1.0, v{M1}")
    a(f"v_mul_f32 v{T1}, v{LR}, v{LR}")
    a(f"v_fma_f32 v{T1}, v{LI}, v{LI}, v{T1}")
    a(f"v_rcp_f32 v{T1}, v{T1}")
    a(f"v_mul_f32 v{K1}, v{T0}, v{LR}")
    a(f"v_fma_f32 v{K1}, -v{M1 + 1}, v{LI}, v{K1}")
    a(f"v_mul_f32 v{K1 + 1}, v{T0}, v{LI}")
    a(f"v_fma_f32 v{K1 + 1}, v{M1 + 1}, v{LR}, v{K1 + 1}")
    a(f"v_add_f32 v{T1}, v{T1}, v{T1}")
    a(f"v_mul_f32 v{K1}, v{K1}, v{T1}")
    a(f"v_mul_f32 v{K1 + 1}, v{K1 + 1}, v{T1}")
    a(f"v_mov_b32 v{K2}, v{K1 + 1}")
    a(f"v_sub_f32 v{K2 + 1}, 0, v{K1}")
    a(f"s_sub_u32 s9, s11, {L_XB}")
    for sg in range(4):
        a(f"v_add_u32 v{vBr + sg}, s9, v{vXr + sg}")
        a(f"v_add_u32 v{VBRH[sg]}, 0x10000, v{vBr + sg}")
    a("s_lshl_b32 s9, s14, 6")
    a(f"v_xor_b32 v{vCs}, s9, v{vCd}")
    a(f"v_xor_b32 v{vCs + 1}, s9, v{vCd + 1}")
    srd(a, 52, P_AX, X_BYTES)
    srd(a, 56, P_BRE, W_BYTES)
    srd(a, 60, P_BIM, W_BYTES)


CSLOT = [(1, 2), (3, 0), (1, 2), (3, 0)]


def a1(a):
    D0, D1 = 40, 56
    FX = lambda b, tau, sg: 72 + 24 * b + 8 * sg + 4 * tau
    FB = lambda b, sg: 72 + 24 * b + 16 + 4 * sg
    tokx, tokb, tokc = {}, {}, {}
    a(f"s_lshl_b32 s12, s{S_ROT}, 7")
    a("s_mov_b32 s13, s12")
    a("s_mul_i32 s74, s14, 28672")
    a("s_sub_u32 s75, 28672, s74")
    a("s_lshl_b32 s9, s14, 9")
    a("s_add_u32 s72, s74, s9")
    a("s_add_u32 s73, s75, s9")

    def px(p_):
        def f(e):
            a(f"s_add_u32 m0, s10, {8192 * p_ + 1024 * e}")
            thr(a)
            tokx[p_] = a.one(f"buffer_load_dwordx4 v{vXd + e}, s[52:55], s12 offen lds")
            if e:
                rot_step(a, 12, 128, 896)
        return [lambda e=e: f(e) for e in range(2)]

    def pb(p_):
        def f(q):
            a(f"s_add_u32 m0, s11, {16384 * UNIT[p_] + 1024 * q}")
            thr(a)
            tokb[p_] = a.one(f"buffer_load_dwordx4 v{vBd + q % 2}, s[{56 + 4 * (q // 2)}:{59 + 4 * (q // 2)}], s13 offen lds")
            if q == 3:
                rot_step(a, 13, 128, 896)
        return [lambda q=q: f(q) for q in range(4)]

    def pc(l, bs=(0, 1)):
        def f(b, q):
            a(f"s_add_u32 m0, s11, {CSLOT[l][b] * 16384 + q * 1024}")
            a(f"s_add_u32 s12, s{(72 if l < 3 else 74) + b}, {128 * l + (q // 2) * 16 * 896}")
            thr(a)
            tokc[l] = a.one(f"buffer_load_dwordx4 v{(vCd if l < 3 else vCs) + q % 2}, s[56:59], s12 offen lds")
        return [lambda b=b, q=q: f(b, q) for b in bs for q in range(4)]

    def run(L):
        for f in L:
            f()

    dma_c = lambda l: run(pc(l))

    def rd_c(l):
        for sg in range(4 if l < 3 else 2):
            for b in range(2):
                a(f"ds_read_b128 {rng(CF(4 * l + sg, b), 4)}, v{vBr + sg} offset:{CSLOT[l][b] * 16384}")

    wait_cnt(a, C_ST2, 4)
    stamp(a, 6)
    _thr[0] = ENV("THR1", 3)
    run(px(0) + pb(0) + px(1) + pb(1))
    if ENV("AHOLD", 0):
        wait_cnt(a, C_WO, 4, sleep=2)
    else:
        wait_cnt(a, C_QF, 4)
    _thr[0] = THR
    run(px(2) + pb(2))
    pf = lambda p, r: [lambda: prefetch_w(a, p, 68, r)]
    setc = [lambda: (a(f"s_cmp_lt_u32 s{S_WA}, 2"), a(f"s_cselect_b32 s56, s{P_CRE}, s{P_CIM}"),
                     a(f"s_cselect_b32 s57, s{P_CRE + 1}, s{P_CIM + 1}"))]
    sched = {0: px(3) + pb(3)[:2], 1: pb(3)[2:] + px(4), 2: pb(4), 3: pb(5), 4: px(5) + px(6), 5: pb(6),
             6: pf(P_CRE, 126) + pf(P_CIM, 127) + setc, 8: pc(0, (0,)), 9: pc(0, (1,)), 11: pc(1, (0,))}
    STG = ((0, 4, C_XA0), (4, 8, C_XA1), (8, 14, C_XA2))
    for (k0, k1, cnt) in STG:
        a.wait_vm(max(tokx[k1 // 2 - 1], tokb[k1 // 2 - 1]))
        arrive(a, cnt)
        wait_cnt(a, cnt, 4)
        a.lg = 0
        lt = {}

        def rd(s_):
            t = None
            u = UNIT[s_ // 2]
            for sg in range(2):
                q = 2 * (s_ % 2) + sg
                for tau in range(2):
                    a(f"ds_read_b128 {rng(FX(s_ % 2, tau, sg), 4)}, v{vXr + q} offset:{(s_ // 2) * 8192 + tau * 4096}")
                t = a.one(f"ds_read_b128 {rng(FB(s_ % 2, sg), 4)}, v{VBRH[q] if u == 4 else vBr + q} offset:{(u % 4) * 16384}")
            lt[s_] = t
        rd(k0)
        for s_ in range(k0, k1):
            if s_ + 1 < k1:
                rd(s_ + 1)
            a.wait_lg(lt[s_])
            q = list(sched.get(s_, []))
            for sg in range(2):
                for tau in range(2):
                    d = (D0, D1)[tau]
                    c = "0" if s_ == 0 and sg == 0 else rng(d, 16)
                    if not ENV("NOMF1", 0):
                        a(f"{MF32} {rng(d, 16)}, {rng(FX(s_ % 2, tau, sg), 4)}, {rng(FB(s_ % 2, sg), 4)}, {c}")
                    if q:
                        q.pop(0)()
                    elif ASPACE:
                        a(f"s_sleep {ASPACE}")
            assert not q
    run(pc(1, (1,)))
    arrive(a, C_G1)
    stamp(a, 7)
    BP = lambda r: 72 + 2 * r
    T = 6
    for r in range(16):
        a(f"v_permlane16_swap_b32 v{D0 + r}, v{D1 + r}")
    for r in range(16):
        e = r % 2
        a(f"v_pk_mul_f32 {pr(BP(r))}, {pr(K1)}, {pr(D0 + r - e)} op_sel:[0,{e}] op_sel_hi:[1,{e}]")
        a(f"v_pk_fma_f32 {pr(BP(r))}, {pr(K2)}, {pr(D1 + r - e)}, {pr(BP(r))} op_sel:[0,{e},0] op_sel_hi:[1,{e},1]")
        if r >= 2:
            pcmad(a, GS, M1, BP(0) if r == 2 else GS, BP(r - 1), T)
    pcmad(a, GS, M1, GS, BP(15), T)
    a(f"s_lshl_b32 s8, s{S_WA}, 9")
    a(f"s_add_u32 s8, s8, {L_ASCR}")
    a(f"v_lshl_add_u32 v5, v{V_LANE}, 3, s8")
    a(f"ds_write_b64 v5, {pr(GS)}")
    a(f"v_lshl_add_u32 v5, v{V_N}, 3, s8")
    SQ = 104
    for q in range(4):
        a(f"ds_read_b64 {pr(SQ + 2 * q)}, v5 offset:{128 * q}")
    srd(a, 60, P_WS, EG_BYTES, EG_OFF)
    a(f"s_mul_i32 s12, s{S_PG}, 7168")
    a(f"v_mov_b32 v115, s{S_NONCE}")
    a("s_waitcnt lgkmcnt(0)")
    pcmad(a, 112, M16, SQ, SQ + 2, T)
    pcmad(a, 112, M16, 112, SQ + 4, T)
    pcmad(a, 112, M16, 112, SQ + 6, T)
    a("v_mov_b32 v114, v113")
    a(f"v_mov_b32 v113, s{S_NONCE}")
    a("s_mov_b64 exec, 0xffff")
    a(f"buffer_store_dwordx4 v[112:115], v{V_P16}, s[60:63], s12 offen sc1")
    a("s_mov_b64 exec, -1")
    stamp(a, 8)
    if not ENV("NOP2", 0):
        prefetch_w(a, P_WO, 68, 126)
    a.wait_vm(tokc[0])
    rd_c(0)
    a("s_waitcnt lgkmcnt(0)")
    dma_c(2)
    a.wait_vm(tokc[1])
    rd_c(1)
    if EPD:
        a(f"s_sleep {EPD}")
    EGR = 40
    a(f"s_mov_b32 s79, {SPIN}")
    a.label("F_EP")
    for i in range(8):
        a(f"buffer_load_dwordx4 {rng(EGR + 4 * i, 4)}, v{vEA + i}, s[60:63], 0 offen sc1")
        thr(a)
    a("s_mov_b64 s[8:9], 0")
    a("s_waitcnt vmcnt(0)")
    for i in range(8):
        a(f"v_cmp_ne_u32 s[12:13], s{S_NONCE}, v{EGR + 4 * i + 1}")
        a(f"v_cmp_ne_u32 vcc, s{S_NONCE}, v{EGR + 4 * i + 3}")
        a(f"v_mov_b32 v{EGR + 4 * i + 1}, v{EGR + 4 * i + 2}")
        a("s_or_b64 s[12:13], s[12:13], vcc")
        a(f"s_and_b64 s[12:13], s[12:13], s[{EMASK[i]}:{EMASK[i] + 1}]")
        a("s_or_b64 s[8:9], s[8:9], s[12:13]")
    a("s_cbranch_scc0 F_EOK")
    a("s_sleep 8")
    a("s_sub_u32 s79, s79, 1")
    a("s_cmp_lg_u32 s79, 0")
    a("s_cbranch_scc1 F_EP")
    a.label("F_EOK")
    stamp(a, 9)
    a.vm = 0
    rd_c(2)
    a(f"ds_read_b32 v5, v{V_CNT} offset:{4 * C_G1}")
    pcmad(a, GS, M64, EGR, EGR + 4, T)
    for i in range(2, 8):
        pcmad(a, GS, M64, GS, EGR + 4 * i, T)
    a(f"v_pk_mul_f32 {pr(T)}, {pr(MQ)}, {pr(GS)} op_sel:[1,1] op_sel_hi:[1,0] neg_lo:[1,0]")
    a(f"v_pk_fma_f32 {pr(GS)}, {pr(MQ)}, {pr(GS)}, {pr(T)} op_sel_hi:[0,1,1]")
    for sw in ("v_permlane16_swap_b32", "v_permlane32_swap_b32"):
        a(f"v_mov_b32 v{T}, v{GS}")
        a(f"v_mov_b32 v{T + 1}, v{GS + 1}")
        a(f"{sw} v{GS}, v{T}")
        a(f"{sw} v{GS + 1}, v{T + 1}")
        a(f"v_pk_add_f32 {pr(GS)}, {pr(GS)}, {pr(T)}")
    for q in range(3):
        a(f"s_lshl_b64 exec, -1, {16 * (q + 1)}")
        pcmad(a, GS, M16, GS, SQ + 2 * q, T)
    a("s_mov_b64 exec, -1")
    a("s_waitcnt lgkmcnt(0)")
    dma_c(3)
    PKR, PKI = 40, 48
    for r in range(16):
        pcmad(a, BP(r), M1, GS if r == 0 else BP(r - 1), BP(r), T)
        if r % 2 == 0 and r > 0:
            a(f"v_cvt_pk_bf16_f32 v{PKR + r // 2 - 1}, v{BP(r - 2)}, v{BP(r - 1)}")
            a(f"v_cvt_pk_bf16_f32 v{PKI + r // 2 - 1}, v{BP(r - 2) + 1}, v{BP(r - 1) + 1}")
    a(f"v_cvt_pk_bf16_f32 v{PKR + 7}, v{BP(14)}, v{BP(15)}")
    a(f"v_cvt_pk_bf16_f32 v{PKI + 7}, v{BP(14) + 1}, v{BP(15) + 1}")
    a("v_readfirstlane_b32 s78, v5")
    a("s_cmp_ge_u32 s78, 4")
    a("s_cbranch_scc1 F_G1OK")
    wait_cnt(a, C_G1, 4)
    a.label("F_G1OK", flush=False)
    a(f"ds_write_b128 v{vTw}, {rng(PKR, 4)}")
    a(f"ds_write_b128 v{vTw}, {rng(PKR + 4, 4)} offset:16")
    a(f"ds_write_b128 v{vTw}, {rng(PKI, 4)} offset:2304")
    a(f"ds_write_b128 v{vTw}, {rng(PKI + 4, 4)} offset:2320")
    HO = 56
    for part in range(2):
        for tau in range(2):
            for u in range(2):
                r = HO + 8 * part + 4 * tau + 2 * u
                a(f"ds_read_b64_tr_b16 v[{r}:{r + 1}], v{vTr} offset:{part * 2304 + u * 576 + tau * 32}")
    srd(a, 60, P_WS, HF_BYTES, HF_OFF)
    a(f"s_lshl_b32 s8, s{S_HP}, 2")
    a(f"s_add_u32 s8, s8, s{S_WA}")
    a(f"s_mul_i32 s9, s{S_PG}, 56")
    a("s_add_u32 s9, s9, s8")
    a("s_lshl_b32 s9, s9, 11")
    a(f"s_add_u32 s12, s9, {28 * 2048}")
    a(f"s_mul_i32 s13, s{S_PG}, 28")
    a("s_add_u32 s13, s13, s8")
    a("s_lshl_b32 s13, s13, 6")
    a(f"s_add_u32 s13, s13, {HFL_OFF}")
    a("v_mov_b32 v6, 0")
    a("s_waitcnt lgkmcnt(0)")
    for part in range(2):
        for tau in range(2):
            a(f"buffer_store_dwordx4 {rng(HO + 8 * part + 4 * tau, 4)}, v{V_L16}, s[60:63], {'s12' if part else 's9'} offen offset:{1024 * tau} sc1")
    arrive(a, C_ARED)
    a.wait_vm(tokc[3])
    rd_c(3)
    a("s_waitcnt vmcnt(0)")
    a("s_mov_b64 exec, 1")
    a("buffer_store_dword v115, v6, s[64:67], s13 offen sc1")
    a("s_mov_b64 exec, -1")
    stamp(a, 10)
    a("s_waitcnt lgkmcnt(0)")
    arrive(a, C_CDONE)
    srd(a, 52, P_WO, W_BYTES)
    wait_cnt(a, C_CDONE, 4, sleep=2)
    a(f"s_mul_i32 m0, s{S_WA}, 14336")
    a("s_mov_b32 s12, 0")
    for i in range(14):
        a(f"buffer_load_dwordx4 v{vWo}, s[52:55], s12 offen lds")
        thr(a)
        if i < 13:
            a("s_add_u32 m0, m0, 1024")
            a(f"s_add_u32 s12, s12, {8 * 896}")


def a3(a):
    acc = lambda ta, b: 40 + 32 * ta + 16 * b
    a("s_mul_i32 s8, s14, 14")
    a(f"s_mul_i32 s13, s{S_PG}, 28")
    a("s_add_u32 s13, s13, s8")
    a("s_lshl_b32 s13, s13, 6")
    a(f"s_add_u32 s13, s13, {HFL_OFF}")
    a(f"s_lshl_b32 s12, s{S_PG}, 1")
    a("s_add_u32 s12, s12, s15")
    a("s_mul_i32 s12, s12, 28")
    a("s_lshl_b32 s9, s14, 1")
    a("s_add_u32 s9, s9, s12")
    a("s_add_u32 s9, s9, 12")
    a("s_lshl_b32 s9, s9, 11")
    a("s_lshl_b32 s8, s14, 4")
    a("s_add_u32 s12, s12, s8")
    a("s_lshl_b32 s12, s12, 11")
    srd(a, 52, P_AX, X_BYTES)
    srd(a, 56, P_OUT, OUT_BYTES)
    F = acc(0, 0)
    for r in range(16):
        if r % 4 == 0:
            a(f"s_mov_b32 s8, {896 * r}")
        a(f"buffer_load_ushort v{F + r}, v{vX3}, s[52:55], s8 offen offset:{896 * (r % 4)}")
        if r % 2:
            thr(a)
    poll_flags(a, vF3, 64, "s13", sleep=8)
    arrive(a, C_WO)
    stamp(a, 11)
    a.vm = 0
    pool = [16, 24, 32, 104, 112, 240, 248]
    hreg, tok = {}, {}

    def step_off(kk):
        if kk == 11:
            a("s_mov_b32 s12, s9")
        elif kk % 2 == 1:
            a("s_add_u32 s12, s12, 4096")

    for kk in range(7):
        r = hreg[kk] = pool[kk]
        off = (kk % 2) * 2048
        a(f"buffer_load_dwordx4 {rng(r, 4)}, v{vH0}, s[60:63], s12 offen offset:{off} sc1")
        tok[kk] = a.one(f"buffer_load_dwordx4 {rng(r + 4, 4)}, v{vH1}, s[60:63], s12 offen offset:{off} sc1")
        step_off(kk)
        thr(a)
    a(f"s_mul_i32 s10, s{S_WA}, 12288")
    a(f"s_add_u32 s10, s10, {L_ARED}")
    a(f"v_add_u32 v13, s10, v{V_L16}")
    wait_cnt(a, C_ARED, 4)
    for kk in range(7, 13):
        off = (kk % 2) * 2048
        a(f"s_add_u32 m0, s10, {(kk - 7) * 2048 - off + 4096}")
        a("s_sub_u32 m0, m0, 4096")
        a(f"buffer_load_dwordx4 v{vH0}, s[60:63], s12 offen offset:{off} sc1 lds")
        a("s_add_u32 m0, m0, 1024")
        thr(a)
        tok[kk] = a.one(f"buffer_load_dwordx4 v{vH1}, s[60:63], s12 offen offset:{off} sc1 lds")
        step_off(kk)
    a(f"s_setprio {ENV('A3PRIO', 0)}")
    if ENV("A3GATE", 0):
        wait_cnt(a, C_RED, 1, sleep=4)
    for r in range(16):
        a(f"v_lshlrev_b32 v{F + r}, 16, v{F + r}")
        a(f"v_mul_f32 v{F + r}, v{F + r}, v{vD3}")
    a.lg = 0
    lt = {}
    for kk in range(14):
        if kk < 7 or kk == 13:
            a.wait_vm(tok[kk])
        else:
            a.wait_lg(lt[kk])
        for ta in range(2):
            for b in range(2):
                d = acc(ta, b)
                c = "0" if kk == 0 and d != F else rng(d, 16)
                if not ENV("NOMF3", 0):
                    a(f"{MF32} {rng(d, 16)}, {rng(hreg[kk] + 4 * ta, 4)}, {rng(CF(kk, b), 4)}, {c}")
        if kk == 0:
            r = hreg[13] = hreg[0]
            a(f"buffer_load_dwordx4 {rng(r, 4)}, v{vH0}, s[60:63], s12 offen offset:2048 sc1")
            tok[13] = a.one(f"buffer_load_dwordx4 {rng(r + 4, 4)}, v{vH1}, s[60:63], s12 offen offset:2048 sc1")
        elif kk <= 6:
            n = kk + 6
            r = hreg[n] = hreg[kk]
            if kk == 1:
                a.wait_vm(tok[12])
            a(f"ds_read_b128 {rng(r, 4)}, v13 offset:{(n - 7) * 2048}")
            lt[n] = a.one(f"ds_read_b128 {rng(r + 4, 4)}, v13 offset:{(n - 7) * 2048 + 1024}")
        if kk == 12:
            arrive(a, C_ARED)
    a("s_setprio 2")
    wait_cnt(a, C_ARED, 8)
    for j in range(1, 4):
        a(f"s_xor_b32 s8, s{S_WA}, {j}")
        a("s_mul_i32 s8, s8, 12288")
        a(f"s_add_u32 s8, s8, {L_ARED}")
        a(f"v_add_u32 v5, s8, v{V_L16}")
        for qd in range(4):
            a(f"ds_write_b128 v5, {rng(acc(j // 2, j % 2) + 4 * qd, 4)} offset:{(j - 1) * 4096 + qd * 1024}")
    a("s_waitcnt lgkmcnt(0)")
    arrive(a, C_ARED)
    wait_cnt(a, C_ARED, 12)
    a.lg = 0
    toks = {}
    for qd in range(4):
        for j in range(1, 4):
            toks[qd, j] = a.one(f"ds_read_b128 {rng(acc(j // 2, j % 2) + 4 * qd, 4)}, v13 offset:{(j - 1) * 4096 + qd * 1024}")
    a("s_mov_b32 s8, 0")
    for qd in range(4):
        a.wait_lg(toks[qd, 3])
        for j in range(1, 4):
            for r in range(0, 4, 2):
                x, y = F + 4 * qd + r, acc(j // 2, j % 2) + 4 * qd + r
                a(f"v_pk_add_f32 v[{x}:{x + 1}], v[{x}:{x + 1}], v[{y}:{y + 1}]")
        for r in range(4):
            a(f"buffer_store_dword v{F + 4 * qd + r}, v{vO3}, s[56:59], s8 offen offset:{3584 * (r % 2)}{OSC1}")
            if r % 2 == 1:
                a("s_add_u32 s8, s8, 7168")
    stamp(a, 13)


if __name__ == "__main__":
    import sys
    NAME = "concat_heads__ssm_conv_s5__grouped_kv_mqa__prompt"
    ref = open(f"cdna_kernels/{NAME}.s.ref").read().split("\n")
    head = [l for l in ref if l.startswith(";") and "@launch" not in l and "Override" not in l and "grid=ceil" not in l]
    a = Asm()
    a.raw("\n".join(head))
    KN = NAME + "_kernel" if ENV("SINGLE", 0) else "f_kernel"
    a.raw(f"; @launch {'' if ENV('SINGLE', 0) else 'kernel=f_kernel '}grid=(256,1,1) block=(512,1,1) lds={F_LDS}")
    a.raw('.amdgcn_target "amdgcn-amd-amdhsa--gfx950"\n.text')
    gen_g(a, KN)
    a.raw(".p2align 8\n.fill 4096, 4, 0xbf800000")
    a.raw('.section .rodata,"a"')
    a.raw(kernel_desc(KN, 256))
    out = sys.argv[1] if len(sys.argv) > 1 else f"cdna_kernels/{NAME}.s"
    open(out, "w").write(a.text())
    print("wrote", out, "nops", a.nops)
```

```python
from gen_common import *

MF16 = "v_mfma_f32_16x16x32_bf16"
MF32 = "v_mfma_f32_32x32x16_bf16"
ENV = lambda k, d: int(os.environ.get(k, str(d)))
ASPACE = ENV("ASPACE", 1)
PFW1 = ENV("PFW1", 1)
OSC1 = " sc1" if ENV("OSC1", 0) else ""
POLLD = ENV("POLLD", 0)
EPD = ENV("EPD", 0)
THR = ENV("THR", 4)
BPRI = ENV("BPRI", 1)
WOB = 0

L_WQ = 0
L_WKV = 57344
L_XB = 86016
L_QF = 143360
L_KVP = 151552
L_ASCR = 161536
L_BRED = 0
L_PX = L_BRED
L_ARED = 49152
L_HS = 65536
L_WO = 98304
L_MISC = 163584
F_LDS = 163840
(C_ST0, C_ST1, C_ST2, C_QF, C_RED, C_WO, C_RED2, C_NONCE, C_BAD, C_PX0, C_PX1, C_KVL, C_KVP,
 C_XA0, C_XA1, C_XA2, C_G1, C_ARED, C_CDONE, C_FB) = range(20)

FLG_OFF = 0x300000
KVF_OFF = 0
OFL_OFF = 0x4000
HFL_OFF = 0x14000
FLG_BYTES = 0x24000
EG_OFF = 0x340000
EG_BYTES = 32 * 448 * 16
HF_OFF = H_OFF
HF_BYTES = 32 * 2 * 28 * 2048
SPIN = 1 << 14

S_WA, S_PG, S_HP, S_ROT, S_NONCE = 5, 50, 51, 76, 77
V_PF, V_LANE, V_N, V_G, V_L16, V_CNT, V_ONE = 0, 1, 2, 3, 4, 14, 15
SB1, SB2 = ENV('SB1', 6), ENV('SB2', 10)
STAGES = [(0, SB1, C_ST0), (SB1, SB2, C_ST1), (SB2, 14, C_ST2)]


M1, M16, M64, MQ, K1, K2, GS = 16, 18, 20, 22, 24, 26, 28
V_P16 = 30
vXd, vBd, vXr, vBr, vCs = 32, 34, 36, 8, 12
VBRH = [31, 245, 246, 247]
vCd, vWo, vTw, vTr, vEA = 240, 242, 243, 244, 248
vH0, vH1, vO3, vX3, vF3, vD3 = 120, 121, 122, 123, 124, 125
EMASK = [18, 20, 30, 34, 36, 38, 40, 46]
CF = lambda kk, b: 128 + 8 * kk + 4 * b
UNIT = [4, 0, 1, 2, 3, 4, 0]


def rng(r, n):
    return f"v[{r}:{r + n - 1}]"


_uid = [0]


def uid(p):
    _uid[0] += 1
    return f"{p}_{_uid[0]}"


def arrive(a, c, vbase=V_CNT):
    a("s_mov_b64 exec, 1")
    a(f"ds_add_u32 v{vbase}, v{V_ONE} offset:{4 * c}")
    a("s_mov_b64 exec, -1")


def wait_cnt(a, c, target, vt=5, st=78, sleep=1, nz=False, vbase=V_CNT):
    l, d = uid("LW"), uid("LD")
    a(f"s_mov_b32 s79, {SPIN}")
    a.label(l, flush=False)
    a(f"ds_read_b32 v{vt}, v{vbase} offset:{4 * c}")
    a("s_waitcnt lgkmcnt(0)")
    a(f"v_readfirstlane_b32 s{st}, v{vt}")
    a(f"s_cmp_lg_u32 s{st}, 0" if nz else f"s_cmp_ge_u32 s{st}, {target}")
    a(f"s_cbranch_scc1 {d}")
    a(f"s_sleep {sleep}")
    a("s_sub_u32 s79, s79, 1")
    a("s_cmp_lg_u32 s79, 0")
    a(f"s_cbranch_scc1 {l}")
    a.label(d, flush=False)


def poll_flags(a, vaddr, srd_, soff, vt=5, sleep=2):
    l, d = uid("PW"), uid("PD")
    a(f"s_mov_b32 s79, {SPIN}")
    a.label(l, flush=False)
    a(f"buffer_load_dword v{vt}, v{vaddr}, s[{srd_}:{srd_ + 3}], {soff} offen sc1")
    a("s_waitcnt vmcnt(0)")
    a(f"v_cmp_ne_u32 vcc, s{S_NONCE}, v{vt}")
    a(f"s_cbranch_vccz {d}")
    a(f"s_sleep {sleep}")
    a("s_sub_u32 s79, s79, 1")
    a("s_cmp_lg_u32 s79, 0")
    a(f"s_cbranch_scc1 {l}")
    a.label(d, flush=False)


def rot_step(a, sk, step, wrap):
    a(f"s_add_u32 s{sk}, s{sk}, {step}")
    a(f"s_cmp_ge_u32 s{sk}, {wrap}")
    a(f"s_cselect_b32 s{sk}, 0, s{sk}")


def blk_dma_voffset(a, vd, vrow, rows2=8):
    a(f"v_mul_u32_u24 v5, 896, v{vrow}")
    a(f"v_and_b32 v6, 7, v{V_LANE}")
    a(f"v_xor_b32 v6, v6, v{V_G}")
    a(f"v_lshl_add_u32 v{vd}, v6, 4, v5")
    a(f"v_xor_b32 v6, 4, v6")
    a(f"v_lshl_add_u32 v5, v6, 4, v5")
    a(f"v_add_u32 v{vd + 1}, {896 * rows2}, v5")


def xb_dma_voffset(a, vd, s_row0):
    a(f"v_lshrrev_b32 v7, 3, v{V_LANE}")
    a(f"v_add_u32 v7, {s_row0}, v7")
    blk_dma_voffset(a, vd, 7)


def xfrag16_base(a, vd, base):
    a(f"v_lshrrev_b32 v5, 1, v{V_N}")
    a(f"v_xor_b32 v5, v5, v{V_G}")
    a("v_lshlrev_b32 v5, 4, v5")
    a(f"v_lshl_add_u32 v5, v{V_N}, 7, v5")
    a(f"v_add_u32 v{vd}, {base}, v5")
    a(f"v_xor_b32 v{vd + 1}, 64, v{vd}")


def prefetch_w(a, ptr, sr, vd):
    srd(a, sr, ptr, W_BYTES)
    a(f"buffer_load_dword v{vd}, v{V_PF}, s[{sr}:{sr + 3}], 0 offen")


def prefetch_xa(a, sr, vd):
    srd(a, sr, P_AX, X_BYTES)
    a(f"s_mul_i32 s8, s{S_PG}, 448")
    a(f"s_mul_i32 s9, s{S_HP}, 56")
    a("s_add_u32 s8, s8, s9")
    a(f"s_mul_i32 s9, s{S_WA}, 14")
    a("s_add_u32 s8, s8, s9")
    a(f"v_min_u32 v5, 13, v{V_LANE}")
    a("v_add_lshl_u32 v5, v5, s8, 7")
    a(f"buffer_load_dword v{vd}, v5, s[{sr}:{sr + 3}], 0 offen")


def gen_g(a, name):
    a.raw(f".globl {name}\n.p2align 8\n.type {name},@function\n{name}:")
    a.hist = []
    a("s_cmp_ge_u32 s2, 256")
    a("s_cbranch_scc1 F_END")
    stamp(a, 0)
    load_args(a)
    a("s_memrealtime s[6:7]")
    a("v_lshrrev_b32 v5, 6, v0")
    a(f"v_and_b32 v{V_LANE}, 63, v0")
    a("v_readfirstlane_b32 s3, v5")
    a(f"v_and_b32 v{V_N}, 15, v0")
    a(f"v_bfe_u32 v{V_G}, v0, 4, 2")
    a(f"v_lshlrev_b32 v{V_L16}, 4, v{V_LANE}")
    a(f"v_mov_b32 v{V_CNT}, {L_MISC}")
    a(f"v_mov_b32 v{V_ONE}, 1")
    a(f"v_lshl_add_u32 v5, v{V_LANE}, 2, v{V_CNT}")
    a("v_mov_b32 v6, 0")
    a("ds_write_b32 v5, v6")
    a("s_and_b32 s4, s2, 7")
    a("s_lshr_b32 s12, s2, 3")
    a("s_getpc_b64 s[10:11]")
    a("s_lshl_b32 s9, s12, 10")
    a("v_and_b32 v5, 7, v0")
    a("v_lshl_add_u32 v5, v5, 7, s9")
    a("s_cmp_lg_u32 s3, 3")
    a("s_cbranch_scc1 F_NPF")
    a("global_load_dword v8, v5, s[10:11]")
    a.label("F_NPF", flush=False)
    a("s_lshr_b32 s8, s12, 3")
    a(f"s_lshl_b32 s{S_PG}, s4, 2")
    a(f"s_add_u32 s{S_PG}, s{S_PG}, s8")
    a(f"s_and_b32 s{S_HP}, s12, 7")
    a(f"s_and_b32 s{S_WA}, s3, 3")
    a("s_lshl_b32 s8, s8, 1")
    a(f"s_add_u32 s8, s8, s{S_HP}")
    a("s_add_u32 s8, s8, s4")
    a("s_mul_i32 s9, s8, 9363")
    a("s_lshr_b32 s9, s9, 16")
    a("s_mul_i32 s9, s9, 7")
    a(f"s_sub_u32 s{S_ROT}, s8, s9")
    a("s_mul_i32 s9, s12, 98")
    a(f"s_mul_i32 s8, s{S_WA}, 25")
    a("s_add_u32 s9, s9, s8")
    a(f"v_add_u32 v5, s9, v{V_LANE}")
    a("v_lshlrev_b32 v5, 7, v5")
    a(f"v_cmp_gt_u32 vcc, 25, v{V_LANE}")
    a("v_mov_b32 v6, 0x7f000000")
    a(f"v_cndmask_b32 v{V_PF}, v6, v5, vcc")
    a("s_cmp_lt_u32 s3, 4")
    a("s_cbranch_scc1 F_B")
    a_front(a)
    a.label("F_B")
    b_front(a)
    attention(a)
    out_proj(a)
    fallback(a)
    a_main(a)
    a.label("F_END")
    a("s_endpgm")


def a_front(a):
    a.vm = a.lg = 0
    a("s_setprio 3")
    vXd, vWd, vT, vXr, vSt = 12, 16, 17, 22, 20
    XF = lambda i: 48 + 4 * i
    WF = lambda i, nt: 64 + 8 * i + 4 * nt
    ACC = 112
    a(f"s_lshr_b32 s14, s{S_HP}, 1")
    a(f"s_lshl_b32 s8, s{S_PG}, 6")
    a("s_lshl_b32 s9, s14, 4")
    a("s_add_u32 s8, s8, s9")
    xb_dma_voffset(a, vXd, "s8")
    a(f"v_lshrrev_b32 v5, 2, v{V_LANE}")
    a("v_mul_u32_u24 v5, 56, v5")
    a(f"v_and_b32 v6, 2, v{V_G}")
    a(f"v_and_b32 v7, 3, v{V_LANE}")
    a("v_xor_b32 v6, v6, v7")
    a(f"v_lshl_add_u32 v{vWd}, v6, 4, v5")
    a(f"s_lshl_b32 s10, s{S_WA}, 12")
    a(f"s_add_u32 s10, s10, {L_WKV}")
    a(f"s_lshl_b32 s11, s{S_WA}, 13")
    a("s_lshl_b32 s9, s14, 11")
    a("s_add_u32 s11, s11, s9")
    a(f"s_add_u32 s11, s11, {L_XB}")
    a(f"s_add_u32 s15, s{S_ROT}, s{S_WA}")
    a(f"s_lshl_b32 s8, s{S_HP}, 6")
    a(f"s_lshl_b32 s9, s{S_WA}, 4")
    a("s_add_u32 s9, s8, s9")
    a(f"v_add_u32 v5, s9, v{V_N}")
    a("v_min_u32 v5, 447, v5")
    a("v_lshlrev_b32 v5, 1, v5")
    a(f"s_and_b32 s9, s{S_WA}, 1")
    a("s_lshl_b32 s9, s9, 5")
    a("s_add_u32 s9, s8, s9")
    a(f"v_and_b32 v6, 31, v{V_LANE}")
    a("v_add_u32 v6, s9, v6")
    a("v_min_u32 v6, 447, v6")
    a("v_lshlrev_b32 v6, 1, v6")
    a("s_waitcnt lgkmcnt(0)")
    stamp(a, 1)
    a(f"global_load_ushort v100, v5, s[{P_LDT}:{P_LDT + 1}]")
    a(f"global_load_ushort v101, v5, s[{P_LRE}:{P_LRE + 1}]")
    a(f"global_load_ushort v102, v5, s[{P_LIM}:{P_LIM + 1}]")
    a(f"global_load_ushort v{vD3}, v6, s[{P_DSK}:{P_DSK + 1}]")
    srd(a, 52, P_BX, X_BYTES)
    a(f"s_bitcmp1_b32 s{S_HP}, 0")
    a(f"s_cselect_b32 s56, s{P_WV}, s{P_WK}")
    a(f"s_cselect_b32 s57, s{P_WV + 1}, s{P_WK + 1}")
    a(f"s_mov_b32 s58, {WKV_BYTES}")
    a("s_mov_b32 s59, 0x00020000")
    toks = {}
    for i in (1, 0):
        if i == 1:
            a(f"s_cmp_eq_u32 s{S_WA}, 3")
            a("s_cbranch_scc1 F_A3S")
        a(f"s_add_u32 s12, s15, {4 * i}")
        a("s_sub_u32 s13, s12, 7")
        a("s_cselect_b32 s12, s12, s13")
        a(f"s_add_u32 m0, s11, {32768 * i}")
        a("s_mul_i32 s13, s12, 3584")
        a("s_lshl_b32 s12, s12, 7")
        a(f"buffer_load_dwordx4 v{vXd}, s[52:55], s12 offen lds")
        a("s_add_u32 m0, m0, 1024")
        a("s_nop 0")
        a(f"buffer_load_dwordx4 v{vXd + 1}, s[52:55], s12 offen lds")
        a(f"s_add_u32 m0, s10, {16384 * i}")
        for q in range(4):
            if q:
                a("s_add_u32 m0, m0, 128")
            toks[i] = a.one(f"buffer_load_dwordx4 v{vWd}, s[56:59], s13 offen offset:{896 * q} lds")
        if i == 1:
            a.label("F_A3S", flush=False)
    a("s_barrier")
    stamp(a, 2)
    a(f"v_lshrrev_b32 v5, 2, v{V_N}")
    a(f"v_lshl_add_u32 v5, v{V_G}, 3, v5")
    a("v_lshlrev_b32 v5, 6, v5")
    a(f"v_and_b32 v6, 1, v{V_G}")
    a("v_lshl_add_u32 v5, v6, 5, v5")
    a(f"v_and_b32 v6, 3, v{V_N}")
    a("v_lshl_add_u32 v5, v6, 3, v5")
    a(f"v_add_u32 v{vT}, s10, v5")
    a(f"v_xor_b32 v{vT + 1}, 32, v{vT}")
    xfrag16_base(a, vXr, "s11")
    for r in range(8):
        a(f"v_mov_b32 v{ACC + r}, 0")
    a(f"s_lshl_b32 s8, s{S_WA}, 11")
    a(f"s_add_u32 s8, s8, {L_KVP}")
    a(f"v_add_u32 v21, s8, v{V_L16}")
    srd(a, 60, P_WS, 0x40000, KV_OFF)
    srd(a, 64, P_WS, FLG_BYTES, FLG_OFF)
    srd(a, 68, P_DBG, 256)
    a(f"s_lshl_b32 s8, s{S_PG}, 1")
    a("s_lshr_b32 s9, s14, 1")
    a("s_add_u32 s8, s8, s9")
    a("s_lshl_b32 s8, s8, 12")
    a("s_and_b32 s9, s14, 1")
    a("v_mov_b32 v30, 0")

    def reads(i):
        t = None
        for e in range(2):
            a(f"ds_read_b128 {rng(XF(2 * i + e), 4)}, v{vXr + e} offset:{32768 * i}")
            for nt in range(2):
                for u in range(2):
                    r = WF(2 * i + e, nt) + 2 * u
                    t = a.one(f"ds_read_b64_tr_b16 v[{r}:{r + 1}], v{vT + nt} offset:{16384 * i + 2048 * e + u * 256}")
        return t

    a(f"s_cmp_eq_u32 s{S_WA}, 3")
    a("s_cbranch_scc1 F_A3R")
    a.wait_vm(toks[1])
    reads(1)
    a.label("F_A3R", flush=False)
    a.wait_vm(toks[0])
    reads(0)
    arrive(a, C_KVL)
    stamp(a, 3)

    def mfmas(is_v):
        lab = uid("F_MS")
        a(f"s_cmp_eq_u32 s{S_WA}, 3")
        a(f"s_cbranch_scc1 {lab}")
        for i in (3, 2, 1, 0):
            if i == 3:
                a("s_waitcnt lgkmcnt(11)")
            if i == 1:
                a.label(lab, flush=False)
                a("s_waitcnt lgkmcnt(0)")
            for nt in range(2):
                d = ACC + 4 * nt
                w, x = rng(WF(i, nt), 4), rng(XF(i), 4)
                a(f"{MF16} {rng(d, 4)}, {x if is_v else w}, {w if is_v else x}, {rng(d, 4)}")

    a(f"s_bitcmp1_b32 s{S_HP}, 0")
    a("s_cbranch_scc1 F_VM")
    mfmas(False)
    a("s_branch F_KVM")
    a.label("F_VM", flush=False)
    mfmas(True)
    a.label("F_KVM")
    a(f"s_cmp_eq_u32 s{S_WA}, 3")
    a("s_cbranch_scc1 F_KVF")
    a(f"ds_write_b128 v21, {rng(ACC, 4)}")
    a(f"ds_write_b128 v21, {rng(ACC + 4, 4)} offset:1024")
    a("s_waitcnt lgkmcnt(0)")
    arrive(a, C_KVP)
    a("s_branch F_AM")
    a.label("F_KVF")
    a("buffer_load_dword v31, v30, s[68:71], 0 offen sc1")
    a(f"v_add_u32 v21, {L_KVP}, v{V_L16}")
    a(f"v_cmp_eq_u32 s[72:73], 3, v{V_G}")
    a(f"v_cmp_le_u32 s[74:75], 12, v{V_N}")
    wait_cnt(a, C_KVP, 3, sleep=0)
    for q in range(6):
        a(f"ds_read_b128 {rng(48 + 4 * q, 4)}, v21 offset:{1024 * q}")
    a(f"s_lshl_b32 s12, s{S_PG}, 3")
    a(f"s_add_u32 s12, s12, s{S_HP}")
    a("s_lshl_b32 s12, s12, 6")
    a(f"s_bitcmp1_b32 s{S_HP}, 0")
    a("s_cbranch_scc1 F_VE")

    def adds():
        a("s_waitcnt lgkmcnt(0)")
        for q in range(3):
            for r in range(0, 8, 2):
                add2(a, ACC + r, 48 + 8 * q + r)

    a("s_lshl_b32 s9, s9, 8")
    a("s_add_u32 s8, s8, s9")
    a(f"v_lshlrev_b32 v{vSt}, 9, v{V_G}")
    a(f"v_lshl_add_u32 v{vSt}, v{V_N}, 4, v{vSt}")
    a(f"s_mov_b32 s14, {f32(CSCALE)}")
    a("v_mov_b32 v6, 0x3f803f80")
    a("v_mov_b32 v7, 0x00003f80")
    adds()
    for r in range(8):
        a(f"v_mul_f32 v{ACC + r}, s14, v{ACC + r}")
    for r in range(4):
        a(f"v_cvt_pk_bf16_f32 v{8 + r}, v{ACC + 2 * r}, v{ACC + 2 * r + 1}")
    a("v_cndmask_b32 v10, v10, v6, s[72:73]")
    a("v_cndmask_b32 v11, v11, v7, s[72:73]")
    a(f"buffer_store_dwordx4 v[8:11], v{vSt}, s[60:63], s8 offen sc1")
    a("s_branch F_KVPUB")
    a.label("F_VE")
    a("s_lshl_b32 s9, s9, 10")
    a("s_add_u32 s8, s8, s9")
    a(f"v_and_b32 v5, 1, v{V_G}")
    a("v_lshlrev_b32 v5, 9, v5")
    a(f"v_lshl_add_u32 v5, v{V_N}, 4, v5")
    a(f"v_lshrrev_b32 v6, 1, v{V_G}")
    a(f"v_lshl_add_u32 v{vSt}, v6, 3, v5")
    a(f"v_cmp_eq_u32 vcc, 12, v{V_N}")
    a("v_mov_b32 v6, 0x3f803f80")
    a("v_cndmask_b32 v6, 0, v6, vcc")
    adds()
    for r in range(4):
        a(f"v_cvt_pk_bf16_f32 v{8 + r}, v{ACC + 2 * r}, v{ACC + 2 * r + 1}")
    a("v_cndmask_b32 v10, v10, v6, s[74:75]")
    a("v_cndmask_b32 v11, v11, v6, s[74:75]")
    a(f"buffer_store_dwordx2 v[8:9], v{vSt}, s[60:63], s8 offen offset:2048 sc1")
    a(f"buffer_store_dwordx2 v[10:11], v{vSt}, s[60:63], s8 offen offset:2304 sc1")
    a.label("F_KVPUB")
    stamp(a, 4)
    a(f"s_mov_b32 s79, {SPIN}")
    a("s_waitcnt vmcnt(0)")
    a.label("F_NP", flush=False)
    a(f"v_readfirstlane_b32 s{S_NONCE}, v31")
    a(f"s_cmp_lg_u32 s{S_NONCE}, 0")
    a("s_cbranch_scc1 F_NOK")
    a("buffer_load_dword v31, v30, s[68:71], 0 offen sc1")
    a("s_waitcnt vmcnt(0)")
    a("s_sub_u32 s79, s79, 1")
    a("s_cmp_lg_u32 s79, 0")
    a("s_cbranch_scc1 F_NP")
    a.label("F_NOK", flush=False)
    a("s_mov_b64 exec, 1")
    a(f"buffer_store_dword v31, v30, s[64:67], s12 offen offset:{KVF_OFF} sc1")
    a(f"ds_write_b32 v{V_CNT}, v31 offset:{4 * C_NONCE}")
    a("s_mov_b64 exec, -1")
    stamp(a, 2)
    a("s_branch F_AM")


def b_front(a):
    a.vm = a.lg = 0
    a("s_setprio 2")
    vWd, vXd, vQ, vT, vXr = 12, 28, 13, 16, 18
    a(f"v_lshrrev_b32 v5, 3, v{V_LANE}")
    a("s_lshl_b32 s9, s3, 3")
    a("v_add_u32 v6, s9, v5")
    a("v_mul_u32_u24 v6, 896, v6")
    a(f"v_bfe_u32 v7, v{V_LANE}, 1, 2")
    a("v_bfe_u32 v5, v5, 1, 1")
    a("v_xor_b32 v7, v7, v5")
    a("s_and_b32 s9, s3, 1")
    a("s_lshl_b32 s9, s9, 1")
    a("v_xor_b32 v7, s9, v7")
    a("v_lshrrev_b32 v5, 1, v7")
    a("v_mul_u32_u24 v5, 56, v5")
    a("v_add_u32 v6, v6, v5")
    a("v_and_b32 v5, 1, v7")
    a("v_lshl_add_u32 v6, v5, 5, v6")
    a(f"v_and_b32 v5, 1, v{V_LANE}")
    a("v_lshl_add_u32 v6, v5, 4, v6")
    a(f"s_mul_i32 s9, s{S_HP}, 112")
    a(f"v_add_u32 v{vWd}, s9, v6")
    a(f"s_lshl_b32 s8, s{S_PG}, 6")
    a("s_lshl_b32 s9, s3, 4")
    a("s_add_u32 s8, s8, s9")
    xb_dma_voffset(a, vXd, "s8")
    a("s_waitcnt lgkmcnt(0)")
    stamp(a, 1)
    a("s_or_b32 s8, s2, s3")
    a("s_cmp_lg_u32 s8, 0")
    a("s_cbranch_scc1 F_NN")
    srd(a, 68, P_DBG, 256)
    a("s_or_b32 s8, s6, 1")
    a("v_mov_b32 v5, s8")
    a("v_mov_b32 v6, 0")
    a("buffer_store_dword v5, v6, s[68:71], 0 offen sc1")
    a.label("F_NN")
    srd(a, 52, P_WQ, W_BYTES)
    srd(a, 56, P_BX, X_BYTES)
    a(f"s_lshl_b32 s12, s{S_ROT}, 7")
    a("s_lshl_b32 s10, s3, 10")
    a("s_lshl_b32 s11, s3, 11")
    a("s_barrier")
    if ENV("QPF", 0):
        a(f"buffer_load_dword v9, v{V_PF}, s[52:55], 0 offen")
    if ENV("KVLW", 0):
        wait_cnt(a, C_KVL, 4)
    toks = {}
    BTHR = ENV("BTHR", 0)

    def bthr():
        if BTHR:
            a(f"s_waitcnt vmcnt({BTHR})")

    def dma_pair(p_):
        a(f"s_add_u32 m0, s11, {L_XB + 8192 * p_}")
        a("s_mul_i32 s13, s12, 448")
        a(f"buffer_load_dwordx4 v{vXd}, s[56:59], s12 offen lds")
        a("s_add_u32 m0, m0, 1024")
        a("s_nop 0")
        a(f"buffer_load_dwordx4 v{vXd + 1}, s[56:59], s12 offen lds")
        a(f"s_add_u32 m0, s10, {L_WQ + 8192 * p_}")
        if p_ < 6:
            rot_step(a, 12, 128, 896)
        bthr()
        a(f"buffer_load_dwordx4 v{vWd}, s[52:55], s13 offen lds")
        a("s_add_u32 m0, m0, 4096")
        a(f"s_add_u32 s13, s13, {32 * 896}")
        toks[2 * p_ + 1] = a.one(f"buffer_load_dwordx4 v{vWd}, s[52:55], s13 offen lds")
        bthr()

    NB0 = ENV("NB0", 7)
    for p_ in range(NB0):
        dma_pair(p_)
    stamp(a, 2)
    if PFW1 == 1:
        prefetch_xa(a, 60, 10)
        prefetch_w(a, P_BRE, 60, 11)
    srd(a, 64, P_WS, FLG_BYTES, FLG_OFF)
    a(f"v_cmp_eq_u32 s[72:73], 3, v{V_G}")
    a(f"v_lshrrev_b32 v5, 2, v{V_N}")
    a(f"v_lshl_add_u32 v5, v{V_G}, 3, v5")
    a("v_lshlrev_b32 v5, 7, v5")
    a(f"v_lshrrev_b32 v6, 3, v{V_N}")
    a("v_lshl_add_u32 v5, v6, 5, v5")
    a(f"v_and_b32 v6, 1, v{V_G}")
    a("v_lshl_add_u32 v5, v6, 6, v5")
    a(f"v_and_b32 v6, 3, v{V_N}")
    a("v_lshl_add_u32 v5, v6, 3, v5")
    a("s_and_b32 s9, s3, 1")
    a("s_lshl_b32 s9, s9, 6")
    a(f"v_xor_b32 v{vT}, s9, v5")
    a(f"v_xor_b32 v{vT + 1}, 32, v{vT}")
    a("s_lshr_b32 s8, s3, 1")
    a("s_lshl_b32 s8, s8, 12")
    a(f"s_add_u32 s8, s8, {L_XB}")
    xfrag16_base(a, vXr, "s8")
    a("s_lshl_b32 s8, s3, 11")
    a(f"s_add_u32 s8, s8, {L_QF}")
    a(f"v_lshlrev_b32 v5, 9, v{V_G}")
    a(f"v_lshl_add_u32 v5, v{V_N}, 4, v5")
    a(f"v_add_u32 v{vQ}, s8, v5")
    XF = lambda b, f: 48 + 8 * b + 4 * f
    WF = lambda b, nt: 80 + 8 * b + 4 * nt
    ACC = lambda f, nt: 112 + 8 * f + 4 * nt
    for (k0, k1, cnt) in STAGES:
        a.wait_vm(toks[k1 - 1])
        arrive(a, cnt)
        wait_cnt(a, cnt, 4, sleep=0)
        if k0 == 0:
            stamp(a, 3)
            if ENV("B2POS", -1) < 0:
                for p_ in range(NB0, ENV("NB1", 7)):
                    dma_pair(p_)
        if cnt == C_ST1:
            for p_ in range(max(NB0, ENV("NB1", 7)), 7):
                dma_pair(p_)
        a.lg = 0
        lt = {}

        def rd(s_):
            for f in range(2):
                a(f"ds_read_b128 {rng(XF(s_ % 3, f), 4)}, v{vXr + s_ % 2} offset:{(s_ // 2) * 8192 + f * 2048}")
            t = None
            for nt in range(2):
                for u in range(2):
                    r = WF(s_ % 3, nt) + 2 * u
                    t = a.one(f"ds_read_b64_tr_b16 v[{r}:{r + 1}], v{vT + nt} offset:{s_ * 4096 + u * 512}")
            lt[s_] = t
        rd(k0)
        rd(k0 + 1)
        for s_ in range(k0, k1):
            if s_ + 2 < k1:
                rd(s_ + 2)
            a.wait_lg(lt[s_])
            for f in range(2):
                for nt in range(2):
                    d = ACC(f, nt)
                    c = "0" if s_ == 0 else rng(d, 4)
                    a(f"{MF16} {rng(d, 4)}, {rng(WF(s_ % 3, nt), 4)}, {rng(XF(s_ % 3, f), 4)}, {c}")
            if s_ == ENV("B2POS", -1):
                for p_ in range(NB0, ENV("NB1", 7)):
                    dma_pair(p_)
    for f in range(2):
        b = ACC(f, 0)
        pk = 20 + 4 * f
        for r in range(4):
            a(f"v_cvt_pk_bf16_f32 v{pk + r}, v{b + 2 * r}, v{b + 2 * r + 1}")
        a(f"v_cndmask_b32 v{pk + 2}, v{pk + 2}, 0, s[72:73]")
        a(f"v_cndmask_b32 v{pk + 3}, v{pk + 3}, 0, s[72:73]")
        a(f"ds_write_b128 v{vQ}, {rng(pk, 4)} offset:{256 * f}")
    a("s_waitcnt lgkmcnt(0)")
    arrive(a, C_QF)
    stamp(a, 4)


QR = lambda i, h: 16 + 8 * i + 4 * h
O = lambda i: 48 + 16 * i
S = lambda b: 112 + 16 * b
P = 144
KB = lambda c, h: 152 + 16 * c + 4 * h
VB = lambda c, h: 152 + 16 * c + 8 + 4 * h


def attention(a):
    L16 = V_L16
    a("s_lshl_b32 s13, s3, 16")
    a(f"s_add_u32 s56, s{P_WS}, s13")
    a(f"s_addc_u32 s57, s{P_WS + 1}, 0")
    a(f"s_add_u32 s56, s56, {KV_OFF}")
    a("s_addc_u32 s57, s57, 0")
    a("s_mov_b32 s58, 65536")
    a("s_mov_b32 s59, 0x00020000")
    srd(a, 60, P_WS, 0x200000, OF_OFF)

    def ldk(c):
        a(f"buffer_load_dwordx4 {rng(KB(c, 0), 4)}, v{L16}, s[56:59], s15 offen sc1")
        return a.one(f"buffer_load_dwordx4 {rng(KB(c, 1), 4)}, v{L16}, s[56:59], s15 offen offset:1024 sc1")

    def ldv(c):
        a(f"buffer_load_dwordx4 {rng(VB(c, 0), 4)}, v{L16}, s[56:59], s15 offen offset:2048 sc1")
        return a.one(f"buffer_load_dwordx4 {rng(VB(c, 1), 4)}, v{L16}, s[56:59], s15 offen offset:3072 sc1")

    wait_cnt(a, C_NONCE, 0, st=S_NONCE, nz=True)
    a(f"v_lshlrev_b32 v6, 6, v{V_LANE}")
    a("s_lshl_b32 s8, s3, 12")
    if POLLD:
        a(f"s_sleep {POLLD}")
    a(f"buffer_load_dword v7, v6, s[64:67], s8 offen sc1")
    for r in range(64):
        a(f"v_mov_b32 v{O(0) + r}, 0")
    for r in range(4):
        a(f"v_mov_b32 v{VB(3, 1) + r}, 0")
        a(f"v_mov_b32 v{P + 4 + r}, 0")
    for i in range(4):
        a(f"s_add_u32 s{68 + i}, s3, {i + 1}")
        a(f"s_and_b32 s{68 + i}, s{68 + i}, 3")
    a(f"v_cmp_le_u32 s[74:75], 32, v{V_LANE}")
    if WOB:
        srd(a, 52, P_WO, W_BYTES)
        a(f"v_lshrrev_b32 v5, 3, v{V_LANE}")
        a("s_mul_i32 s9, s3, 112")
        a("v_add_u32 v5, s9, v5")
        a("v_mul_u32_u24 v5, 896, v5")
        a(f"v_and_b32 v8, 1, v{V_G}")
        a("v_lshlrev_b32 v8, 2, v8")
        a(f"v_and_b32 v9, 7, v{V_LANE}")
        a("v_xor_b32 v8, v8, v9")
        a("v_lshl_add_u32 v5, v8, 4, v5")
        a(f"s_lshl_b32 s9, s{S_HP}, 7")
        a("v_add_u32 v216, s9, v5")
    wait_cnt(a, C_QF, 4, sleep=0)
    for i in range(4):
        a(f"s_lshl_b32 s14, s{68 + i}, 11")
        a(f"s_add_u32 s14, s14, {L_QF}")
        a(f"v_add_u32 v13, s14, v{L16}")
        a(f"ds_read_b128 {rng(QR(i, 0), 4)}, v13")
        a(f"ds_read_b128 {rng(QR(i, 1), 4)}, v13 offset:1024")
    a("s_waitcnt vmcnt(0)")
    a(f"v_cmp_ne_u32 vcc, s{S_NONCE}, v7")
    a("s_cbranch_vccz F_KVOK")
    poll_flags(a, 6, 64, "s8", sleep=2)
    a.label("F_KVOK", flush=False)
    stamp(a, 5)
    a("s_mov_b32 s4, 4")
    a.label("F_RESTART", flush=False)
    a.vm = a.lg = 0
    if ENV("KVROT", 1):
        a(f"s_lshl_b32 s15, s2, {9 + ENV('KVRS', 0)}")
        a("s_and_b32 s15, s15, 0xf000")
    else:
        a("s_mov_b32 s15, 0")
    tok_kv0 = None
    for c in range(4):
        ldk(c)
        if c < 3:
            t = ldv(c)
            if c == 0:
                tok_kv0 = t
            a("s_add_u32 s15, s15, 4096")
            a("s_and_b32 s15, s15, 0xffff")
    a("s_waitcnt lgkmcnt(0)")
    arrive(a, C_WO)
    a.wait_vm(tok_kv0)
    a(f"{MF32} {rng(S(0), 16)}, {rng(KB(0, 0), 4)}, {rng(QR(0, 0), 4)}, 0")
    a(f"{MF32} {rng(S(0), 16)}, {rng(KB(0, 1), 4)}, {rng(QR(0, 1), 4)}, {rng(S(0), 16)}")
    a("s_mov_b32 s14, 4")
    if ENV("VMST", 0):
        a("s_mov_b32 s93, 0")
        stamp(a, 2, True)
    a("s_setprio 1")
    stamp(a, 6)
    a.fence()
    a.raw(".p2align 6")
    a.label("F_LOOP", flush=False)

    def ex(cur, k0, pk):
        for k in range(k0, k0 + 4):
            a(f"v_exp_f32 v{cur + k}, v{cur + k}")
        a(f"v_cvt_pk_bf16_f32 v{P + pk}, v{cur + k0}, v{cur + k0 + 1}")
        a(f"v_cvt_pk_bf16_f32 v{P + pk + 1}, v{cur + k0 + 2}, v{cur + k0 + 3}")

    def body():
        for ls in range(16):
            c, i = divmod(ls, 4)
            cur, nxt = S(ls % 2), S((ls + 1) % 2)
            cn, inx = divmod((ls + 1) % 16, 4)
            cp, ip = divmod((ls - 1) % 16, 4)
            if i == 3:
                if ENV("VMST", 0) == 1:
                    a("s_memtime s[98:99]")
                    a("s_waitcnt lgkmcnt(0)")
                a("s_waitcnt vmcnt(10)")
                if ENV("VMST", 0) == 1:
                    a("s_memtime s[100:101]")
                    a("s_waitcnt lgkmcnt(0)")
                    a("s_sub_u32 s100, s100, s98")
                    a("s_add_u32 s93, s93, s100")
            a(f"{MF32} {rng(nxt, 16)}, {rng(KB(cn, 0), 4)}, {rng(QR(inx, 0), 4)}, 0")
            ex(cur, 0, 0)
            a(f"{MF32} {rng(nxt, 16)}, {rng(KB(cn, 1), 4)}, {rng(QR(inx, 1), 4)}, {rng(nxt, 16)}")
            if i == 2:
                if BPRI:
                    a("s_setprio 3")
                ldk(c)
                if BPRI:
                    a("s_setprio 1")
            if ls == 13:
                a(f"ds_read_b32 v12, v{V_CNT} offset:{4 * C_WO}")
            ex(cur, 4, 2)
            a(f"{MF32} {rng(O(ip), 16)}, {rng(VB(cp, 1), 4)}, {rng(P + 4, 4)}, {rng(O(ip), 16)}")
            if i == 0:
                if BPRI:
                    a("s_setprio 3")
                ldv(cp)
                if BPRI:
                    a("s_setprio 1")
                a("s_add_u32 s15, s15, 4096")
                a("s_and_b32 s15, s15, 0xffff")
                if ls == 0:
                    a("s_cmp_eq_u32 s14, 1")
                    a("s_cselect_b32 s58, 0, s58")
            ex(cur, 8, 4)
            a(f"{MF32} {rng(O(i), 16)}, {rng(VB(c, 0), 4)}, {rng(P, 4)}, {rng(O(i), 16)}")
            ex(cur, 12, 6)

    n0 = a.nops
    body()
    assert a.nops == n0, "unexpected nops in attention loop"
    save = (list(a.out), list(a.hist), a.vm, a.lg)
    body()
    assert a.nops == n0, "unexpected nops across the attention back edge"
    a.out, a.hist, a.vm, a.lg = save
    a("s_sub_u32 s14, s14, 1")
    a("s_cmp_lg_u32 s14, 0")
    a("s_cbranch_scc1 F_LOOP")
    a(f"{MF32} {rng(O(3), 16)}, {rng(VB(3, 1), 4)}, {rng(P + 4, 4)}, {rng(O(3), 16)}")
    a("s_setprio 3")
    if ENV("VMST", 0):
        stamp(a, 3, True)
    stamp(a, 7)
    a("s_waitcnt lgkmcnt(0)")
    a("v_readfirstlane_b32 s78, v12")
    a("s_cmp_ge_u32 s78, 8")
    a("s_cbranch_scc1 F_WOK")
    wait_cnt(a, C_WO, 8)
    a.label("F_WOK", flush=False)
    if WOB:
        a("s_mul_i32 m0, s3, 14336")
        a("s_mov_b32 s12, 0")
        for i in range(14):
            a(f"buffer_load_dwordx4 v216, s[52:55], s12 offen lds")
            if i < 13:
                a("s_add_u32 m0, m0, 1024")
                a(f"s_add_u32 s12, s12, {8 * 896}")
    for i in range(3):
        a(f"s_mul_i32 s14, s{68 + i}, 12288")
        a(f"s_add_u32 s14, s14, {L_BRED}")
        a(f"v_add_u32 v13, s14, v{L16}")
        for qd in range(4):
            a(f"ds_write_b128 v13, {rng(O(i) + 4 * qd, 4)} offset:{i * 4096 + qd * 1024}")
    a("s_mul_i32 s14, s3, 12288")
    a(f"s_add_u32 s14, s14, {L_BRED}")
    a(f"v_add_u32 v13, s14, v{L16}")
    a(f"s_lshl_b32 s14, s{S_PG}, 1")
    a("s_lshr_b32 s12, s3, 1")
    a("s_add_u32 s14, s14, s12")
    a("s_lshl_b32 s14, s14, 4")
    a(f"s_lshl_b32 s12, s{S_HP}, 1")
    a("s_add_u32 s14, s14, s12")
    a("s_and_b32 s12, s3, 1")
    a("s_add_u32 s14, s14, s12")
    a("s_lshl_b32 s12, s14, 6")
    a(f"s_add_u32 s12, s12, {OFL_OFF}")
    a("s_lshl_b32 s14, s14, 11")
    a(f"v_min3_f32 v8, v{O(0) + 12}, v{O(1) + 12}, v{O(2) + 12}")
    a(f"v_max3_f32 v9, v{O(0) + 12}, v{O(1) + 12}, v{O(2) + 12}")
    a(f"v_min_f32 v8, v8, v{O(3) + 12}")
    a(f"v_max_f32 v9, v9, v{O(3) + 12}")
    a("v_cmp_nle_f32 vcc, 0x1f800000, v8")
    a("s_and_b64 s[8:9], vcc, s[74:75]")
    a("v_cmp_nge_f32 vcc, 0x5f800000, v9")
    a("s_and_b64 vcc, vcc, s[74:75]")
    a("s_or_b64 s[8:9], s[8:9], vcc")
    a("s_cselect_b32 s8, 0x10001, 1")
    a("v_mov_b32 v8, s8")
    a("s_waitcnt lgkmcnt(0)")
    a("s_mov_b64 exec, 1")
    a(f"ds_add_u32 v{V_CNT}, v8 offset:{4 * C_RED}")
    a("s_mov_b64 exec, -1")
    a(f"s_mov_b32 s79, {SPIN}")
    a.label("F_RW", flush=False)
    a(f"ds_read_b32 v5, v{V_CNT} offset:{4 * C_RED}")
    a("s_waitcnt lgkmcnt(0)")
    a("v_readfirstlane_b32 s78, v5")
    a("s_and_b32 s8, s78, 0xffff")
    a("s_cmp_ge_u32 s8, s4")
    a("s_cbranch_scc1 F_RD")
    a("s_sub_u32 s79, s79, 1")
    a("s_cmp_lg_u32 s79, 0")
    a("s_cbranch_scc1 F_RW")
    a.label("F_RD", flush=False)
    a("s_cmp_eq_u32 s78, 4")
    a("s_cbranch_scc0 F_FBQ")
    a.label("F_RGO", flush=False)
    a.lg = 0
    toks = []
    for qd in (3, 0, 1, 2):
        for i in range(3):
            t = a.one(f"ds_read_b128 {rng(O(i) + 4 * qd, 4)}, v13 offset:{i * 4096 + qd * 1024}")
        toks.append((qd, t))
    F = O(3)
    for n, (qd, t) in enumerate(toks):
        a.wait_lg(t)
        for i in range(3):
            for r in range(0, 4, 2):
                x, y = F + 4 * qd + r, O(i) + 4 * qd + r
                add2(a, x, y)
        if n == 0:
            a(f"v_mov_b32 v12, v{F + 12}")
            a(f"v_mov_b32 v10, v{F + 12}")
            a("v_permlane32_swap_b32 v12, v10")
            a("v_rcp_f32 v10, v10")
    if WOB:
        a("s_waitcnt vmcnt(0)")
    arrive(a, C_RED2)
    for r in range(16):
        a(f"v_mul_f32 v{F + r}, v{F + r}, v10")
    for r in range(8):
        a(f"v_cvt_pk_bf16_f32 v{P + r}, v{F + 2 * r}, v{F + 2 * r + 1}")
    a(f"v_cndmask_b32 v{P + 6}, v{P + 6}, 0, s[74:75]")
    a(f"v_cndmask_b32 v{P + 7}, v{P + 7}, 0, s[74:75]")
    a(f"buffer_store_dwordx4 {rng(P, 4)}, v{L16}, s[60:63], s14 offen sc1")
    a(f"buffer_store_dwordx4 {rng(P + 4, 4)}, v{L16}, s[60:63], s14 offen offset:1024 sc1")
    stamp(a, 8)


def out_proj(a):
    L16 = V_L16
    vW, vR, vTk, vTs, vO = 16, 17, 18, 19, 20
    a(f"v_mov_b32 v8, s{S_NONCE}")
    a("v_mov_b32 v9, 0")
    a("s_and_b32 s9, s3, 1")
    a("s_lshr_b32 s10, s3, 1")
    a(f"v_lshrrev_b32 v5, 1, v{V_G}")
    a(f"v_lshrrev_b32 v7, 2, v{V_N}")
    a("v_lshl_add_u32 v5, v5, 2, v7")
    a("v_lshlrev_b32 v5, 7, v5")
    a(f"v_lshrrev_b32 v7, 3, v{V_N}")
    a("v_lshl_add_u32 v5, v7, 6, v5")
    a(f"v_and_b32 v7, 1, v{V_G}")
    a("v_lshl_add_u32 v5, v7, 5, v5")
    a(f"v_and_b32 v7, 3, v{V_N}")
    a("v_lshl_add_u32 v5, v7, 3, v5")
    a("s_lshl_b32 s13, s10, 6")
    a("v_xor_b32 v5, s13, v5")
    a("s_mul_i32 s13, s10, 28672")
    a(f"s_add_u32 s13, s13, {L_WO}")
    a(f"v_add_u32 v{vTk}, s13, v5")
    a(f"v_xor_b32 v{vTs}, 64, v{vTk}")
    WFR = lambda ks, q: 88 + 8 * ks + 4 * q
    order = [ks for ks in range(16) if ks != 7] + [7]

    def rdw(ks):
        hl, half = divmod(ks, 2)
        for q in range(2):
            for u in range(2):
                r = WFR(ks, q) + 2 * u
                a(f"ds_read_b64_tr_b16 v[{r}:{r + 1}], v{vTs if q else vTk} offset:{(28 * hl + 16 * half + 8 * u) * 128}")

    if WOB:
        wait_cnt(a, C_RED2, 4, sleep=0)
    for ks in order[:6]:
        rdw(ks)
    a("s_waitcnt vmcnt(0)")
    a("s_mov_b64 exec, 1")
    a("buffer_store_dword v8, v9, s[64:67], s12 offen sc1")
    a("s_mov_b64 exec, -1")
    a(f"s_cmp_eq_u32 s{S_HP}, 7")
    a("s_cbranch_scc1 F_BEND")
    for ks in order[6:]:
        rdw(ks)
    a(f"v_and_b32 v5, 7, v{V_LANE}")
    a("v_lshlrev_b32 v21, 6, v5")
    a(f"s_lshl_b32 s14, s{S_PG}, 1")
    a("s_add_u32 s14, s14, s9")
    a(f"s_mul_i32 s8, s14, {32 * 3584}")
    a("s_lshl_b32 s14, s14, 4")
    a("s_lshl_b32 s12, s10, 3")
    a("s_add_u32 s14, s14, s12")
    a("s_lshl_b32 s12, s14, 6")
    a(f"s_add_u32 s12, s12, {OFL_OFF}")
    a("s_lshl_b32 s14, s14, 11")
    srd(a, 52, P_OUT, OUT_BYTES)
    a(f"v_lshrrev_b32 v5, 5, v{V_LANE}")
    a(f"v_mul_u32_u24 v{vO}, {4 * 3584}, v5")
    a(f"v_and_b32 v5, 31, v{V_LANE}")
    a(f"v_lshl_add_u32 v{vO}, v5, 2, v{vO}")
    a(f"s_lshl_b32 s13, s{S_HP}, 8")
    a("s_add_u32 s8, s8, s13")
    a("s_lshl_b32 s13, s10, 7")
    a("s_add_u32 s8, s8, s13")
    a("s_add_u32 s13, s8, 1792")
    a("s_lshl_b32 s8, s3, 12")
    a(f"s_add_u32 s8, s8, {L_PX}")
    a(f"v_add_u32 v{vW}, s8, v{L16}")
    a("s_xor_b32 s8, s3, 2")
    a("s_lshl_b32 s8, s8, 12")
    a(f"s_add_u32 s8, s8, {L_PX}")
    a(f"v_add_u32 v{vR}, s8, v{L16}")
    a("s_lshl_b32 s8, s9, 2")
    a(f"v_add_u32 v22, s8, v{V_CNT}")
    if not WOB:
        wait_cnt(a, C_RED2, 4)
    a("s_waitcnt lgkmcnt(0)")
    poll_flags(a, 21, 64, "s12", sleep=1)
    stamp(a, 9)
    a.vm = 0
    OFR = lambda ks: 24 + 4 * ks
    toks = []
    for hl in range(8):
        a(f"buffer_load_dwordx4 {rng(OFR(2 * hl), 4)}, v{L16}, s[60:63], s14 offen offset:{(hl % 2) * 2048} sc1")
        toks.append(a.one(f"buffer_load_dwordx4 {rng(OFR(2 * hl + 1), 4)}, v{L16}, s[60:63], s14 offen offset:{(hl % 2) * 2048 + 1024} sc1"))
        if hl % 2 == 1 and hl < 7:
            a("s_add_u32 s14, s14, 4096")
    acc = lambda q: 216 + 16 * q
    for ks in range(16):
        if ks % 2 == 0:
            a.wait_vm(toks[ks // 2])
        for q in (1, 0):
            d = acc(q)
            c = "0" if ks == 0 else rng(d, 16)
            a(f"{MF32} {rng(d, 16)}, {rng(OFR(ks), 4)}, {rng(WFR(ks, q), 4)}, {c}")
    stamp(a, 10)
    for qd in range(4):
        a(f"ds_write_b128 v{vW}, {rng(acc(1) + 4 * qd, 4)} offset:{qd * 1024}")
    a("s_waitcnt lgkmcnt(0)")
    arrive(a, C_PX0, vbase=22)
    wait_cnt(a, C_PX0, 2, vbase=22, sleep=0)
    a.lg = 0
    toks = []
    for qd in range(4):
        toks.append(a.one(f"ds_read_b128 {rng(24 + 4 * qd, 4)}, v{vR} offset:{qd * 1024}"))
    for qd in range(4):
        a.wait_lg(toks[qd])
        b = acc(0) + 4 * qd
        for r in range(0, 4, 2):
            add2(a, b + r, 24 + 4 * qd + r)
        a(f"buffer_store_dword v{b}, v{vO}, s[52:55], s13 offen{OSC1}")
        a(f"buffer_store_dword v{b + 1}, v{vO}, s[52:55], s13 offen offset:3584{OSC1}")
        a(f"s_add_u32 s13, s13, {2 * 3584}")
        a(f"buffer_store_dword v{b + 2}, v{vO}, s[52:55], s13 offen{OSC1}")
        a(f"buffer_store_dword v{b + 3}, v{vO}, s[52:55], s13 offen offset:3584{OSC1}")
        if qd < 3:
            a(f"s_add_u32 s13, s13, {6 * 3584}")
    stamp(a, 11)
    a.label("F_BEND")
    stamp_flush(a, 0, 12)
    a("s_endpgm")


def fallback(a):
    L16 = V_L16
    MX = 220
    a.label("F_FBQ")
    a("s_cmp_lg_u32 s4, 4")
    a("s_cbranch_scc1 F_RGO")
    a("s_waitcnt vmcnt(0)")
    a("s_mov_b32 s58, 65536")
    for i in range(4):
        a(f"v_mov_b32 v{MX + i}, 0xff800000")
    a("s_mov_b32 s15, 0")
    a.label("F_FBL")
    a(f"buffer_load_dwordx4 {rng(KB(0, 0), 4)}, v{L16}, s[56:59], s15 offen sc1")
    a(f"buffer_load_dwordx4 {rng(KB(0, 1), 4)}, v{L16}, s[56:59], s15 offen offset:1024 sc1")
    a("s_waitcnt vmcnt(0)")
    for i in range(4):
        a(f"{MF32} {rng(S(0), 16)}, {rng(KB(0, 0), 4)}, {rng(QR(i, 0), 4)}, 0")
        a(f"{MF32} {rng(S(0), 16)}, {rng(KB(0, 1), 4)}, {rng(QR(i, 1), 4)}, {rng(S(0), 16)}")
        for r in range(0, 16, 2):
            a(f"v_max3_f32 v{MX + i}, v{MX + i}, v{S(0) + r}, v{S(0) + r + 1}")
    a("s_add_u32 s15, s15, 4096")
    a("s_cmp_lt_u32 s15, 65536")
    a.fence()
    a("s_cbranch_scc1 F_FBL")
    a(f"v_lshlrev_b32 v6, 2, v{V_LANE}")
    for i in range(4):
        a(f"v_mov_b32 v5, v{MX + i}")
        a(f"v_permlane32_swap_b32 v{MX + i}, v5")
        a(f"v_max_f32 v{MX + i}, v{MX + i}, v5")
        a(f"s_lshl_b32 s8, s{68 + i}, 10")
        a(f"s_add_u32 s8, s8, {L_BRED}")
        a(f"v_add_u32 v{MX + 4 + i}, s8, v6")
        a("s_lshl_b32 s9, s3, 8")
        a(f"v_add_u32 v7, s9, v{MX + 4 + i}")
        a(f"ds_write_b32 v7, v{MX + i}")
    a("s_waitcnt lgkmcnt(0)")
    arrive(a, C_FB)
    wait_cnt(a, C_FB, 4)
    for i in range(4):
        for w in range(4):
            a(f"ds_read_b32 v{S(0) + 4 * i + w}, v{MX + 4 + i} offset:{256 * w}")
    a("s_waitcnt lgkmcnt(0)")
    arrive(a, C_FB)
    for i in range(4):
        b = S(0) + 4 * i
        a(f"v_max3_f32 v5, v{b}, v{b + 1}, v{b + 2}")
        a(f"v_max_f32 v5, v5, v{b + 3}")
        a("v_sub_f32 v5, 0, v5")
        a("v_cvt_pk_bf16_f32 v6, v5, v5")
        a("v_and_b32 v7, 0xffff0000, v6")
        a("v_sub_f32 v5, v5, v7")
        a("v_cvt_pk_bf16_f32 v8, v5, v5")
        a("v_and_b32 v7, 0xffff0000, v8")
        a("v_sub_f32 v5, v5, v7")
        a("v_cvt_pk_bf16_f32 v9, v5, 0")
        a("v_and_b32 v6, 0xffff, v6")
        a("v_or_b32 v6, v6, v7")
        a(f"v_cndmask_b32 v{QR(i, 1) + 2}, v{QR(i, 1) + 2}, v6, s[74:75]")
        a(f"v_cndmask_b32 v{QR(i, 1) + 3}, v{QR(i, 1) + 3}, v9, s[74:75]")
    for r in range(64):
        a(f"v_mov_b32 v{O(0) + r}, 0")
    for r in range(4):
        a(f"v_mov_b32 v{VB(3, 1) + r}, 0")
        a(f"v_mov_b32 v{P + 4 + r}, 0")
    wait_cnt(a, C_FB, 8)
    a("s_mov_b32 s4, 8")
    a.fence()
    a("s_branch F_RESTART")


_thr = [THR]


def add2(a, x, y):
    a(f"v_add_f32 v{x}, v{x}, v{y}")
    a(f"v_add_f32 v{x + 1}, v{x + 1}, v{y + 1}")


def thr(a):
    if _thr[0]:
        a(f"s_waitcnt vmcnt({_thr[0]})")


def pr(r):
    return f"v[{r}:{r + 1}]"


def pcmad(a, d, m, x, b, t):
    a(f"v_pk_fma_f32 {pr(t)}, {pr(m)}, {pr(x)}, {pr(b)} op_sel:[1,1,0] op_sel_hi:[1,0,1] neg_lo:[1,0,0]")
    a(f"v_pk_fma_f32 {pr(d)}, {pr(m)}, {pr(x)}, {pr(t)} op_sel_hi:[0,1,1]")


def a_main(a):
    a.label("F_AM")
    a.vm = a.lg = 0
    a("s_setprio 0")
    a(f"s_cmp_eq_u32 s{S_HP}, 7")
    a("s_cbranch_scc1 F_A7")
    a_setup(a)
    wait_cnt(a, C_NONCE, 0, st=S_NONCE, nz=True, sleep=2)
    a("s_setprio 2")
    stamp(a, 5)
    if PFW1 == 0:
        prefetch_xa(a, 68, 126)
        prefetch_w(a, P_BRE, 68, 127)
    if PFW1 < 2:
        prefetch_w(a, P_BIM, 68, 126)
    a1(a)
    a3(a)
    stamp_flush(a, 0, 12)
    a("s_endpgm")
    a.label("F_A7")
    wait_cnt(a, C_NONCE, 0, st=S_NONCE, nz=True, sleep=2)
    a("s_setprio 2")
    if PFW1 == 0:
        prefetch_xa(a, 68, 126)
        prefetch_w(a, P_BRE, 68, 127)
    if PFW1 < 2:
        prefetch_w(a, P_BIM, 68, 126)
    wait_cnt(a, C_WO, 4, sleep=4)
    for p in (P_CRE, P_CIM, P_WO):
        prefetch_w(a, p, 68, 126)
        a("s_waitcnt vmcnt(0)")
    arrive(a, C_WO)
    stamp_flush(a, 0, 12)
    a("s_endpgm")


def a_setup(a):
    a(f"s_lshl_b32 s8, s{S_HP}, 6")
    a(f"s_lshl_b32 s9, s{S_WA}, 4")
    a("s_add_u32 s9, s8, s9")
    a(f"v_add_u32 v13, s9, v{V_N}")
    LD, LR, LI, A2, TH, T0, T1 = 100, 101, 102, 103, 104, 6, 7
    a(f"v_lshlrev_b32 v{V_P16}, 4, v13")
    a(f"s_and_b32 s14, s{S_WA}, 1")
    a(f"s_lshr_b32 s15, s{S_WA}, 1")
    xb_dma_voffset(a, vBd, "s9")
    xb_dma_voffset(a, vCd, "s8")
    a(f"v_and_b32 v7, 32, v{V_LANE}")
    a(f"v_bfe_u32 v6, v{V_LANE}, 3, 2")
    a(f"s_lshl_b32 s12, s{S_PG}, 6")
    a(f"s_lshl_b32 s9, s{S_WA}, 3")
    a("s_add_u32 s9, s12, s9")
    a("v_add3_u32 v7, v7, v6, s9")
    blk_dma_voffset(a, vXd, 7, rows2=4)
    a(f"v_and_b32 v5, 31, v{V_LANE}")
    a("v_bfe_u32 v6, v5, 1, 3")
    a(f"v_lshrrev_b32 v7, 5, v{V_LANE}")
    a("v_xor_b32 v6, v6, v7")
    a("v_lshlrev_b32 v6, 4, v6")
    a("v_lshl_add_u32 v5, v5, 7, v6")
    a(f"v_add_u32 v{vXr}, {L_XB}, v5")
    for sg in range(1, 4):
        a(f"v_xor_b32 v{vXr + sg}, {32 * sg}, v{vXr}")
    a(f"s_lshl_b32 s11, s{S_WA}, 12")
    a(f"s_lshl_b32 s10, s{S_WA}, 11")
    a(f"s_add_u32 s10, s10, {L_XB}")
    a(f"v_lshrrev_b32 v5, 3, v{V_LANE}")
    a(f"s_mul_i32 s9, s{S_WA}, 112")
    a("v_add_u32 v5, s9, v5")
    a("v_mul_u32_u24 v5, 896, v5")
    a(f"v_and_b32 v7, 1, v{V_G}")
    a("v_lshlrev_b32 v7, 2, v7")
    a(f"v_and_b32 v6, 7, v{V_LANE}")
    a("v_xor_b32 v7, v7, v6")
    a("v_lshl_add_u32 v5, v7, 4, v5")
    a(f"s_lshl_b32 s9, s{S_HP}, 7")
    a(f"v_add_u32 v{vWo}, s9, v5")
    a(f"s_mul_i32 s9, s{S_WA}, 5120")
    a(f"s_add_u32 s9, s9, {L_HS}")
    a(f"v_mul_u32_u24 v5, 144, v{V_N}")
    a(f"v_lshl_add_u32 v5, v{V_G}, 5, v5")
    a(f"v_add_u32 v{vTw}, s9, v5")
    a(f"v_lshrrev_b32 v5, 1, v{V_G}")
    a(f"v_lshrrev_b32 v6, 2, v{V_N}")
    a("v_lshl_add_u32 v5, v5, 3, v6")
    a("v_mul_u32_u24 v5, 144, v5")
    a(f"v_and_b32 v6, 1, v{V_N}")
    a("v_lshl_add_u32 v5, v6, 6, v5")
    a(f"v_and_b32 v6, 1, v{V_G}")
    a("v_lshl_add_u32 v5, v6, 4, v5")
    a(f"v_bfe_u32 v6, v{V_N}, 1, 1")
    a("v_lshl_add_u32 v5, v6, 3, v5")
    a(f"v_add_u32 v{vTr}, s9, v5")
    a(f"v_min_u32 v5, 13, v{V_LANE}")
    a(f"v_lshlrev_b32 v{vF3}, 6, v5")
    a("s_lshl_b32 s9, s15, 10")
    a(f"v_add_u32 v{vH0}, s9, v{V_L16}")
    a(f"v_xor_b32 v{vH1}, 1024, v{vH0}")
    a(f"v_and_b32 v5, 32, v{V_LANE}")
    a("s_lshl_b32 s9, s15, 4")
    a("s_add_u32 s9, s12, s9")
    a("v_add_u32 v5, s9, v5")
    a(f"v_and_b32 v6, 31, v{V_LANE}")
    a("s_lshl_b32 s9, s14, 5")
    a("s_add_u32 s9, s8, s9")
    a("v_add_u32 v6, s9, v6")
    a(f"v_mul_u32_u24 v{vO3}, 3584, v5")
    a(f"v_lshl_add_u32 v{vO3}, v6, 2, v{vO3}")
    a(f"s_add_u32 s9, s{S_HP}, 7")
    a(f"s_sub_u32 s9, s9, s{S_ROT}")
    a("s_sub_u32 s13, s9, 7")
    a("s_cselect_b32 s9, s9, s13")
    a("s_lshl_b32 s9, s9, 13")
    a("s_lshl_b32 s13, s15, 12")
    a("s_add_u32 s9, s9, s13")
    a(f"s_add_u32 s9, s9, {L_XB}")
    a(f"v_bfe_u32 v5, v{V_LANE}, 3, 2")
    a("s_lshl_b32 s13, s14, 2")
    a("v_or_b32 v5, s13, v5")
    a(f"v_lshrrev_b32 v6, 5, v{V_LANE}")
    a("v_lshlrev_b32 v7, 1, v6")
    a("v_xor_b32 v5, v5, v7")
    a("v_lshlrev_b32 v5, 4, v5")
    a("v_lshl_add_u32 v5, v6, 9, v5")
    a(f"v_and_b32 v6, 7, v{V_LANE}")
    a("v_lshl_add_u32 v5, v6, 1, v5")
    a(f"v_add_u32 v{vX3}, s9, v5")
    a(f"v_add_u32 v5, 1, v{V_G}")
    a(f"v_mul_u32_u24 v5, {8 * 7168}, v5")
    a(f"v_sub_u32 v5, v{V_P16}, v5")
    a(f"s_mul_i32 s9, s{S_PG}, 7168")
    a(f"v_add_u32 v{vEA}, s9, v5")
    for i in range(1, 8):
        a(f"v_add_u32 v{vEA + i}, 7168, v{vEA + i - 1}")
    for i in range(8):
        a(f"v_cmp_le_i32 s[{EMASK[i]}:{EMASK[i] + 1}], 0, v{vEA + i}")
    a(f"v_lshlrev_b32 v{vD3}, 16, v{vD3}")
    lam_base(a, LD, LR, LI, A2, TH, T0)
    lam_pow(a, A2, TH, 1, M1, M1 + 1, T0)
    lam_pow(a, A2, TH, 16, M16, M16 + 1, T0)
    lam_pow(a, A2, TH, 64, M64, M64 + 1, T0)
    a(f"v_lshlrev_b32 v{T1}, 9, v{V_G}")
    a(f"v_cvt_f32_u32 v{T1}, v{T1}")
    lam_pow(a, A2, TH, f"v{T1}", MQ, MQ + 1, T0)
    a(f"v_add_f32 v{T0}, -1.0, v{M1}")
    a(f"v_mul_f32 v{T1}, v{LR}, v{LR}")
    a(f"v_fma_f32 v{T1}, v{LI}, v{LI}, v{T1}")
    a(f"v_rcp_f32 v{T1}, v{T1}")
    a(f"v_mul_f32 v{K1}, v{T0}, v{LR}")
    a(f"v_fma_f32 v{K1}, -v{M1 + 1}, v{LI}, v{K1}")
    a(f"v_mul_f32 v{K1 + 1}, v{T0}, v{LI}")
    a(f"v_fma_f32 v{K1 + 1}, v{M1 + 1}, v{LR}, v{K1 + 1}")
    a(f"v_add_f32 v{T1}, v{T1}, v{T1}")
    a(f"v_mul_f32 v{K1}, v{K1}, v{T1}")
    a(f"v_mul_f32 v{K1 + 1}, v{K1 + 1}, v{T1}")
    a(f"v_mov_b32 v{K2}, v{K1 + 1}")
    a(f"v_sub_f32 v{K2 + 1}, 0, v{K1}")
    a(f"s_sub_u32 s9, s11, {L_XB}")
    for sg in range(4):
        a(f"v_add_u32 v{vBr + sg}, s9, v{vXr + sg}")
        a(f"v_add_u32 v{VBRH[sg]}, 0x10000, v{vBr + sg}")
    a("s_lshl_b32 s9, s14, 6")
    a(f"v_xor_b32 v{vCs}, s9, v{vCd}")
    a(f"v_xor_b32 v{vCs + 1}, s9, v{vCd + 1}")
    srd(a, 52, P_AX, X_BYTES)
    srd(a, 56, P_BRE, W_BYTES)
    srd(a, 60, P_BIM, W_BYTES)


CSLOT = [(1, 2), (3, 0), (1, 2), (3, 0)]
XSK = [116, 117, 118, 119, 245, 246, 247, 31]


def a1(a):
    D0, D1 = 40, 56
    FX = lambda b, tau, sg: 72 + 24 * b + 8 * sg + 4 * tau
    FB = lambda b, sg: 72 + 24 * b + 16 + 4 * sg
    tokx, tokb, tokc = {}, {}, {}
    a(f"s_lshl_b32 s12, s{S_ROT}, 7")
    a("s_mov_b32 s13, s12")
    a("s_mul_i32 s74, s14, 28672")
    a("s_sub_u32 s75, 28672, s74")
    a("s_lshl_b32 s9, s14, 9")
    a("s_add_u32 s72, s74, s9")
    a("s_add_u32 s73, s75, s9")

    def px(p_):
        def f(e):
            a(f"s_add_u32 m0, s10, {8192 * p_ + 1024 * e}")
            thr(a)
            tokx[p_] = a.one(f"buffer_load_dwordx4 v{vXd + e}, s[52:55], s12 offen lds")
            if e:
                rot_step(a, 12, 128, 896)
        return [lambda e=e: f(e) for e in range(2)]

    def pb(p_):
        def f(q):
            a(f"s_add_u32 m0, s11, {16384 * UNIT[p_] + 1024 * q}")
            thr(a)
            tokb[p_] = a.one(f"buffer_load_dwordx4 v{vBd + q % 2}, s[{56 + 4 * (q // 2)}:{59 + 4 * (q // 2)}], s13 offen lds")
            if q == 3:
                rot_step(a, 13, 128, 896)
        return [lambda q=q: f(q) for q in range(4)]

    def pc(l, bs=(0, 1)):
        def f(b, q):
            a(f"s_add_u32 m0, s11, {CSLOT[l][b] * 16384 + q * 1024}")
            a(f"s_add_u32 s12, s{(72 if l < 3 else 74) + b}, {128 * l + (q // 2) * 16 * 896}")
            thr(a)
            tokc[l] = a.one(f"buffer_load_dwordx4 v{(vCd if l < 3 else vCs) + q % 2}, s[56:59], s12 offen lds")
        return [lambda b=b, q=q: f(b, q) for b in bs for q in range(4)]

    def run(L):
        for f in L:
            f()

    dma_c = lambda l: run(pc(l))

    def rd_c(l):
        for sg in range(4 if l < 3 else 2):
            for b in range(2):
                a(f"ds_read_b128 {rng(CF(4 * l + sg, b), 4)}, v{vBr + sg} offset:{CSLOT[l][b] * 16384}")

    wait_cnt(a, C_ST2, 4)
    stamp(a, 6)
    _thr[0] = ENV("THR1", 3)
    run(px(0) + pb(0) + px(1) + pb(1))
    if ENV("AHOLD", 0):
        wait_cnt(a, C_WO, 4, sleep=2)
    else:
        wait_cnt(a, C_QF, 4)
    _thr[0] = THR
    pf = lambda p, r: [lambda: prefetch_w(a, p, 68, r)]
    setc = [lambda: (a(f"s_cmp_lt_u32 s{S_WA}, 2"), a(f"s_cselect_b32 s56, s{P_CRE}, s{P_CIM}"),
                     a(f"s_cselect_b32 s57, s{P_CRE + 1}, s{P_CIM + 1}"))]

    def pw(i0, i1):
        def f(i):
            a(f"s_add_u32 m0, s10, {1024 * i}")
            a(f"s_mov_b32 s12, {8 * 896 * i}")
            thr(a)
            a(f"buffer_load_dwordx4 v{vWo}, s[52:55], s12 offen lds")
        return [lambda i=i: f(i) for i in range(i0, i1)]

    if ENV("A1ST", 0):
        stamp(a, 1)
    run(px(2) + pb(2))
    c0, c1, c2, c3 = pc(0), pc(1), pc(2), pc(3)
    PFS = ENV("PFS", 6)
    sched = {0: px(3) + pb(3) + px(4), 1: pb(4) + px(5) + px(6), 2: pb(5), 4: pb(6),
             PFS: pf(P_CRE, 126) + pf(P_CIM, 127) + setc, 10: c0[0:2], 11: c0[2:4], 12: c0[4:6], 13: c0[6:8] + pf(P_WO, 126)}
    STG = ((0, 4, C_XA0), (4, 8, C_XA1), (8, 14, C_XA2))
    for (k0, k1, cnt) in STG:
        a.wait_vm(max(tokx[k1 // 2 - 1], tokb[k1 // 2 - 1]))
        arrive(a, cnt)
        wait_cnt(a, cnt, 4)
        if ENV("A1ST", 0):
            stamp(a, {0: 2, 4: 3, 8: 4}[k0])
        if ENV("LATP", 0) and k0 == 8:
            def probe(slot, ins, wait):
                a("s_waitcnt vmcnt(0) lgkmcnt(0)")
                a("s_memtime s[98:99]")
                a("s_waitcnt lgkmcnt(0)")
                if ins:
                    a(ins)
                    a(wait)
                a("s_memtime s[100:101]")
                a("s_waitcnt lgkmcnt(0)")
                a(f"s_sub_u32 s{80 + slot}, s100, s98")
            probe(1, f"buffer_load_dwordx4 v[128:131], v{vXd}, s[52:55], 0 offen sc1", "s_waitcnt vmcnt(0)")
            probe(2, f"buffer_load_dwordx4 v[128:131], v{vCd}, s[56:59], 0 offen", "s_waitcnt vmcnt(0)")
            probe(3, f"ds_read_b128 v[128:131], v{vXr}", "s_waitcnt lgkmcnt(0)")
            probe(4, None, None)
        a.lg = 0
        lt = {}

        def rd(s_):
            t = None
            u = UNIT[s_ // 2]
            for sg in range(2):
                q = 2 * (s_ % 2) + sg
                for tau in range(2):
                    a(f"ds_read_b128 {rng(FX(s_ % 2, tau, sg), 4)}, v{vXr + q} offset:{(s_ // 2) * 8192 + tau * 4096}")
                t = a.one(f"ds_read_b128 {rng(FB(s_ % 2, sg), 4)}, v{VBRH[q] if u == 4 else vBr + q} offset:{(u % 4) * 16384}")
            lt[s_] = t
        rd(k0)
        for s_ in range(k0, k1):
            if s_ + 1 < k1:
                rd(s_ + 1)
            a.wait_lg(lt[s_])
            q = list(sched.get(s_, []))
            for sg in range(2):
                for tau in range(2):
                    d = (D0, D1)[tau]
                    c = "0" if s_ == 0 and sg == 0 else rng(d, 16)
                    if not ENV("NOMF1", 0):
                        a(f"{MF32} {rng(d, 16)}, {rng(FX(s_ % 2, tau, sg), 4)}, {rng(FB(s_ % 2, sg), 4)}, {c}")
                    if q:
                        q.pop(0)()
                        if len(q) > 3 - (2 * sg + tau):
                            q.pop(0)()
                    elif ASPACE:
                        a(f"s_sleep {ASPACE}")
                    for _ in range(ENV("ANOP", 0)):
                        a("s_nop 7")
            assert not q
    a(f"v_xor_b32 v5, 16, v{vX3}")
    a(f"v_xor_b32 v6, 64, v{vX3}")
    a(f"v_xor_b32 v7, 80, v{vX3}")
    for r in range(16):
        base = (vX3, 5, 6, 7)[2 * ((r // 4) % 2) + (r // 2) % 2]
        a(f"ds_read_u16 v{72 + r}, v{base} offset:{(8 * (r // 4) + r % 4) * 128}")
    srd(a, 52, P_WO, W_BYTES)
    a(f"s_mul_i32 s10, s{S_WA}, 14336")
    a(f"s_add_u32 s10, s10, {L_WO}")
    a("s_waitcnt lgkmcnt(0)")
    arrive(a, C_G1)
    for r in range(8):
        a(f"v_lshl_or_b32 v{XSK[r]}, v{73 + 2 * r}, 16, v{72 + 2 * r}")
    stamp(a, 7)
    BP = lambda r: 72 + 2 * r
    T = 6
    run(c1[0:3])
    for r in range(16):
        a(f"v_permlane16_swap_b32 v{D0 + r}, v{D1 + r}")
    for r in range(16):
        e = r % 2
        if r in (4, 8, 12):
            run(c1[2 + r // 4:3 + r // 4])
        a(f"v_pk_mul_f32 {pr(BP(r))}, {pr(K1)}, {pr(D0 + r - e)} op_sel:[0,{e}] op_sel_hi:[1,{e}]")
        a(f"v_pk_fma_f32 {pr(BP(r))}, {pr(K2)}, {pr(D1 + r - e)}, {pr(BP(r))} op_sel:[0,{e},0] op_sel_hi:[1,{e},1]")
        if r >= 2:
            pcmad(a, GS, M1, BP(0) if r == 2 else GS, BP(r - 1), T)
    pcmad(a, GS, M1, GS, BP(15), T)
    a(f"s_lshl_b32 s8, s{S_WA}, 9")
    a(f"s_add_u32 s8, s8, {L_ASCR}")
    a(f"v_lshl_add_u32 v5, v{V_LANE}, 3, s8")
    a(f"ds_write_b64 v5, {pr(GS)}")
    a(f"v_lshl_add_u32 v5, v{V_N}, 3, s8")
    SQ = 104
    for q in range(4):
        a(f"ds_read_b64 {pr(SQ + 2 * q)}, v5 offset:{128 * q}")
    srd(a, 60, P_WS, EG_BYTES, EG_OFF)
    a(f"s_mul_i32 s8, s{S_PG}, 7168")
    a(f"v_mov_b32 v115, s{S_NONCE}")
    a("s_waitcnt lgkmcnt(0)")
    pcmad(a, 112, M16, SQ, SQ + 2, T)
    pcmad(a, 112, M16, 112, SQ + 4, T)
    pcmad(a, 112, M16, 112, SQ + 6, T)
    a("v_mov_b32 v114, v113")
    a(f"v_mov_b32 v113, s{S_NONCE}")
    a("s_mov_b64 exec, 0xffff")
    a(f"buffer_store_dwordx4 v[112:115], v{V_P16}, s[60:63], s8 offen sc1")
    a("s_mov_b64 exec, -1")
    stamp(a, 8)
    run(c1[6:8])
    wait_cnt(a, C_G1, 4)
    wait_cnt(a, C_WO, 4)
    NW1 = ENV("NW1", 8)
    run(pw(0, NW1))
    a.wait_vm(tokc[0])
    rd_c(0)
    if EPD:
        a(f"s_sleep {EPD}")
    EGR = 40
    a(f"s_mov_b32 s79, {SPIN}")
    a.label("F_EP")
    for i in range(8):
        a(f"buffer_load_dwordx4 {rng(EGR + 4 * i, 4)}, v{vEA + i}, s[60:63], 0 offen sc1")
        thr(a)
    a("s_mov_b64 s[8:9], 0")
    a("s_waitcnt vmcnt(0)")
    for i in range(8):
        a(f"v_cmp_ne_u32 s[12:13], s{S_NONCE}, v{EGR + 4 * i + 1}")
        a(f"v_cmp_ne_u32 vcc, s{S_NONCE}, v{EGR + 4 * i + 3}")
        a(f"v_mov_b32 v{EGR + 4 * i + 1}, v{EGR + 4 * i + 2}")
        a("s_or_b64 s[12:13], s[12:13], vcc")
        a(f"s_and_b64 s[12:13], s[12:13], s[{EMASK[i]}:{EMASK[i] + 1}]")
        a("s_or_b64 s[8:9], s[8:9], s[12:13]")
    a("s_cbranch_scc0 F_EOK")
    a("s_sleep 8")
    a("s_sub_u32 s79, s79, 1")
    a("s_cmp_lg_u32 s79, 0")
    a("s_cbranch_scc1 F_EP")
    a.label("F_EOK")
    stamp(a, 9)
    a.vm = 0
    a("s_waitcnt lgkmcnt(0)")
    rd_c(1)
    run(c2[0:4])
    pcmad(a, GS, M64, EGR, EGR + 4, T)
    for i in range(2, 8):
        pcmad(a, GS, M64, GS, EGR + 4 * i, T)
    a(f"v_pk_mul_f32 {pr(T)}, {pr(MQ)}, {pr(GS)} op_sel:[1,1] op_sel_hi:[1,0] neg_lo:[1,0]")
    a(f"v_pk_fma_f32 {pr(GS)}, {pr(MQ)}, {pr(GS)}, {pr(T)} op_sel_hi:[0,1,1]")
    for sw in ("v_permlane16_swap_b32", "v_permlane32_swap_b32"):
        a(f"v_mov_b32 v{T}, v{GS}")
        a(f"v_mov_b32 v{T + 1}, v{GS + 1}")
        a(f"{sw} v{GS}, v{T}")
        a(f"{sw} v{GS + 1}, v{T + 1}")
        a(f"v_pk_add_f32 {pr(GS)}, {pr(GS)}, {pr(T)}")
    for q in range(3):
        a(f"s_lshl_b64 exec, -1, {16 * (q + 1)}")
        pcmad(a, GS, M16, GS, SQ + 2 * q, T)
    a("s_mov_b64 exec, -1")
    PKR, PKI = 40, 48
    for r in range(16):
        if r % 4 == 0:
            run(c2[4 + r // 4:5 + r // 4])
        pcmad(a, BP(r), M1, GS if r == 0 else BP(r - 1), BP(r), T)
        if r % 2 == 0 and r > 0:
            a(f"v_cvt_pk_bf16_f32 v{PKR + r // 2 - 1}, v{BP(r - 2)}, v{BP(r - 1)}")
            a(f"v_cvt_pk_bf16_f32 v{PKI + r // 2 - 1}, v{BP(r - 2) + 1}, v{BP(r - 1) + 1}")
    a(f"v_cvt_pk_bf16_f32 v{PKR + 7}, v{BP(14)}, v{BP(15)}")
    a(f"v_cvt_pk_bf16_f32 v{PKI + 7}, v{BP(14) + 1}, v{BP(15) + 1}")
    a(f"ds_write_b128 v{vTw}, {rng(PKR, 4)}")
    a(f"ds_write_b128 v{vTw}, {rng(PKR + 4, 4)} offset:16")
    a(f"ds_write_b128 v{vTw}, {rng(PKI, 4)} offset:2304")
    a(f"ds_write_b128 v{vTw}, {rng(PKI + 4, 4)} offset:2320")
    HO = 56
    for part in range(2):
        for tau in range(2):
            for u in range(2):
                r = HO + 8 * part + 4 * tau + 2 * u
                a(f"ds_read_b64_tr_b16 v[{r}:{r + 1}], v{vTr} offset:{part * 2304 + u * 576 + tau * 32}")
    srd(a, 60, P_WS, HF_BYTES, HF_OFF)
    a(f"s_lshl_b32 s8, s{S_HP}, 2")
    a(f"s_add_u32 s8, s8, s{S_WA}")
    a(f"s_mul_i32 s9, s{S_PG}, 56")
    a("s_add_u32 s9, s9, s8")
    a("s_lshl_b32 s9, s9, 11")
    a(f"s_add_u32 s12, s9, {28 * 2048}")
    a(f"s_mul_i32 s13, s{S_PG}, 28")
    a("s_add_u32 s13, s13, s8")
    a("s_lshl_b32 s13, s13, 6")
    a(f"s_add_u32 s13, s13, {HFL_OFF}")
    a("v_mov_b32 v6, 0")
    a("s_waitcnt lgkmcnt(0)")
    for part in range(2):
        for tau in range(2):
            a(f"buffer_store_dwordx4 {rng(HO + 8 * part + 4 * tau, 4)}, v{V_L16}, s[60:63], {'s12' if part else 's9'} offen offset:{1024 * tau} sc1")
    a("s_waitcnt vmcnt(0)")
    a("s_mov_b64 exec, 1")
    a("buffer_store_dword v115, v6, s[64:67], s13 offen sc1")
    a("s_mov_b64 exec, -1")
    stamp(a, 10)
    rd_c(2)
    run(c3)
    run(pw(NW1, 15))
    a.wait_vm(tokc[3])
    rd_c(3)
    a("s_waitcnt lgkmcnt(0)")
    arrive(a, C_ARED)


def a3(a):
    acc = lambda ta, b: 40 + 32 * ta + 16 * b
    a("s_mul_i32 s8, s14, 14")
    a(f"s_mul_i32 s13, s{S_PG}, 28")
    a("s_add_u32 s13, s13, s8")
    a("s_lshl_b32 s13, s13, 6")
    a(f"s_add_u32 s13, s13, {HFL_OFF}")
    a(f"s_lshl_b32 s12, s{S_PG}, 1")
    a("s_add_u32 s12, s12, s15")
    a("s_mul_i32 s12, s12, 28")
    a("s_lshl_b32 s9, s14, 1")
    a("s_add_u32 s9, s9, s12")
    a("s_add_u32 s9, s9, 12")
    a("s_lshl_b32 s9, s9, 11")
    a("s_lshl_b32 s8, s14, 4")
    a("s_add_u32 s12, s12, s8")
    a("s_lshl_b32 s12, s12, 11")
    srd(a, 56, P_OUT, OUT_BYTES)
    F = acc(0, 0)
    for r in range(16):
        x = XSK[r // 2]
        a(f"v_and_b32 v{F + r}, 0xffff0000, v{x}" if r % 2 else f"v_lshlrev_b32 v{F + r}, 16, v{x}")
    for r in range(0, 16, 2):
        a(f"v_pk_mul_f32 {pr(F + r)}, {pr(F + r)}, {pr(vD3 - 1)} op_sel:[0,1] op_sel_hi:[1,1]")
    a("s_waitcnt vmcnt(0)")
    arrive(a, C_WO)
    poll_flags(a, vF3, 64, "s13", sleep=4)
    stamp(a, 11)
    a.vm = 0
    pool = [16, 24, 32, 104, 112, 240, 248]
    hreg, tok = {}, {}
    _thr[0] = ENV("THRH", THR)

    def step_off(kk):
        if kk == 11:
            a("s_mov_b32 s12, s9")
        elif kk % 2 == 1:
            a("s_add_u32 s12, s12, 4096")

    for kk in range(7):
        r = hreg[kk] = pool[kk]
        off = (kk % 2) * 2048
        a(f"buffer_load_dwordx4 {rng(r, 4)}, v{vH0}, s[60:63], s12 offen offset:{off} sc1")
        tok[kk] = a.one(f"buffer_load_dwordx4 {rng(r + 4, 4)}, v{vH1}, s[60:63], s12 offen offset:{off} sc1")
        step_off(kk)
        thr(a)
    a(f"s_mul_i32 s10, s{S_WA}, 12288")
    a(f"s_add_u32 s10, s10, {L_ARED}")
    a(f"v_add_u32 v13, s10, v{V_L16}")
    wait_cnt(a, C_ARED, 4)
    for kk in range(7, 13):
        off = (kk % 2) * 2048
        a(f"s_add_u32 m0, s10, {(kk - 7) * 2048 - off + 4096}")
        a("s_sub_u32 m0, m0, 4096")
        a(f"buffer_load_dwordx4 v{vH0}, s[60:63], s12 offen offset:{off} sc1 lds")
        a("s_add_u32 m0, m0, 1024")
        thr(a)
        tok[kk] = a.one(f"buffer_load_dwordx4 v{vH1}, s[60:63], s12 offen offset:{off} sc1 lds")
        step_off(kk)
    a(f"s_setprio {ENV('A3PRIO', 0)}")
    if ENV("A3GATE", 0):
        wait_cnt(a, C_RED, 1, sleep=4)
    a.lg = 0
    lt = {}
    for kk in range(14):
        if kk < 7 or kk == 13:
            a.wait_vm(tok[kk])
        else:
            a.wait_lg(lt[kk])
        for ta in range(2):
            for b in range(2):
                d = acc(ta, b)
                c = "0" if kk == 0 and d != F else rng(d, 16)
                if not ENV("NOMF3", 0):
                    a(f"{MF32} {rng(d, 16)}, {rng(hreg[kk] + 4 * ta, 4)}, {rng(CF(kk, b), 4)}, {c}")
        if kk == 0:
            r = hreg[13] = hreg[0]
            a(f"buffer_load_dwordx4 {rng(r, 4)}, v{vH0}, s[60:63], s12 offen offset:2048 sc1")
            tok[13] = a.one(f"buffer_load_dwordx4 {rng(r + 4, 4)}, v{vH1}, s[60:63], s12 offen offset:2048 sc1")
        elif kk <= 6:
            n = kk + 6
            r = hreg[n] = hreg[kk]
            if kk == 1:
                a.wait_vm(tok[12])
            a(f"ds_read_b128 {rng(r, 4)}, v13 offset:{(n - 7) * 2048}")
            lt[n] = a.one(f"ds_read_b128 {rng(r + 4, 4)}, v13 offset:{(n - 7) * 2048 + 1024}")
        if kk == 12:
            arrive(a, C_ARED)
    a("s_setprio 2")
    wait_cnt(a, C_ARED, 8)
    for j in range(1, 4):
        a(f"s_xor_b32 s8, s{S_WA}, {j}")
        a("s_mul_i32 s8, s8, 12288")
        a(f"s_add_u32 s8, s8, {L_ARED}")
        a(f"v_add_u32 v5, s8, v{V_L16}")
        for qd in range(4):
            a(f"ds_write_b128 v5, {rng(acc(j // 2, j % 2) + 4 * qd, 4)} offset:{(j - 1) * 4096 + qd * 1024}")
    a("s_waitcnt lgkmcnt(0)")
    arrive(a, C_ARED)
    wait_cnt(a, C_ARED, 12)
    a.lg = 0
    toks = {}
    for qd in range(4):
        for j in range(1, 4):
            toks[qd, j] = a.one(f"ds_read_b128 {rng(acc(j // 2, j % 2) + 4 * qd, 4)}, v13 offset:{(j - 1) * 4096 + qd * 1024}")
    a("s_mov_b32 s8, 0")
    for qd in range(4):
        a.wait_lg(toks[qd, 3])
        for j in range(1, 4):
            for r in range(0, 4, 2):
                x, y = F + 4 * qd + r, acc(j // 2, j % 2) + 4 * qd + r
                add2(a, x, y)
        for r in range(4):
            a(f"buffer_store_dword v{F + 4 * qd + r}, v{vO3}, s[56:59], s8 offen offset:{3584 * (r % 2)}{OSC1}")
            if r % 2 == 1:
                a("s_add_u32 s8, s8, 7168")
    stamp(a, 13)


if __name__ == "__main__":
    import sys
    NAME = "concat_heads__ssm_conv_s5__grouped_kv_mqa__prompt"
    ref = open(f"cdna_kernels/{NAME}.s.ref").read().split("\n")
    head = [l for l in ref if l.startswith(";") and "@launch" not in l and "Override" not in l and "grid=ceil" not in l]
    a = Asm()
    a.raw("\n".join(head))
    KN = NAME + "_kernel" if ENV("SINGLE", 0) else "f_kernel"
    a.raw(f"; @launch {'' if ENV('SINGLE', 0) else 'kernel=f_kernel '}grid=(256,1,1) block=(512,1,1) lds={F_LDS}")
    a.raw('.amdgcn_target "amdgcn-amd-amdhsa--gfx950"\n.text')
    gen_g(a, KN)
    a.raw(".p2align 8\n.fill 4096, 4, 0xbf800000")
    a.raw('.section .rodata,"a"')
    a.raw(kernel_desc(KN, 256))
    out = sys.argv[1] if len(sys.argv) > 1 else f"cdna_kernels/{NAME}.s"
    open(out, "w").write(a.text())
    print("wrote", out, "nops", a.nops)
```

```python
import re

TRANS = ("v_exp_f32", "v_log_f32", "v_rcp_f32", "v_rsq_f32", "v_sqrt_f32", "v_sin_f32", "v_cos_f32",
         "v_exp_f16", "v_rcp_iflag_f32")

_reg_re = re.compile(r"^(-|abs\(|\|)?([vsa])(\d+)\)?\|?$")
_rng_re = re.compile(r"^(-|abs\(|\|)?([vsa])\[(\d+):(\d+)\]\)?\|?$")


def regs_of(tok):
    tok = tok.strip()
    m = _reg_re.match(tok)
    if m:
        return [(m.group(2), int(m.group(3)))]
    m = _rng_re.match(tok)
    if m:
        return [(m.group(2), i) for i in range(int(m.group(3)), int(m.group(4)) + 1)]
    if tok == "vcc":
        return [("vcc", 0)]
    if tok == "exec":
        return [("exec", 0)]
    if tok == "m0":
        return [("m0", 0)]
    return []


def v(n, cnt=1):
    return f"v{n}" if cnt == 1 else f"v[{n}:{n + cnt - 1}]"


def s(n, cnt=1):
    return f"s{n}" if cnt == 1 else f"s[{n}:{n + cnt - 1}]"


class Inst:
    __slots__ = ("text", "mn", "kind", "w", "r", "srcc", "ab", "passes", "states", "store_data", "flags")


def parse(text):
    t = text.split(";")[0].strip()
    i = Inst()
    i.text = text
    parts = t.split(None, 1)
    mn = parts[0]
    i.mn = mn
    rest = parts[1] if len(parts) > 1 else ""
    rest = re.sub(r"\s+(op_sel|op_sel_hi|neg_lo|neg_hi):\[[^\]]*\]", "", rest)
    ops = [o.strip() for o in rest.split(",")] if rest else []
    mods = []
    if ops:
        last = ops[-1].split()
        ops[-1] = last[0] if last else ""
        mods = last[1:]
    i.w, i.r, i.srcc, i.ab, i.passes, i.states, i.store_data, i.flags = set(), set(), set(), set(), 0, 1, set(), set()
    R = lambda k: set(sum((regs_of(o) for o in ops[k:]), []))
    if mn == "s_nop":
        i.kind = "nop"
        i.states = int(ops[0], 0) + 1
    elif mn.startswith("v_mfma"):
        i.kind = "mfma"
        i.passes = 8 if "32x32x16" in mn else 4 if "16x16x32" in mn else None
        assert i.passes
        i.w = set(regs_of(ops[0]))
        i.ab = set(regs_of(ops[1])) | set(regs_of(ops[2]))
        i.srcc = set(regs_of(ops[3]))
        i.r = i.ab | i.srcc
    elif mn.startswith("v_cmp"):
        i.kind = "valu"
        i.w = set(regs_of(ops[0]))
        i.r = R(1)
        if mn.startswith("v_cmpx"):
            i.w.add(("exec", 0))
    elif mn.startswith("v_permlane"):
        i.kind = "valu"
        i.flags.add("permlane")
        i.w = R(0)
        i.r = R(0)
    elif mn.startswith("v_readfirstlane") or mn.startswith("v_readlane"):
        i.kind = "valu"
        i.flags.add("readlane")
        i.w = set(regs_of(ops[0]))
        i.r = R(1)
    elif mn == "v_nop":
        i.kind = "valu"
    elif mn.startswith("v_"):
        i.kind = "valu"
        base = mn.replace("_e32", "").replace("_e64", "")
        if base in TRANS:
            i.flags.add("trans")
        i.w = set(regs_of(ops[0]))
        if mn.startswith(("v_add_co", "v_sub_co", "v_addc_co", "v_subb_co")):
            i.w |= set(regs_of(ops[1]))
            i.r = R(2)
        else:
            i.r = R(1)
        if mn.startswith(("v_fmac", "v_dot2c")) or "UNUSED_PRESERVE" in t:
            i.r |= i.w
        if "_dpp" in mn:
            i.flags.add("dpp")
            i.r |= i.w
        if "_sdwa" in mn or ("op_sel" in t and not mn.startswith("v_pk_")):
            i.flags.add("opsel")
    elif mn.startswith(("buffer_load", "global_load")):
        i.kind = "vmem"
        if "lds" in mods:
            i.r = R(0) | {("m0", 0)}
            i.flags.add("ldsdma")
        else:
            i.w = set(regs_of(ops[0]))
            i.r = R(1)
            if "d16" in mn:
                i.r |= i.w
    elif mn.startswith(("buffer_store", "global_store", "buffer_atomic", "global_atomic")):
        i.kind = "vmem"
        i.r = R(0)
        if "x3" in mn or "x4" in mn:
            d = ops[0] if mn.startswith("buffer") else ops[1]
            i.store_data = set(regs_of(d))
        if "atomic" in mn and "sc0" in mods:
            i.w = set(regs_of(ops[0]))
    elif mn.startswith(("buffer_inv", "buffer_wbl2")):
        i.kind = "vmem"
    elif mn.startswith(("ds_read", "ds_bpermute", "ds_permute", "ds_swizzle")) or (mn.startswith("ds_") and "_rtn" in mn):
        i.kind = "ds"
        i.w = set(regs_of(ops[0]))
        i.r = R(1)
        if "d16" in mn:
            i.r |= i.w
    elif mn.startswith("ds_"):
        i.kind = "ds"
        i.r = R(0)
    elif mn.startswith(("s_load", "s_buffer_load", "s_memtime", "s_memrealtime")):
        i.kind = "smem"
        i.w = set(regs_of(ops[0]))
        i.r = R(1)
    elif mn.startswith(("s_waitcnt", "s_barrier", "s_branch", "s_cbranch", "s_endpgm", "s_setprio", "s_sleep")):
        i.kind = "ctl"
    elif mn.startswith("s_cmp") or mn.startswith("s_bitcmp"):
        i.kind = "salu"
        i.r = R(0)
    elif mn.startswith("s_"):
        i.kind = "salu"
        i.w = set(regs_of(ops[0]))
        i.r = R(1)
        if "saveexec" in mn:
            i.w.add(("exec", 0))
    else:
        raise ValueError("unknown instruction " + text)
    return i


def isv(x):
    return x[0] in ("v", "a")


def need(p, c):
    n = 0
    pw_v = {x for x in p.w if isv(x)}
    pw_s = {x for x in p.w if x[0] in ("s", "vcc")}
    if p.kind == "valu":
        if c.kind == "mfma" and pw_v & c.r:
            n = max(n, 2)
        if "trans" in p.flags and c.kind == "valu" and pw_v & c.r:
            n = max(n, 1)
        if "trans" in p.flags and c.kind in ("vmem", "ds") and pw_v & c.r:
            n = max(n, 1)
        if "opsel" in p.flags and c.kind == "valu" and pw_v & (c.r | c.w):
            n = max(n, 1)
        if c.kind == "valu" and pw_s & c.r:
            n = max(n, 4 if "readlane" in c.flags else 2)
        if c.kind == "valu" and ("vcc", 0) in pw_s and c.mn.startswith(("v_cndmask", "v_addc", "v_subb")):
            n = max(n, 2)
        if c.kind == "vmem" and pw_s & c.r:
            n = max(n, 5)
        if c.kind in ("salu", "smem") and pw_s & c.r:
            n = max(n, 1)
        if c.kind == "ctl" and ("vcc", 0) in pw_s and "vcc" in c.mn:
            n = max(n, 1)
        if "readlane" in c.flags and pw_v & c.r:
            n = max(n, 1)
        if ("permlane" in c.flags or "dpp" in c.flags) and pw_v & c.r:
            n = max(n, 2)
        if ("exec", 0) in p.w:
            if c.kind == "mfma" or "readlane" in c.flags or "permlane" in c.flags:
                n = max(n, 4)
            if "dpp" in c.flags:
                n = max(n, 5)
    if p.kind == "mfma":
        big = {4: 8, 8: 12}[p.passes]
        if c.kind == "mfma":
            if pw_v & c.ab:
                n = max(n, big)
            if pw_v & c.srcc:
                if not (c.srcc == pw_v and c.passes == p.passes):
                    n = max(n, big - 2)
            elif pw_v & c.w and not (c.w == pw_v):
                n = max(n, big - 2)
        elif c.kind == "valu":
            if pw_v & (c.r | c.w):
                n = max(n, big)
            if p.srcc & c.w:
                n = max(n, {4: 3, 8: 7}[p.passes])
        elif c.kind in ("vmem", "ds"):
            if pw_v & (c.r | c.w):
                n = max(n, big)
    if p.kind == "salu" and ("m0", 0) in p.w and ("m0", 0) in c.r and c.kind in ("vmem", "ds"):
        n = max(n, 1)
    if p.kind == "vmem" and p.store_data and (p.store_data & c.w):
        n = max(n, 2)
    return n


class Asm:
    def __init__(self):
        self.out = []
        self.hist = []
        self.vm = 0
        self.lg = 0
        self.nops = 0

    def raw(self, text):
        self.out.append(text)

    def comment(self, text):
        self.out.append("    ; " + text)

    def _emit(self, inst):
        self.out.append("    " + inst.text)
        self.hist.append(inst)
        if len(self.hist) > 40:
            self.hist.pop(0)

    def __call__(self, text):
        for line in text.strip().split("\n"):
            line = line.strip()
            if not line or line.startswith(";"):
                continue
            self.one(line)

    def one(self, text):
        c = parse(text)
        if c.kind == "salu" and ("exec", 0) in c.w:
            for p in reversed(self.hist):
                if p.kind in ("valu", "mfma"):
                    if p.kind == "mfma" or p.mn.startswith("v_pk_"):
                        self._emit(parse("v_nop"))
                        self._emit(parse("v_nop"))
                    break
        dist = 0
        pad = 0
        for p in reversed(self.hist):
            n = need(p, c)
            if n > dist:
                pad = max(pad, n - dist)
            dist += p.states
            if dist > 24:
                break
        while pad > 0:
            k = min(pad, 16)
            self._emit(parse(f"s_nop {k - 1}"))
            self.nops += 1
            pad -= k
        self._emit(c)
        if c.kind == "vmem":
            self.vm += 1
            return self.vm
        if c.kind == "ds":
            self.lg += 1
            return self.lg
        return None

    def label(self, name, flush=True):
        if flush:
            self.fence()
        self.out.append(name + ":")

    def fence(self):
        dist = 0
        pad = 0
        for p in reversed(self.hist):
            n = 12 if p.kind == "mfma" and p.passes == 8 else 8 if p.kind == "mfma" else 5 if p.kind == "valu" else 2 if p.kind == "vmem" else 1 if p.kind == "salu" else 0
            if n > dist:
                pad = max(pad, n - dist)
            dist += p.states
            if dist > 24:
                break
        if pad > 0:
            self._emit(parse(f"s_nop {pad - 1}"))
        self.hist = []

    def wait_vm(self, tok):
        n = self.vm - tok
        assert 0 <= n
        self.one(f"s_waitcnt vmcnt({min(n, 63)})")

    def wait_lg(self, tok):
        n = self.lg - tok
        assert 0 <= n
        self.one(f"s_waitcnt lgkmcnt({min(n, 15)})")

    def text(self):
        return "\n".join(self.out) + "\n"
```

```python
from gen_common import *

MF16 = "v_mfma_f32_16x16x32_bf16"
MF32 = "v_mfma_f32_32x32x16_bf16"
ENV = lambda k, d: int(os.environ.get(k, str(d)))
ASPACE = ENV('ASPACE', 0)
PFW1 = ENV('PFW1', 2)
OSC1 = " sc1" if ENV('OSC1', 1) else ""
POLLD = ENV("POLLD", 0)
EPD = ENV("EPD", 0)
THR = ENV('THR', 4)
BPRI = ENV("BPRI", 1)
WOB = 0

L_WQ = 0
L_WKV = 57344
L_XB = 86016
L_QF = 143360
L_KVP = 151552
L_ASCR = 161536
L_BRED = 0
L_PX = L_BRED
L_ARED = 49152
L_HS = 65536
L_WO = 98304
L_MISC = 163584
F_LDS = 163840
(C_ST0, C_ST1, C_ST2, C_QF, C_RED, C_WO, C_RED2, C_NONCE, C_BAD, C_PX0, C_PX1, C_KVL, C_KVP,
 C_XA0, C_XA1, C_XA2, C_G1, C_ARED, C_CDONE, C_FB) = range(20)
C_XP = 24

FLG_OFF = 0x300000
KVF_OFF = 0
OFL_OFF = 0x4000
HFL_OFF = 0x14000
FLG_BYTES = 0x24000
EG_OFF = 0x340000
EG_BYTES = 32 * 448 * 16
HF_OFF = H_OFF
HF_BYTES = 32 * 2 * 28 * 2048
SPIN = 1 << 18

S_WA, S_PG, S_HP, S_ROT, S_NONCE = 5, 50, 51, 76, 77
V_PF, V_LANE, V_N, V_G, V_L16, V_CNT, V_ONE = 0, 1, 2, 3, 4, 14, 15
SB1, SB2 = ENV('SB1', 4), ENV('SB2', 8)
STAGES = [(0, SB1, C_ST0), (SB1, SB2, C_ST1), (SB2, 14, C_ST2)]


M1, M16, M64, MQ, K1, K2, GS = 16, 18, 20, 22, 24, 26, 28
V_P16 = 30
vXd, vBd, vXr, vBr, vCs = 32, 34, 36, 8, 12
VBRH = [31, 245, 246, 247]
vCd, vWo, vTw, vTr, vEA = 240, 242, 243, 244, 248
vH0, vH1, vO3, vX3, vF3, vD3 = 120, 121, 122, 123, 124, 125
EMASK = [18, 20, 30, 34, 36, 38, 40, 46]
CF = lambda kk, b: 128 + 8 * kk + 4 * b
UNIT = [4, 0, 1, 2, 3, 4, 0]


def rng(r, n):
    return f"v[{r}:{r + n - 1}]"


_uid = [0]


def uid(p):
    _uid[0] += 1
    return f"{p}_{_uid[0]}"


def arrive(a, c, vbase=V_CNT):
    a("s_mov_b64 exec, 1")
    a(f"ds_add_u32 v{vbase}, v{V_ONE} offset:{4 * c}")
    a("s_mov_b64 exec, -1")


def wait_cnt(a, c, target, vt=5, st=78, sleep=1, nz=False, vbase=V_CNT):
    l, d = uid("LW"), uid("LD")
    a(f"s_mov_b32 s79, {SPIN}")
    a.label(l, flush=False)
    a(f"ds_read_b32 v{vt}, v{vbase} offset:{4 * c}")
    a("s_waitcnt lgkmcnt(0)")
    a(f"v_readfirstlane_b32 s{st}, v{vt}")
    a(f"s_cmp_lg_u32 s{st}, 0" if nz else f"s_cmp_ge_u32 s{st}, {target}")
    a(f"s_cbranch_scc1 {d}")
    a(f"s_sleep {sleep}")
    a("s_sub_u32 s79, s79, 1")
    a("s_cmp_lg_u32 s79, 0")
    a(f"s_cbranch_scc1 {l}")
    a.label(d, flush=False)


def poll_flags(a, vaddr, srd_, soff, vt=5, sleep=2):
    l, d = uid("PW"), uid("PD")
    a(f"s_mov_b32 s79, {SPIN}")
    a.label(l, flush=False)
    a(f"buffer_load_dword v{vt}, v{vaddr}, s[{srd_}:{srd_ + 3}], {soff} offen sc1")
    a("s_waitcnt vmcnt(0)")
    a(f"v_cmp_ne_u32 vcc, s{S_NONCE}, v{vt}")
    a(f"s_cbranch_vccz {d}")
    a(f"s_sleep {sleep}")
    a("s_sub_u32 s79, s79, 1")
    a("s_cmp_lg_u32 s79, 0")
    a(f"s_cbranch_scc1 {l}")
    a.label(d, flush=False)


def rot_step(a, sk, step, wrap):
    a(f"s_add_u32 s{sk}, s{sk}, {step}")
    a(f"s_cmp_ge_u32 s{sk}, {wrap}")
    a(f"s_cselect_b32 s{sk}, 0, s{sk}")


def blk_dma_voffset(a, vd, vrow, rows2=8):
    a(f"v_mul_u32_u24 v5, 896, v{vrow}")
    a(f"v_and_b32 v6, 7, v{V_LANE}")
    a(f"v_xor_b32 v6, v6, v{V_G}")
    a(f"v_lshl_add_u32 v{vd}, v6, 4, v5")
    a(f"v_xor_b32 v6, 4, v6")
    a(f"v_lshl_add_u32 v5, v6, 4, v5")
    a(f"v_add_u32 v{vd + 1}, {896 * rows2}, v5")


def xb_dma_voffset(a, vd, s_row0):
    a(f"v_lshrrev_b32 v7, 3, v{V_LANE}")
    a(f"v_add_u32 v7, {s_row0}, v7")
    blk_dma_voffset(a, vd, 7)


def xfrag16_base(a, vd, base):
    a(f"v_lshrrev_b32 v5, 1, v{V_N}")
    a(f"v_xor_b32 v5, v5, v{V_G}")
    a("v_lshlrev_b32 v5, 4, v5")
    a(f"v_lshl_add_u32 v5, v{V_N}, 7, v5")
    a(f"v_add_u32 v{vd}, {base}, v5")
    a(f"v_xor_b32 v{vd + 1}, 64, v{vd}")


def prefetch_w(a, ptr, sr, vd):
    srd(a, sr, ptr, W_BYTES)
    a(f"buffer_load_dword v{vd}, v{V_PF}, s[{sr}:{sr + 3}], 0 offen")


def prefetch_xa(a, sr, vd):
    srd(a, sr, P_AX, X_BYTES)
    a(f"s_mul_i32 s8, s{S_PG}, 448")
    a(f"s_mul_i32 s9, s{S_HP}, 56")
    a("s_add_u32 s8, s8, s9")
    a(f"s_mul_i32 s9, s{S_WA}, 14")
    a("s_add_u32 s8, s8, s9")
    a(f"v_min_u32 v5, 13, v{V_LANE}")
    a("v_add_lshl_u32 v5, v5, s8, 7")
    a(f"buffer_load_dword v{vd}, v5, s[{sr}:{sr + 3}], 0 offen")


def gen_g(a, name):
    a.raw(f".globl {name}\n.p2align 8\n.type {name},@function\n{name}:")
    a.hist = []
    a("s_cmp_ge_u32 s2, 256")
    a("s_cbranch_scc1 F_END")
    stamp(a, 0)
    load_args(a)
    a("s_memrealtime s[6:7]")
    a("v_lshrrev_b32 v5, 6, v0")
    a(f"v_and_b32 v{V_LANE}, 63, v0")
    a("v_readfirstlane_b32 s3, v5")
    a(f"v_and_b32 v{V_N}, 15, v0")
    a(f"v_bfe_u32 v{V_G}, v0, 4, 2")
    a(f"v_lshlrev_b32 v{V_L16}, 4, v{V_LANE}")
    a(f"v_mov_b32 v{V_CNT}, {L_MISC}")
    a(f"v_mov_b32 v{V_ONE}, 1")
    a(f"v_lshl_add_u32 v5, v{V_LANE}, 2, v{V_CNT}")
    a("v_mov_b32 v6, 0")
    a("ds_write_b32 v5, v6")
    a("s_and_b32 s4, s2, 7")
    a("s_lshr_b32 s12, s2, 3")
    a("s_getpc_b64 s[10:11]")
    a("s_lshl_b32 s9, s12, 10")
    a("v_and_b32 v5, 7, v0")
    a("v_lshl_add_u32 v5, v5, 7, s9")
    a("s_cmp_lg_u32 s3, 3")
    a("s_cbranch_scc1 F_NPF")
    a("global_load_dword v8, v5, s[10:11]")
    a.label("F_NPF", flush=False)
    a("s_lshr_b32 s8, s12, 3")
    a(f"s_lshl_b32 s{S_PG}, s4, 2")
    a(f"s_add_u32 s{S_PG}, s{S_PG}, s8")
    a(f"s_and_b32 s{S_HP}, s12, 7")
    a(f"s_and_b32 s{S_WA}, s3, 3")
    a("s_lshl_b32 s8, s8, 1")
    a(f"s_add_u32 s8, s8, s{S_HP}")
    a("s_add_u32 s8, s8, s4")
    a("s_mul_i32 s9, s8, 9363")
    a("s_lshr_b32 s9, s9, 16")
    a("s_mul_i32 s9, s9, 7")
    a(f"s_sub_u32 s{S_ROT}, s8, s9")
    a("s_mul_i32 s9, s12, 98")
    a(f"s_mul_i32 s8, s{S_WA}, 25")
    a("s_add_u32 s9, s9, s8")
    a(f"v_add_u32 v5, s9, v{V_LANE}")
    a("v_lshlrev_b32 v5, 7, v5")
    a(f"v_cmp_gt_u32 vcc, 25, v{V_LANE}")
    a("v_mov_b32 v6, 0x7f000000")
    a(f"v_cndmask_b32 v{V_PF}, v6, v5, vcc")
    a("s_cmp_lt_u32 s3, 4")
    a("s_cbranch_scc1 F_B")
    a_front(a)
    a.label("F_B")
    b_front(a)
    attention(a)
    out_proj(a)
    fallback(a)
    a_main(a)
    a.label("F_END")
    a("s_endpgm")


def a_front(a):
    a.vm = a.lg = 0
    a("s_setprio 3")
    vXd, vWd, vT, vXr, vSt = 12, 16, 17, 22, 20
    XF = lambda i: 48 + 4 * i
    WF = lambda i, nt: 64 + 8 * i + 4 * nt
    ACC = 112
    a(f"s_lshr_b32 s14, s{S_HP}, 1")
    a(f"s_lshl_b32 s8, s{S_PG}, 6")
    a("s_lshl_b32 s9, s14, 4")
    a("s_add_u32 s8, s8, s9")
    xb_dma_voffset(a, vXd, "s8")
    a(f"v_lshrrev_b32 v5, 2, v{V_LANE}")
    a("v_mul_u32_u24 v5, 56, v5")
    a(f"v_and_b32 v6, 2, v{V_G}")
    a(f"v_and_b32 v7, 3, v{V_LANE}")
    a("v_xor_b32 v6, v6, v7")
    a(f"v_lshl_add_u32 v{vWd}, v6, 4, v5")
    a(f"s_lshl_b32 s10, s{S_WA}, 12")
    a(f"s_add_u32 s10, s10, {L_WKV}")
    a(f"s_lshl_b32 s11, s{S_WA}, 13")
    a("s_lshl_b32 s9, s14, 11")
    a("s_add_u32 s11, s11, s9")
    a(f"s_add_u32 s11, s11, {L_XB}")
    a(f"s_add_u32 s15, s{S_ROT}, s{S_WA}")
    a(f"s_lshl_b32 s8, s{S_HP}, 6")
    a(f"s_lshl_b32 s9, s{S_WA}, 4")
    a("s_add_u32 s9, s8, s9")
    a(f"v_add_u32 v5, s9, v{V_N}")
    a("v_min_u32 v5, 447, v5")
    a("v_lshlrev_b32 v5, 1, v5")
    a(f"s_and_b32 s9, s{S_WA}, 1")
    a("s_lshl_b32 s9, s9, 5")
    a("s_add_u32 s9, s8, s9")
    a(f"v_and_b32 v6, 31, v{V_LANE}")
    a("v_add_u32 v6, s9, v6")
    a("v_min_u32 v6, 447, v6")
    a("v_lshlrev_b32 v6, 1, v6")
    a("s_waitcnt lgkmcnt(0)")
    stamp(a, 1)
    a(f"global_load_ushort v100, v5, s[{P_LDT}:{P_LDT + 1}]")
    a(f"global_load_ushort v101, v5, s[{P_LRE}:{P_LRE + 1}]")
    a(f"global_load_ushort v102, v5, s[{P_LIM}:{P_LIM + 1}]")
    a(f"global_load_ushort v{vD3}, v6, s[{P_DSK}:{P_DSK + 1}]")
    srd(a, 52, P_BX, X_BYTES)
    a(f"s_bitcmp1_b32 s{S_HP}, 0")
    a(f"s_cselect_b32 s56, s{P_WV}, s{P_WK}")
    a(f"s_cselect_b32 s57, s{P_WV + 1}, s{P_WK + 1}")
    a(f"s_mov_b32 s58, {WKV_BYTES}")
    a("s_mov_b32 s59, 0x00020000")
    toks = {}
    for i in (1, 0):
        if i == 1:
            a(f"s_cmp_eq_u32 s{S_WA}, 3")
            a("s_cbranch_scc1 F_A3S")
        a(f"s_add_u32 s12, s15, {4 * i}")
        a("s_sub_u32 s13, s12, 7")
        a("s_cselect_b32 s12, s12, s13")
        a(f"s_add_u32 m0, s11, {32768 * i}")
        a("s_mul_i32 s13, s12, 3584")
        a("s_lshl_b32 s12, s12, 7")
        a(f"buffer_load_dwordx4 v{vXd}, s[52:55], s12 offen lds")
        a("s_add_u32 m0, m0, 1024")
        a("s_nop 0")
        a(f"buffer_load_dwordx4 v{vXd + 1}, s[52:55], s12 offen lds")
        a(f"s_add_u32 m0, s10, {16384 * i}")
        for q in range(4):
            if q:
                a("s_add_u32 m0, m0, 128")
            toks[i] = a.one(f"buffer_load_dwordx4 v{vWd}, s[56:59], s13 offen offset:{896 * q} lds")
        if i == 1:
            a.label("F_A3S", flush=False)
    a("s_barrier")
    stamp(a, 2)
    a(f"v_lshrrev_b32 v5, 2, v{V_N}")
    a(f"v_lshl_add_u32 v5, v{V_G}, 3, v5")
    a("v_lshlrev_b32 v5, 6, v5")
    a(f"v_and_b32 v6, 1, v{V_G}")
    a("v_lshl_add_u32 v5, v6, 5, v5")
    a(f"v_and_b32 v6, 3, v{V_N}")
    a("v_lshl_add_u32 v5, v6, 3, v5")
    a(f"v_add_u32 v{vT}, s10, v5")
    a(f"v_xor_b32 v{vT + 1}, 32, v{vT}")
    xfrag16_base(a, vXr, "s11")
    for r in range(8):
        a(f"v_mov_b32 v{ACC + r}, 0")
    a(f"s_lshl_b32 s8, s{S_WA}, 11")
    a(f"s_add_u32 s8, s8, {L_KVP}")
    a(f"v_add_u32 v21, s8, v{V_L16}")
    srd(a, 60, P_WS, 0x40000, KV_OFF)
    srd(a, 64, P_WS, FLG_BYTES, FLG_OFF)
    srd(a, 68, P_DBG, 256)
    a(f"s_lshl_b32 s8, s{S_PG}, 1")
    a("s_lshr_b32 s9, s14, 1")
    a("s_add_u32 s8, s8, s9")
    a("s_lshl_b32 s8, s8, 12")
    a("s_and_b32 s9, s14, 1")
    a("v_mov_b32 v30, 0")

    def reads(i):
        t = None
        for e in range(2):
            a(f"ds_read_b128 {rng(XF(2 * i + e), 4)}, v{vXr + e} offset:{32768 * i}")
            for nt in range(2):
                for u in range(2):
                    r = WF(2 * i + e, nt) + 2 * u
                    t = a.one(f"ds_read_b64_tr_b16 v[{r}:{r + 1}], v{vT + nt} offset:{16384 * i + 2048 * e + u * 256}")
        return t

    a(f"s_cmp_eq_u32 s{S_WA}, 3")
    a("s_cbranch_scc1 F_A3R")
    a.wait_vm(toks[1])
    reads(1)
    a.label("F_A3R", flush=False)
    a.wait_vm(toks[0])
    reads(0)
    arrive(a, C_KVL)
    stamp(a, 3)

    def mfmas(is_v):
        lab = uid("F_MS")
        a(f"s_cmp_eq_u32 s{S_WA}, 3")
        a(f"s_cbranch_scc1 {lab}")
        for i in (3, 2, 1, 0):
            if i == 3:
                a("s_waitcnt lgkmcnt(11)")
            if i == 1:
                a.label(lab, flush=False)
                a("s_waitcnt lgkmcnt(0)")
            for nt in range(2):
                d = ACC + 4 * nt
                w, x = rng(WF(i, nt), 4), rng(XF(i), 4)
                a(f"{MF16} {rng(d, 4)}, {x if is_v else w}, {w if is_v else x}, {rng(d, 4)}")

    a(f"s_bitcmp1_b32 s{S_HP}, 0")
    a("s_cbranch_scc1 F_VM")
    mfmas(False)
    a("s_branch F_KVM")
    a.label("F_VM", flush=False)
    mfmas(True)
    a.label("F_KVM")
    a(f"s_cmp_eq_u32 s{S_WA}, 3")
    a("s_cbranch_scc1 F_KVF")
    a(f"ds_write_b128 v21, {rng(ACC, 4)}")
    a(f"ds_write_b128 v21, {rng(ACC + 4, 4)} offset:1024")
    a("s_waitcnt lgkmcnt(0)")
    arrive(a, C_KVP)
    a("s_branch F_AM")
    a.label("F_KVF")
    a("buffer_load_dword v31, v30, s[68:71], 0 offen sc1")
    a(f"v_add_u32 v21, {L_KVP}, v{V_L16}")
    a(f"v_cmp_eq_u32 s[72:73], 3, v{V_G}")
    a(f"v_cmp_le_u32 s[74:75], 12, v{V_N}")
    wait_cnt(a, C_KVP, 3, sleep=0)
    for q in range(6):
        a(f"ds_read_b128 {rng(48 + 4 * q, 4)}, v21 offset:{1024 * q}")
    a(f"s_lshl_b32 s12, s{S_PG}, 3")
    a(f"s_add_u32 s12, s12, s{S_HP}")
    a("s_lshl_b32 s12, s12, 6")
    a(f"s_bitcmp1_b32 s{S_HP}, 0")
    a("s_cbranch_scc1 F_VE")

    def adds():
        a("s_waitcnt lgkmcnt(0)")
        for q in range(3):
            for r in range(0, 8, 2):
                add2(a, ACC + r, 48 + 8 * q + r)

    a("s_lshl_b32 s9, s9, 8")
    a("s_add_u32 s8, s8, s9")
    a(f"v_lshlrev_b32 v{vSt}, 9, v{V_G}")
    a(f"v_lshl_add_u32 v{vSt}, v{V_N}, 4, v{vSt}")
    a(f"s_mov_b32 s14, {f32(CSCALE)}")
    a("v_mov_b32 v6, 0x3f803f80")
    a("v_mov_b32 v7, 0x00003f80")
    adds()
    for r in range(8):
        a(f"v_mul_f32 v{ACC + r}, s14, v{ACC + r}")
    for r in range(4):
        a(f"v_cvt_pk_bf16_f32 v{8 + r}, v{ACC + 2 * r}, v{ACC + 2 * r + 1}")
    a("v_cndmask_b32 v10, v10, v6, s[72:73]")
    a("v_cndmask_b32 v11, v11, v7, s[72:73]")
    a(f"buffer_store_dwordx4 v[8:11], v{vSt}, s[60:63], s8 offen sc1")
    a("s_branch F_KVPUB")
    a.label("F_VE")
    a("s_lshl_b32 s9, s9, 10")
    a("s_add_u32 s8, s8, s9")
    a(f"v_and_b32 v5, 1, v{V_G}")
    a("v_lshlrev_b32 v5, 9, v5")
    a(f"v_lshl_add_u32 v5, v{V_N}, 4, v5")
    a(f"v_lshrrev_b32 v6, 1, v{V_G}")
    a(f"v_lshl_add_u32 v{vSt}, v6, 3, v5")
    a(f"v_cmp_eq_u32 vcc, 12, v{V_N}")
    a("v_mov_b32 v6, 0x3f803f80")
    a("v_cndmask_b32 v6, 0, v6, vcc")
    adds()
    for r in range(4):
        a(f"v_cvt_pk_bf16_f32 v{8 + r}, v{ACC + 2 * r}, v{ACC + 2 * r + 1}")
    a("v_cndmask_b32 v10, v10, v6, s[74:75]")
    a("v_cndmask_b32 v11, v11, v6, s[74:75]")
    a(f"buffer_store_dwordx2 v[8:9], v{vSt}, s[60:63], s8 offen offset:2048 sc1")
    a(f"buffer_store_dwordx2 v[10:11], v{vSt}, s[60:63], s8 offen offset:2304 sc1")
    a.label("F_KVPUB")
    stamp(a, 4)
    a(f"s_mov_b32 s79, {SPIN}")
    a("s_waitcnt vmcnt(0)")
    a.label("F_NP", flush=False)
    a(f"v_readfirstlane_b32 s{S_NONCE}, v31")
    a(f"s_cmp_lg_u32 s{S_NONCE}, 0")
    a("s_cbranch_scc1 F_NOK")
    a("buffer_load_dword v31, v30, s[68:71], 0 offen sc1")
    a("s_waitcnt vmcnt(0)")
    a("s_sub_u32 s79, s79, 1")
    a("s_cmp_lg_u32 s79, 0")
    a("s_cbranch_scc1 F_NP")
    a.label("F_NOK", flush=False)
    a("s_mov_b64 exec, 1")
    a(f"buffer_store_dword v31, v30, s[64:67], s12 offen offset:{KVF_OFF} sc1")
    a(f"ds_write_b32 v{V_CNT}, v31 offset:{4 * C_NONCE}")
    a("s_mov_b64 exec, -1")
    stamp(a, 2)
    a("s_branch F_AM")


QR = lambda i, h: 16 + 8 * i + 4 * h
O = lambda i: 48 + 16 * i
S = lambda b: 112 + 16 * b
P = 144
KB = lambda c, h: 152 + 16 * c + 4 * h
VB = lambda c, h: 152 + 16 * c + 8 + 4 * h


def kv_loads(a):
    L16 = V_L16

    def ldk(c):
        a(f"buffer_load_dwordx4 {rng(KB(c, 0), 4)}, v{L16}, s[56:59], s15 offen sc1")
        return a.one(f"buffer_load_dwordx4 {rng(KB(c, 1), 4)}, v{L16}, s[56:59], s15 offen offset:1024 sc1")

    def ldv(c):
        a(f"buffer_load_dwordx4 {rng(VB(c, 0), 4)}, v{L16}, s[56:59], s15 offen offset:2048 sc1")
        return a.one(f"buffer_load_dwordx4 {rng(VB(c, 1), 4)}, v{L16}, s[56:59], s15 offen offset:3072 sc1")
    return ldk, ldv


def kv_first(a):
    ldk, ldv = kv_loads(a)
    a("s_lshl_b32 s15, s2, 9")
    a("s_and_b32 s15, s15, 0xf000")
    for c in range(4):
        ldk(c)
        if c < 3:
            ldv(c)
            a("s_add_u32 s15, s15, 4096")
            a("s_and_b32 s15, s15, 0xffff")


def b_front(a):
    a.vm = a.lg = 0
    a("s_setprio 2")
    vWd, vXd, vQ, vT, vXr = 12, 28, 13, 16, 18
    a(f"v_lshrrev_b32 v5, 3, v{V_LANE}")
    a("s_lshl_b32 s9, s3, 3")
    a("v_add_u32 v6, s9, v5")
    a("v_mul_u32_u24 v6, 896, v6")
    a(f"v_bfe_u32 v7, v{V_LANE}, 1, 2")
    a("v_bfe_u32 v5, v5, 1, 1")
    a("v_xor_b32 v7, v7, v5")
    a("s_and_b32 s9, s3, 1")
    a("s_lshl_b32 s9, s9, 1")
    a("v_xor_b32 v7, s9, v7")
    a("v_lshrrev_b32 v5, 1, v7")
    a("v_mul_u32_u24 v5, 56, v5")
    a("v_add_u32 v6, v6, v5")
    a("v_and_b32 v5, 1, v7")
    a("v_lshl_add_u32 v6, v5, 5, v6")
    a(f"v_and_b32 v5, 1, v{V_LANE}")
    a("v_lshl_add_u32 v6, v5, 4, v6")
    a(f"s_mul_i32 s9, s{S_HP}, 112")
    a(f"v_add_u32 v{vWd}, s9, v6")
    a(f"s_lshl_b32 s8, s{S_PG}, 6")
    a("s_lshl_b32 s9, s3, 4")
    a("s_add_u32 s8, s8, s9")
    xb_dma_voffset(a, vXd, "s8")
    a("s_waitcnt lgkmcnt(0)")
    stamp(a, 1)
    a("s_or_b32 s8, s2, s3")
    a("s_cmp_lg_u32 s8, 0")
    a("s_cbranch_scc1 F_NN")
    srd(a, 68, P_DBG, 256)
    a("s_or_b32 s8, s6, 1")
    a("v_mov_b32 v5, s8")
    a("v_mov_b32 v6, 0")
    a("buffer_store_dword v5, v6, s[68:71], 0 offen sc1")
    a.label("F_NN")
    srd(a, 52, P_WQ, W_BYTES)
    srd(a, 56, P_BX, X_BYTES)
    a(f"s_lshl_b32 s12, s{S_ROT}, 7")
    a("s_lshl_b32 s10, s3, 10")
    a("s_lshl_b32 s11, s3, 11")
    a("s_barrier")
    if ENV("QPF", 0):
        a(f"buffer_load_dword v9, v{V_PF}, s[52:55], 0 offen")
    if ENV("KVLW", 0):
        wait_cnt(a, C_KVL, 4)
    toks = {}
    BTHR = ENV("BTHR", 0)

    def bthr():
        if BTHR:
            a(f"s_waitcnt vmcnt({BTHR})")

    def dma_pair(p_):
        a(f"s_add_u32 m0, s11, {L_XB + 8192 * p_}")
        a("s_mul_i32 s13, s12, 448")
        a(f"buffer_load_dwordx4 v{vXd}, s[56:59], s12 offen lds")
        a("s_add_u32 m0, m0, 1024")
        a("s_nop 0")
        a(f"buffer_load_dwordx4 v{vXd + 1}, s[56:59], s12 offen lds")
        a(f"s_add_u32 m0, s10, {L_WQ + 8192 * p_}")
        if p_ < 6:
            rot_step(a, 12, 128, 896)
        bthr()
        a(f"buffer_load_dwordx4 v{vWd}, s[52:55], s13 offen lds")
        a("s_add_u32 m0, m0, 4096")
        a(f"s_add_u32 s13, s13, {32 * 896}")
        toks[2 * p_ + 1] = a.one(f"buffer_load_dwordx4 v{vWd}, s[52:55], s13 offen lds")
        bthr()

    NB0 = ENV('NB0', 4)
    for p_ in range(NB0):
        dma_pair(p_)
    stamp(a, 2)
    if PFW1 == 1:
        prefetch_xa(a, 60, 10)
        prefetch_w(a, P_BRE, 60, 11)
    srd(a, 64, P_WS, FLG_BYTES, FLG_OFF)
    a(f"v_cmp_eq_u32 s[72:73], 3, v{V_G}")
    a(f"v_lshrrev_b32 v5, 2, v{V_N}")
    a(f"v_lshl_add_u32 v5, v{V_G}, 3, v5")
    a("v_lshlrev_b32 v5, 7, v5")
    a(f"v_lshrrev_b32 v6, 3, v{V_N}")
    a("v_lshl_add_u32 v5, v6, 5, v5")
    a(f"v_and_b32 v6, 1, v{V_G}")
    a("v_lshl_add_u32 v5, v6, 6, v5")
    a(f"v_and_b32 v6, 3, v{V_N}")
    a("v_lshl_add_u32 v5, v6, 3, v5")
    a("s_and_b32 s9, s3, 1")
    a("s_lshl_b32 s9, s9, 6")
    a(f"v_xor_b32 v{vT}, s9, v5")
    a(f"v_xor_b32 v{vT + 1}, 32, v{vT}")
    a("s_lshr_b32 s8, s3, 1")
    a("s_lshl_b32 s8, s8, 12")
    a(f"s_add_u32 s8, s8, {L_XB}")
    xfrag16_base(a, vXr, "s8")
    a("s_lshl_b32 s8, s3, 11")
    a(f"s_add_u32 s8, s8, {L_QF}")
    a(f"v_lshlrev_b32 v5, 9, v{V_G}")
    a(f"v_lshl_add_u32 v5, v{V_N}, 4, v5")
    a(f"v_add_u32 v{vQ}, s8, v5")
    XF = lambda b, f: 48 + 8 * b + 4 * f
    WF = lambda b, nt: 80 + 8 * b + 4 * nt
    ACC = lambda f, nt: 112 + 8 * f + 4 * nt
    a(f"v_lshlrev_b32 v30, 6, v{V_LANE}")
    a("s_lshl_b32 s8, s3, 12")
    for (k0, k1, cnt) in STAGES:
        a.wait_vm(toks[k1 - 1])
        arrive(a, cnt)
        wait_cnt(a, cnt, 4, sleep=0)
        if k0 == 0:
            stamp(a, 3)
            if ENV('B2POS', 1) < 0:
                for p_ in range(NB0, ENV('NB1', 6)):
                    dma_pair(p_)
        if cnt == C_ST1:
            for p_ in range(max(NB0, ENV('NB1', 6)), 7):
                dma_pair(p_)
        a.lg = 0
        lt = {}

        def rd(s_):
            for f in range(2):
                a(f"ds_read_b128 {rng(XF(s_ % 3, f), 4)}, v{vXr + s_ % 2} offset:{(s_ // 2) * 8192 + f * 2048}")
            t = None
            for nt in range(2):
                for u in range(2):
                    r = WF(s_ % 3, nt) + 2 * u
                    t = a.one(f"ds_read_b64_tr_b16 v[{r}:{r + 1}], v{vT + nt} offset:{s_ * 4096 + u * 512}")
            lt[s_] = t
        rd(k0)
        rd(k0 + 1)
        for s_ in range(k0, k1):
            if s_ + 2 < k1:
                rd(s_ + 2)
            a.wait_lg(lt[s_])
            for f in range(2):
                for nt in range(2):
                    d = ACC(f, nt)
                    c = "0" if s_ == 0 else rng(d, 4)
                    a(f"{MF16} {rng(d, 4)}, {rng(WF(s_ % 3, nt), 4)}, {rng(XF(s_ % 3, f), 4)}, {c}")
            if s_ == ENV("EPOLL", -1):
                a("buffer_load_dword v31, v30, s[64:67], s8 offen sc1")
            if s_ == ENV('B2POS', 1):
                for p_ in range(NB0, ENV('NB1', 6)):
                    dma_pair(p_)
    a("s_lshl_b32 s13, s3, 16")
    a(f"s_add_u32 s56, s{P_WS}, s13")
    a(f"s_addc_u32 s57, s{P_WS + 1}, 0")
    a(f"s_add_u32 s56, s56, {KV_OFF}")
    a("s_addc_u32 s57, s57, 0")
    a("s_mov_b32 s58, 65536")
    a("s_mov_b32 s59, 0x00020000")
    wait_cnt(a, C_NONCE, 0, st=S_NONCE, nz=True)
    if ENV("EPOLL", -1) >= 0:
        a("s_waitcnt vmcnt(0)")
        a(f"v_cmp_ne_u32 vcc, s{S_NONCE}, v31")
        a("s_cbranch_vccz F_KVE")
    a("buffer_load_dword v7, v30, s[64:67], s8 offen sc1")
    a("s_mov_b32 s9, 0")
    if ENV("EPOLL", -1) >= 0:
        a("s_branch F_KVE2")
        a.label("F_KVE", flush=False)
        kv_first(a)
        a("s_mov_b32 s9, 1")
        a.label("F_KVE2", flush=False)
    a("v_mov_b32 v6, v30")
    for f in range(2):
        b = ACC(f, 0)
        pk = 20 + 4 * f
        for r in range(4):
            a(f"v_cvt_pk_bf16_f32 v{pk + r}, v{b + 2 * r}, v{b + 2 * r + 1}")
        a(f"v_cndmask_b32 v{pk + 2}, v{pk + 2}, 0, s[72:73]")
        a(f"v_cndmask_b32 v{pk + 3}, v{pk + 3}, 0, s[72:73]")
        a(f"ds_write_b128 v{vQ}, {rng(pk, 4)} offset:{256 * f}")
    a("s_waitcnt lgkmcnt(0)")
    arrive(a, C_QF)
    stamp(a, 4)


def attention(a):
    L16 = V_L16
    ldk, ldv = kv_loads(a)
    srd(a, 60, P_WS, 0x200000, OF_OFF)
    for r in range(64):
        a(f"v_mov_b32 v{O(0) + r}, 0")
    for r in range(4):
        a(f"v_mov_b32 v{VB(3, 1) + r}, 0")
        a(f"v_mov_b32 v{P + 4 + r}, 0")
    for i in range(4):
        a(f"s_add_u32 s{68 + i}, s3, {i + 1}")
        a(f"s_and_b32 s{68 + i}, s{68 + i}, 3")
    a(f"v_cmp_le_u32 s[74:75], 32, v{V_LANE}")
    wait_cnt(a, C_QF, 4, sleep=0)
    for i in range(4):
        a(f"s_lshl_b32 s14, s{68 + i}, 11")
        a(f"s_add_u32 s14, s14, {L_QF}")
        a(f"v_add_u32 v13, s14, v{L16}")
        a(f"ds_read_b128 {rng(QR(i, 0), 4)}, v13")
        a(f"ds_read_b128 {rng(QR(i, 1), 4)}, v13 offset:1024")
    a("s_mov_b32 s4, 4")
    a("s_cmp_eq_u32 s9, 1")
    a("s_cbranch_scc1 F_GO")
    a("s_waitcnt vmcnt(0)")
    a(f"v_cmp_ne_u32 vcc, s{S_NONCE}, v7")
    a("s_cbranch_vccz F_KVOK")
    poll_flags(a, 6, 64, "s8", sleep=2)
    a.label("F_KVOK", flush=False)
    kv_first(a)
    a.label("F_GO", flush=False)
    stamp(a, 5)
    a("s_waitcnt lgkmcnt(0)")
    arrive(a, C_WO)
    a.label("F_RESTART", flush=False)
    a.vm = a.lg = 0
    a("s_waitcnt vmcnt(10)")
    a(f"{MF32} {rng(S(0), 16)}, {rng(KB(0, 0), 4)}, {rng(QR(0, 0), 4)}, 0")
    a(f"{MF32} {rng(S(0), 16)}, {rng(KB(0, 1), 4)}, {rng(QR(0, 1), 4)}, {rng(S(0), 16)}")
    a("s_mov_b32 s14, 4")
    if ENV("VMST", 0):
        a("s_mov_b32 s93, 0")
        stamp(a, 2, True)
    a("s_setprio 1")
    stamp(a, 6)
    a.fence()
    a.raw(".p2align 6")
    a.label("F_LOOP", flush=False)

    def ex(cur, k0, pk):
        for k in range(k0, k0 + 4):
            a(f"v_exp_f32 v{cur + k}, v{cur + k}")
        a(f"v_cvt_pk_bf16_f32 v{P + pk}, v{cur + k0}, v{cur + k0 + 1}")
        a(f"v_cvt_pk_bf16_f32 v{P + pk + 1}, v{cur + k0 + 2}, v{cur + k0 + 3}")

    def body():
        ld = lambda r, off: f"buffer_load_dwordx4 {rng(r, 4)}, v{L16}, s[56:59], s15 offen offset:{off} sc1"
        for ls in range(16):
            c, i = divmod(ls, 4)
            cur, nxt = S(ls % 2), S((ls + 1) % 2)
            cn, inx = divmod((ls + 1) % 16, 4)
            cp, ip = divmod((ls - 1) % 16, 4)
            X = [None] * 4
            if i == 0:
                X = ["s_setprio 3", ld(VB(cp, 0), 2048), ld(VB(cp, 1), 3072), "s_setprio 1"]
            elif i == 1:
                X = ["s_add_u32 s15, s15, 4096", "s_and_b32 s15, s15, 0xffff", None, "s_setprio 3"]
                if ls == 1:
                    X[2] = "s_cmp_eq_u32 s14, 1"
                    X[3] = "s_cselect_b32 s58, 0, s58"
                if ls == 13:
                    X[2] = f"ds_read_b32 v12, v{V_CNT} offset:{4 * C_WO}"
            elif i == 2:
                X = [ld(KB(c, 0), 0), ld(KB(c, 1), 1024), "s_setprio 1", "s_waitcnt vmcnt(10)"]
            elif ls == 15:
                X = [None, None, "s_sub_u32 s14, s14, 1", "s_cmp_lg_u32 s14, 0"]
            M = [f"{MF32} {rng(nxt, 16)}, {rng(KB(cn, 0), 4)}, {rng(QR(inx, 0), 4)}, 0",
                 f"{MF32} {rng(nxt, 16)}, {rng(KB(cn, 1), 4)}, {rng(QR(inx, 1), 4)}, {rng(nxt, 16)}",
                 f"{MF32} {rng(O(ip), 16)}, {rng(VB(cp, 1), 4)}, {rng(P + 4, 4)}, {rng(O(ip), 16)}",
                 f"{MF32} {rng(O(i), 16)}, {rng(VB(c, 0), 4)}, {rng(P, 4)}, {rng(O(i), 16)}"]
            for k in range(4):
                a(M[k])
                if X[k] and (BPRI or "setprio" not in X[k]):
                    a(X[k])
                ex(cur, 4 * k, 2 * k)

    n0 = a.nops
    body()
    assert a.nops == n0, "unexpected nops in attention loop"
    save = (list(a.out), list(a.hist), a.vm, a.lg)
    body()
    assert a.nops == n0, "unexpected nops across the attention back edge"
    a.out, a.hist, a.vm, a.lg = save
    a("s_cbranch_scc1 F_LOOP")
    a(f"{MF32} {rng(O(3), 16)}, {rng(VB(3, 1), 4)}, {rng(P + 4, 4)}, {rng(O(3), 16)}")
    a("s_setprio 3")
    if ENV("VMST", 0):
        stamp(a, 3, True)
    stamp(a, 7)
    a("s_waitcnt lgkmcnt(0)")
    a("v_readfirstlane_b32 s78, v12")
    a("s_cmp_ge_u32 s78, 8")
    a("s_cbranch_scc1 F_WOK")
    wait_cnt(a, C_WO, 8)
    a.label("F_WOK", flush=False)
    if WOB:
        a("s_mul_i32 m0, s3, 14336")
        a("s_mov_b32 s12, 0")
        for i in range(14):
            a(f"buffer_load_dwordx4 v216, s[52:55], s12 offen lds")
            if i < 13:
                a("s_add_u32 m0, m0, 1024")
                a(f"s_add_u32 s12, s12, {8 * 896}")
    for i in range(3):
        a(f"s_mul_i32 s14, s{68 + i}, 12288")
        a(f"s_add_u32 s14, s14, {L_BRED}")
        a(f"v_add_u32 v13, s14, v{L16}")
        for qd in range(4):
            a(f"ds_write_b128 v13, {rng(O(i) + 4 * qd, 4)} offset:{i * 4096 + qd * 1024}")
    a("s_mul_i32 s14, s3, 12288")
    a(f"s_add_u32 s14, s14, {L_BRED}")
    a(f"v_add_u32 v13, s14, v{L16}")
    a(f"s_lshl_b32 s14, s{S_PG}, 1")
    a("s_lshr_b32 s12, s3, 1")
    a("s_add_u32 s14, s14, s12")
    a("s_lshl_b32 s14, s14, 4")
    a(f"s_lshl_b32 s12, s{S_HP}, 1")
    a("s_add_u32 s14, s14, s12")
    a("s_and_b32 s12, s3, 1")
    a("s_add_u32 s14, s14, s12")
    a("s_lshl_b32 s12, s14, 6")
    a(f"s_add_u32 s12, s12, {OFL_OFF}")
    a("s_lshl_b32 s14, s14, 11")
    a(f"v_min3_f32 v8, v{O(0) + 12}, v{O(1) + 12}, v{O(2) + 12}")
    a(f"v_max3_f32 v9, v{O(0) + 12}, v{O(1) + 12}, v{O(2) + 12}")
    a(f"v_min_f32 v8, v8, v{O(3) + 12}")
    a(f"v_max_f32 v9, v9, v{O(3) + 12}")
    a("v_cmp_nle_f32 vcc, 0x1f800000, v8")
    a("s_and_b64 s[8:9], vcc, s[74:75]")
    a("v_cmp_nge_f32 vcc, 0x5f800000, v9")
    a("s_and_b64 vcc, vcc, s[74:75]")
    a("s_or_b64 s[8:9], s[8:9], vcc")
    a("s_cselect_b32 s8, 0x10001, 1")
    a("v_mov_b32 v8, s8")
    a("s_waitcnt lgkmcnt(0)")
    a("s_mov_b64 exec, 1")
    a(f"ds_add_u32 v{V_CNT}, v8 offset:{4 * C_RED}")
    a("s_mov_b64 exec, -1")
    a(f"s_mov_b32 s79, {SPIN}")
    a.label("F_RW", flush=False)
    a(f"ds_read_b32 v5, v{V_CNT} offset:{4 * C_RED}")
    a("s_waitcnt lgkmcnt(0)")
    a("v_readfirstlane_b32 s78, v5")
    a("s_and_b32 s8, s78, 0xffff")
    a("s_cmp_ge_u32 s8, s4")
    a("s_cbranch_scc1 F_RD")
    a("s_sub_u32 s79, s79, 1")
    a("s_cmp_lg_u32 s79, 0")
    a("s_cbranch_scc1 F_RW")
    a.label("F_RD", flush=False)
    a("s_cmp_eq_u32 s78, 4")
    a("s_cbranch_scc0 F_FBQ")
    a.label("F_RGO", flush=False)
    a.lg = 0
    toks = []
    for qd in (3, 0, 1, 2):
        for i in range(3):
            t = a.one(f"ds_read_b128 {rng(O(i) + 4 * qd, 4)}, v13 offset:{i * 4096 + qd * 1024}")
        toks.append((qd, t))
    F = O(3)
    for n, (qd, t) in enumerate(toks):
        a.wait_lg(t)
        for i in range(3):
            for r in range(0, 4, 2):
                x, y = F + 4 * qd + r, O(i) + 4 * qd + r
                add2(a, x, y)
        if n == 0:
            a(f"v_mov_b32 v12, v{F + 12}")
            a(f"v_mov_b32 v10, v{F + 12}")
            a("v_permlane32_swap_b32 v12, v10")
            a("v_rcp_f32 v10, v10")
    if WOB:
        a("s_waitcnt vmcnt(0)")
    arrive(a, C_RED2)
    for r in range(16):
        a(f"v_mul_f32 v{F + r}, v{F + r}, v10")
    for r in range(8):
        a(f"v_cvt_pk_bf16_f32 v{P + r}, v{F + 2 * r}, v{F + 2 * r + 1}")
    a(f"v_cndmask_b32 v{P + 6}, v{P + 6}, 0, s[74:75]")
    a(f"v_cndmask_b32 v{P + 7}, v{P + 7}, 0, s[74:75]")
    a(f"buffer_store_dwordx4 {rng(P, 4)}, v{L16}, s[60:63], s14 offen sc1")
    a(f"buffer_store_dwordx4 {rng(P + 4, 4)}, v{L16}, s[60:63], s14 offen offset:1024 sc1")
    stamp(a, 8)


def out_proj(a):
    L16 = V_L16
    vW, vR, vTk, vTs, vO = 16, 17, 18, 19, 20
    a(f"v_mov_b32 v8, s{S_NONCE}")
    a("v_mov_b32 v9, 0")
    a("s_and_b32 s9, s3, 1")
    a("s_lshr_b32 s10, s3, 1")
    a(f"v_lshrrev_b32 v5, 1, v{V_G}")
    a(f"v_lshrrev_b32 v7, 2, v{V_N}")
    a("v_lshl_add_u32 v5, v5, 2, v7")
    a("v_lshlrev_b32 v5, 7, v5")
    a(f"v_lshrrev_b32 v7, 3, v{V_N}")
    a("v_lshl_add_u32 v5, v7, 6, v5")
    a(f"v_and_b32 v7, 1, v{V_G}")
    a("v_lshl_add_u32 v5, v7, 5, v5")
    a(f"v_and_b32 v7, 3, v{V_N}")
    a("v_lshl_add_u32 v5, v7, 3, v5")
    a("s_lshl_b32 s13, s10, 6")
    a("v_xor_b32 v5, s13, v5")
    a("s_mul_i32 s13, s10, 28672")
    a(f"s_add_u32 s13, s13, {L_WO}")
    a(f"v_add_u32 v{vTk}, s13, v5")
    a(f"v_xor_b32 v{vTs}, 64, v{vTk}")
    WFR = lambda ks, q: 88 + 8 * ks + 4 * q
    order = [ks for ks in range(16) if ks != 7] + [7]

    def rdw(ks):
        hl, half = divmod(ks, 2)
        for q in range(2):
            for u in range(2):
                r = WFR(ks, q) + 2 * u
                a(f"ds_read_b64_tr_b16 v[{r}:{r + 1}], v{vTs if q else vTk} offset:{(28 * hl + 16 * half + 8 * u) * 128}")

    if WOB:
        wait_cnt(a, C_RED2, 4, sleep=0)
    for ks in order[:6]:
        rdw(ks)
    a("s_waitcnt vmcnt(0)")
    a("s_mov_b64 exec, 1")
    a("buffer_store_dword v8, v9, s[64:67], s12 offen sc1")
    a("s_mov_b64 exec, -1")
    a(f"s_cmp_eq_u32 s{S_HP}, 7")
    a("s_cbranch_scc1 F_BEND")
    for ks in order[6:]:
        rdw(ks)
    a(f"v_and_b32 v5, 7, v{V_LANE}")
    a("v_lshlrev_b32 v21, 6, v5")
    a(f"s_lshl_b32 s14, s{S_PG}, 1")
    a("s_add_u32 s14, s14, s9")
    a(f"s_mul_i32 s8, s14, {32 * 3584}")
    a("s_lshl_b32 s14, s14, 4")
    a("s_lshl_b32 s12, s10, 3")
    a("s_add_u32 s14, s14, s12")
    a("s_lshl_b32 s12, s14, 6")
    a(f"s_add_u32 s12, s12, {OFL_OFF}")
    a("s_lshl_b32 s14, s14, 11")
    srd(a, 52, P_OUT, OUT_BYTES)
    a(f"v_lshrrev_b32 v5, 5, v{V_LANE}")
    a(f"v_mul_u32_u24 v{vO}, {4 * 3584}, v5")
    a(f"v_and_b32 v5, 31, v{V_LANE}")
    a(f"v_lshl_add_u32 v{vO}, v5, 2, v{vO}")
    a(f"s_lshl_b32 s13, s{S_HP}, 8")
    a("s_add_u32 s8, s8, s13")
    a("s_lshl_b32 s13, s10, 7")
    a("s_add_u32 s8, s8, s13")
    a("s_add_u32 s13, s8, 1792")
    a("s_lshl_b32 s8, s3, 12")
    a(f"s_add_u32 s8, s8, {L_PX}")
    a(f"v_add_u32 v{vW}, s8, v{L16}")
    a("s_xor_b32 s8, s3, 2")
    a("s_lshl_b32 s8, s8, 12")
    a(f"s_add_u32 s8, s8, {L_PX}")
    a(f"v_add_u32 v{vR}, s8, v{L16}")
    a("s_lshl_b32 s8, s9, 2")
    a(f"v_add_u32 v22, s8, v{V_CNT}")
    a(f"s_mul_i32 s8, s{S_HP}, 19")
    a(f"v_min_u32 v23, 18, v{V_LANE}")
    a("v_add_u32 v23, s8, v23")
    a("v_min_u32 v23, 127, v23")
    a("v_lshlrev_b32 v23, 7, v23")
    if not WOB:
        wait_cnt(a, C_RED2, 4)
    a("s_waitcnt lgkmcnt(0)")
    poll_flags(a, 21, 64, "s12", sleep=1)
    stamp(a, 9)
    a.vm = 0
    OFR = lambda ks: 24 + 4 * ks
    if ENV('OPF', 0):
        a("buffer_load_dword v6, v23, s[60:63], s14 offen sc1")
    toks = []
    for hl in range(8):
        a(f"buffer_load_dwordx4 {rng(OFR(2 * hl), 4)}, v{L16}, s[60:63], s14 offen offset:{(hl % 2) * 2048} sc1")
        toks.append(a.one(f"buffer_load_dwordx4 {rng(OFR(2 * hl + 1), 4)}, v{L16}, s[60:63], s14 offen offset:{(hl % 2) * 2048 + 1024} sc1"))
        if hl % 2 == 1 and hl < 7:
            a("s_add_u32 s14, s14, 4096")
    acc = lambda q: 216 + 16 * q
    for ks in range(16):
        if ks % 2 == 0:
            a.wait_vm(toks[ks // 2])
        for q in (1, 0):
            d = acc(q)
            c = "0" if ks == 0 else rng(d, 16)
            a(f"{MF32} {rng(d, 16)}, {rng(OFR(ks), 4)}, {rng(WFR(ks, q), 4)}, {c}")
    stamp(a, 10)
    for qd in range(4):
        a(f"ds_write_b128 v{vW}, {rng(acc(1) + 4 * qd, 4)} offset:{qd * 1024}")
    a("s_waitcnt lgkmcnt(0)")
    arrive(a, C_PX0, vbase=22)
    wait_cnt(a, C_PX0, 2, vbase=22, sleep=0)
    a.lg = 0
    toks = []
    for qd in range(4):
        toks.append(a.one(f"ds_read_b128 {rng(24 + 4 * qd, 4)}, v{vR} offset:{qd * 1024}"))
    for qd in range(4):
        a.wait_lg(toks[qd])
        b = acc(0) + 4 * qd
        for r in range(0, 4, 2):
            add2(a, b + r, 24 + 4 * qd + r)
        a(f"buffer_store_dword v{b}, v{vO}, s[52:55], s13 offen{OSC1}")
        a(f"buffer_store_dword v{b + 1}, v{vO}, s[52:55], s13 offen offset:3584{OSC1}")
        a(f"s_add_u32 s13, s13, {2 * 3584}")
        a(f"buffer_store_dword v{b + 2}, v{vO}, s[52:55], s13 offen{OSC1}")
        a(f"buffer_store_dword v{b + 3}, v{vO}, s[52:55], s13 offen offset:3584{OSC1}")
        if qd < 3:
            a(f"s_add_u32 s13, s13, {6 * 3584}")
    stamp(a, 11)
    a.label("F_BEND")
    stamp_flush(a, 0, 12)
    a("s_endpgm")


def fallback(a):
    L16 = V_L16
    MX = 220
    a.label("F_FBQ")
    a("s_cmp_lg_u32 s4, 4")
    a("s_cbranch_scc1 F_RGO")
    a("s_waitcnt vmcnt(0)")
    a("s_mov_b32 s58, 65536")
    for i in range(4):
        a(f"v_mov_b32 v{MX + i}, 0xff800000")
    a("s_mov_b32 s15, 0")
    a.label("F_FBL")
    a(f"buffer_load_dwordx4 {rng(KB(0, 0), 4)}, v{L16}, s[56:59], s15 offen sc1")
    a(f"buffer_load_dwordx4 {rng(KB(0, 1), 4)}, v{L16}, s[56:59], s15 offen offset:1024 sc1")
    a("s_waitcnt vmcnt(0)")
    for i in range(4):
        a(f"{MF32} {rng(S(0), 16)}, {rng(KB(0, 0), 4)}, {rng(QR(i, 0), 4)}, 0")
        a(f"{MF32} {rng(S(0), 16)}, {rng(KB(0, 1), 4)}, {rng(QR(i, 1), 4)}, {rng(S(0), 16)}")
        for r in range(0, 16, 2):
            a(f"v_max3_f32 v{MX + i}, v{MX + i}, v{S(0) + r}, v{S(0) + r + 1}")
    a("s_add_u32 s15, s15, 4096")
    a("s_cmp_lt_u32 s15, 65536")
    a.fence()
    a("s_cbranch_scc1 F_FBL")
    a(f"v_lshlrev_b32 v6, 2, v{V_LANE}")
    for i in range(4):
        a(f"v_mov_b32 v5, v{MX + i}")
        a(f"v_permlane32_swap_b32 v{MX + i}, v5")
        a(f"v_max_f32 v{MX + i}, v{MX + i}, v5")
        a(f"s_lshl_b32 s8, s{68 + i}, 10")
        a(f"s_add_u32 s8, s8, {L_BRED}")
        a(f"v_add_u32 v{MX + 4 + i}, s8, v6")
        a("s_lshl_b32 s9, s3, 8")
        a(f"v_add_u32 v7, s9, v{MX + 4 + i}")
        a(f"ds_write_b32 v7, v{MX + i}")
    a("s_waitcnt lgkmcnt(0)")
    arrive(a, C_FB)
    wait_cnt(a, C_FB, 4)
    for i in range(4):
        for w in range(4):
            a(f"ds_read_b32 v{S(0) + 4 * i + w}, v{MX + 4 + i} offset:{256 * w}")
    a("s_waitcnt lgkmcnt(0)")
    arrive(a, C_FB)
    for i in range(4):
        b = S(0) + 4 * i
        a(f"v_max3_f32 v5, v{b}, v{b + 1}, v{b + 2}")
        a(f"v_max_f32 v5, v5, v{b + 3}")
        a("v_sub_f32 v5, 0, v5")
        a("v_cvt_pk_bf16_f32 v6, v5, v5")
        a("v_and_b32 v7, 0xffff0000, v6")
        a("v_sub_f32 v5, v5, v7")
        a("v_cvt_pk_bf16_f32 v8, v5, v5")
        a("v_and_b32 v7, 0xffff0000, v8")
        a("v_sub_f32 v5, v5, v7")
        a("v_cvt_pk_bf16_f32 v9, v5, 0")
        a("v_and_b32 v6, 0xffff, v6")
        a("v_or_b32 v6, v6, v7")
        a(f"v_cndmask_b32 v{QR(i, 1) + 2}, v{QR(i, 1) + 2}, v6, s[74:75]")
        a(f"v_cndmask_b32 v{QR(i, 1) + 3}, v{QR(i, 1) + 3}, v9, s[74:75]")
    for r in range(64):
        a(f"v_mov_b32 v{O(0) + r}, 0")
    for r in range(4):
        a(f"v_mov_b32 v{VB(3, 1) + r}, 0")
        a(f"v_mov_b32 v{P + 4 + r}, 0")
    wait_cnt(a, C_FB, 8)
    a("s_mov_b32 s4, 8")
    kv_first(a)
    a.fence()
    a("s_branch F_RESTART")


_thr = [THR]


def add2(a, x, y):
    a(f"v_add_f32 v{x}, v{x}, v{y}")
    a(f"v_add_f32 v{x + 1}, v{x + 1}, v{y + 1}")


def thr(a):
    if _thr[0]:
        a(f"s_waitcnt vmcnt({_thr[0]})")


def pr(r):
    return f"v[{r}:{r + 1}]"


def pcmad(a, d, m, x, b, t):
    a(f"v_pk_fma_f32 {pr(t)}, {pr(m)}, {pr(x)}, {pr(b)} op_sel:[1,1,0] op_sel_hi:[1,0,1] neg_lo:[1,0,0]")
    a(f"v_pk_fma_f32 {pr(d)}, {pr(m)}, {pr(x)}, {pr(t)} op_sel_hi:[0,1,1]")


def a_main(a):
    a.label("F_AM")
    a.vm = a.lg = 0
    a("s_setprio 0")
    a(f"s_cmp_eq_u32 s{S_HP}, 7")
    a("s_cbranch_scc1 F_A7")
    a_setup(a)
    wait_cnt(a, C_NONCE, 0, st=S_NONCE, nz=True, sleep=2)
    a("s_setprio 2")
    stamp(a, 5)
    if PFW1 == 0:
        prefetch_xa(a, 68, 126)
        prefetch_w(a, P_BRE, 68, 127)
    if PFW1 < 2:
        prefetch_w(a, P_BIM, 68, 126)
    if ENV("NOA", 0):
        wait_cnt(a, C_WO, 4)
        srd(a, 52, P_WO, W_BYTES)
        a(f"s_mul_i32 s10, s{S_WA}, 14336")
        a(f"s_add_u32 s10, s10, {L_WO}")
        for i in range(15):
            a(f"s_add_u32 m0, s10, {1024 * i}")
            a(f"s_mov_b32 s12, {8 * 896 * i}")
            thr(a)
            a(f"buffer_load_dwordx4 v{vWo}, s[52:55], s12 offen lds")
        a("s_waitcnt vmcnt(0)")
        arrive(a, C_WO)
        stamp_flush(a, 0, 12)
        a("s_endpgm")
    a1(a)
    a3(a)
    stamp_flush(a, 0, 12)
    a("s_endpgm")
    a.label("F_A7")
    wait_cnt(a, C_NONCE, 0, st=S_NONCE, nz=True, sleep=2)
    a("s_setprio 2")
    if PFW1 == 0:
        prefetch_xa(a, 68, 126)
        prefetch_w(a, P_BRE, 68, 127)
    if PFW1 < 2:
        prefetch_w(a, P_BIM, 68, 126)
    wait_cnt(a, C_WO, 4, sleep=4)
    for p in (P_CRE, P_CIM, P_WO):
        prefetch_w(a, p, 68, 126)
        a("s_waitcnt vmcnt(0)")
    arrive(a, C_WO)
    stamp_flush(a, 0, 12)
    a("s_endpgm")


def a_setup(a):
    a(f"s_lshl_b32 s8, s{S_HP}, 6")
    a(f"s_lshl_b32 s9, s{S_WA}, 4")
    a("s_add_u32 s9, s8, s9")
    a(f"v_add_u32 v13, s9, v{V_N}")
    LD, LR, LI, A2, TH, T0, T1 = 100, 101, 102, 103, 104, 6, 7
    a(f"v_lshlrev_b32 v{V_P16}, 4, v13")
    a(f"s_and_b32 s14, s{S_WA}, 1")
    a(f"s_lshr_b32 s15, s{S_WA}, 1")
    xb_dma_voffset(a, vBd, "s9")
    xb_dma_voffset(a, vCd, "s8")
    a(f"v_and_b32 v7, 32, v{V_LANE}")
    a(f"v_bfe_u32 v6, v{V_LANE}, 3, 2")
    a(f"s_lshl_b32 s12, s{S_PG}, 6")
    a(f"s_lshl_b32 s9, s{S_WA}, 3")
    a("s_add_u32 s9, s12, s9")
    a("v_add3_u32 v7, v7, v6, s9")
    blk_dma_voffset(a, vXd, 7, rows2=4)
    a(f"v_and_b32 v5, 31, v{V_LANE}")
    a("v_bfe_u32 v6, v5, 1, 3")
    a(f"v_lshrrev_b32 v7, 5, v{V_LANE}")
    a("v_xor_b32 v6, v6, v7")
    a("v_lshlrev_b32 v6, 4, v6")
    a("v_lshl_add_u32 v5, v5, 7, v6")
    a(f"v_add_u32 v{vXr}, {L_XB}, v5")
    for sg in range(1, 4):
        a(f"v_xor_b32 v{vXr + sg}, {32 * sg}, v{vXr}")
    a(f"s_lshl_b32 s11, s{S_WA}, 12")
    a(f"s_lshl_b32 s10, s{S_WA}, 11")
    a(f"s_add_u32 s10, s10, {L_XB}")
    a(f"v_lshrrev_b32 v5, 3, v{V_LANE}")
    a(f"s_mul_i32 s9, s{S_WA}, 112")
    a("v_add_u32 v5, s9, v5")
    a("v_mul_u32_u24 v5, 896, v5")
    a(f"v_and_b32 v7, 1, v{V_G}")
    a("v_lshlrev_b32 v7, 2, v7")
    a(f"v_and_b32 v6, 7, v{V_LANE}")
    a("v_xor_b32 v7, v7, v6")
    a("v_lshl_add_u32 v5, v7, 4, v5")
    a(f"s_lshl_b32 s9, s{S_HP}, 7")
    a(f"v_add_u32 v{vWo}, s9, v5")
    a(f"s_mul_i32 s9, s{S_WA}, 5120")
    a(f"s_add_u32 s9, s9, {L_HS}")
    a(f"v_mul_u32_u24 v5, 144, v{V_N}")
    a(f"v_lshl_add_u32 v5, v{V_G}, 5, v5")
    a(f"v_add_u32 v{vTw}, s9, v5")
    a(f"v_lshrrev_b32 v5, 1, v{V_G}")
    a(f"v_lshrrev_b32 v6, 2, v{V_N}")
    a("v_lshl_add_u32 v5, v5, 3, v6")
    a("v_mul_u32_u24 v5, 144, v5")
    a(f"v_and_b32 v6, 1, v{V_N}")
    a("v_lshl_add_u32 v5, v6, 6, v5")
    a(f"v_and_b32 v6, 1, v{V_G}")
    a("v_lshl_add_u32 v5, v6, 4, v5")
    a(f"v_bfe_u32 v6, v{V_N}, 1, 1")
    a("v_lshl_add_u32 v5, v6, 3, v5")
    a(f"v_add_u32 v{vTr}, s9, v5")
    a(f"v_min_u32 v5, 13, v{V_LANE}")
    a(f"v_lshlrev_b32 v{vF3}, 6, v5")
    a("s_lshl_b32 s9, s15, 10")
    a(f"v_add_u32 v{vH0}, s9, v{V_L16}")
    a(f"v_xor_b32 v{vH1}, 1024, v{vH0}")
    a(f"v_and_b32 v5, 32, v{V_LANE}")
    a("s_lshl_b32 s9, s15, 4")
    a("s_add_u32 s9, s12, s9")
    a("v_add_u32 v5, s9, v5")
    a(f"v_and_b32 v6, 31, v{V_LANE}")
    a("s_lshl_b32 s9, s14, 5")
    a("s_add_u32 s9, s8, s9")
    a("v_add_u32 v6, s9, v6")
    a(f"v_mul_u32_u24 v{vO3}, 3584, v5")
    a(f"v_lshl_add_u32 v{vO3}, v6, 2, v{vO3}")
    a(f"s_add_u32 s9, s{S_HP}, 7")
    a(f"s_sub_u32 s9, s9, s{S_ROT}")
    a("s_sub_u32 s13, s9, 7")
    a("s_cselect_b32 s9, s9, s13")
    a("s_lshl_b32 s9, s9, 13")
    a("s_lshl_b32 s13, s15, 12")
    a("s_add_u32 s9, s9, s13")
    a(f"s_add_u32 s9, s9, {L_XB}")
    a(f"v_bfe_u32 v5, v{V_LANE}, 3, 2")
    a("s_lshl_b32 s13, s14, 2")
    a("v_or_b32 v5, s13, v5")
    a(f"v_lshrrev_b32 v6, 5, v{V_LANE}")
    a("v_lshlrev_b32 v7, 1, v6")
    a("v_xor_b32 v5, v5, v7")
    a("v_lshlrev_b32 v5, 4, v5")
    a("v_lshl_add_u32 v5, v6, 9, v5")
    a(f"v_and_b32 v6, 7, v{V_LANE}")
    a("v_lshl_add_u32 v5, v6, 1, v5")
    a(f"v_add_u32 v{vX3}, s9, v5")
    a(f"v_add_u32 v5, 1, v{V_G}")
    a(f"v_mul_u32_u24 v5, {8 * 7168}, v5")
    a(f"v_sub_u32 v5, v{V_P16}, v5")
    a(f"s_mul_i32 s9, s{S_PG}, 7168")
    a(f"v_add_u32 v{vEA}, s9, v5")
    for i in range(1, 8):
        a(f"v_add_u32 v{vEA + i}, 7168, v{vEA + i - 1}")
    for i in range(8):
        a(f"v_cmp_le_i32 s[{EMASK[i]}:{EMASK[i] + 1}], 0, v{vEA + i}")
    a(f"v_lshlrev_b32 v{vD3}, 16, v{vD3}")
    lam_base(a, LD, LR, LI, A2, TH, T0)
    lam_pow(a, A2, TH, 1, M1, M1 + 1, T0)
    lam_pow(a, A2, TH, 16, M16, M16 + 1, T0)
    lam_pow(a, A2, TH, 64, M64, M64 + 1, T0)
    a(f"v_lshlrev_b32 v{T1}, 9, v{V_G}")
    a(f"v_cvt_f32_u32 v{T1}, v{T1}")
    lam_pow(a, A2, TH, f"v{T1}", MQ, MQ + 1, T0)
    a(f"v_add_f32 v{T0}, -1.0, v{M1}")
    a(f"v_mul_f32 v{T1}, v{LR}, v{LR}")
    a(f"v_fma_f32 v{T1}, v{LI}, v{LI}, v{T1}")
    a(f"v_rcp_f32 v{T1}, v{T1}")
    a(f"v_mul_f32 v{K1}, v{T0}, v{LR}")
    a(f"v_fma_f32 v{K1}, -v{M1 + 1}, v{LI}, v{K1}")
    a(f"v_mul_f32 v{K1 + 1}, v{T0}, v{LI}")
    a(f"v_fma_f32 v{K1 + 1}, v{M1 + 1}, v{LR}, v{K1 + 1}")
    a(f"v_add_f32 v{T1}, v{T1}, v{T1}")
    a(f"v_mul_f32 v{K1}, v{K1}, v{T1}")
    a(f"v_mul_f32 v{K1 + 1}, v{K1 + 1}, v{T1}")
    a(f"v_mov_b32 v{K2}, v{K1 + 1}")
    a(f"v_sub_f32 v{K2 + 1}, 0, v{K1}")
    a(f"s_sub_u32 s9, s11, {L_XB}")
    for sg in range(4):
        a(f"v_add_u32 v{vBr + sg}, s9, v{vXr + sg}")
        a(f"v_add_u32 v{VBRH[sg]}, 0x10000, v{vBr + sg}")
    a("s_lshl_b32 s9, s14, 6")
    a(f"v_xor_b32 v{vCs}, s9, v{vCd}")
    a(f"v_xor_b32 v{vCs + 1}, s9, v{vCd + 1}")
    srd(a, 52, P_AX, X_BYTES)
    srd(a, 56, P_BRE, W_BYTES)
    srd(a, 60, P_BIM, W_BYTES)


CSLOT = [(1, 2), (3, 0), (1, 2), (3, 0)]
XSK = [116, 117, 118, 119, 245, 246, 247, 31]


def a1(a):
    D0, D1 = 40, 56
    FX = lambda b, tau, sg: 72 + 24 * b + 8 * sg + 4 * tau
    FB = lambda b, sg: 72 + 24 * b + 16 + 4 * sg
    tokx, tokb, tokc = {}, {}, {}
    a(f"s_lshl_b32 s12, s{S_ROT}, 7")
    a("s_mov_b32 s13, s12")
    a("s_mul_i32 s74, s14, 28672")
    a("s_sub_u32 s75, 28672, s74")
    a("s_lshl_b32 s9, s14, 9")
    a("s_add_u32 s72, s74, s9")
    a("s_add_u32 s73, s75, s9")

    def px(p_):
        def f(e):
            a(f"s_add_u32 m0, s10, {8192 * p_ + 1024 * e}")
            thr(a)
            tokx[p_] = a.one(f"buffer_load_dwordx4 v{vXd + e}, s[52:55], s12 offen lds")
            if e:
                rot_step(a, 12, 128, 896)
        return [lambda e=e: f(e) for e in range(2)]

    def pb(p_):
        def f(q):
            a(f"s_add_u32 m0, s11, {16384 * UNIT[p_] + 1024 * q}")
            thr(a)
            tokb[p_] = a.one(f"buffer_load_dwordx4 v{vBd + q % 2}, s[{56 + 4 * (q // 2)}:{59 + 4 * (q // 2)}], s13 offen lds")
            if q == 3:
                rot_step(a, 13, 128, 896)
        return [lambda q=q: f(q) for q in range(4)]

    def pc(l, bs=(0, 1)):
        def f(b, q):
            a(f"s_add_u32 m0, s11, {CSLOT[l][b] * 16384 + q * 1024}")
            a(f"s_add_u32 s12, s{(72 if l < 3 else 74) + b}, {128 * l + (q // 2) * 16 * 896}")
            thr(a)
            tokc[l] = a.one(f"buffer_load_dwordx4 v{(vCd if l < 3 else vCs) + q % 2}, s[56:59], s12 offen lds")
        return [lambda b=b, q=q: f(b, q) for b in bs for q in range(4)]

    def run(L):
        for f in L:
            f()

    dma_c = lambda l: run(pc(l))

    def rd_c(l):
        for sg in range(4 if l < 3 else 2):
            for b in range(2):
                a(f"ds_read_b128 {rng(CF(4 * l + sg, b), 4)}, v{vBr + sg} offset:{CSLOT[l][b] * 16384}")

    wait_cnt(a, C_ST2, 4)
    stamp(a, 6)
    _thr[0] = ENV('THR1', 6)
    run(px(0) + pb(0) + px(1) + pb(1))
    if ENV("AHOLD", 0):
        wait_cnt(a, C_WO, 4, sleep=2)
    else:
        wait_cnt(a, C_QF, 4)
    _thr[0] = THR
    pf = lambda p, r: [lambda: prefetch_w(a, p, 68, r)]
    setc = [lambda: (a(f"s_cmp_lt_u32 s{S_WA}, 2"), a(f"s_cselect_b32 s56, s{P_CRE}, s{P_CIM}"),
                     a(f"s_cselect_b32 s57, s{P_CRE + 1}, s{P_CIM + 1}"))]

    def pw(i0, i1):
        def f(i):
            a(f"s_add_u32 m0, s10, {1024 * i}")
            a(f"s_mov_b32 s12, {8 * 896 * i}")
            thr(a)
            a(f"buffer_load_dwordx4 v{vWo}, s[52:55], s12 offen lds")
        return [lambda i=i: f(i) for i in range(i0, i1)]

    if ENV("A1ST", 0):
        stamp(a, 1)
    run(px(2) + pb(2))
    c0, c1, c2, c3 = pc(0), pc(1), pc(2), pc(3)
    PFS = ENV("PFS", 6)
    sched = {0: px(3) + pb(3) + px(4), 1: pb(4) + px(5) + px(6), 2: pb(5), 4: pb(6),
             PFS: pf(P_CRE, 126) + pf(P_CIM, 127) + setc, 10: c0[0:2], 11: c0[2:4], 12: c0[4:6], 13: c0[6:8] + pf(P_WO, 126)}
    if ENV("FINE", 1):
        LA = ENV("LA", 3)
        assert LA in (3, 4)
        for p_ in range(3, LA):
            run(px(p_) + pb(p_))
        bgq = []
        for p_ in range(LA, 7):
            bgq.append(px(p_) + pb(p_))
        bgq.append(pf(P_CRE, 126) + pf(P_CIM, 127) + setc)
        while len(bgq) < 5:
            bgq.append([])
        bgq += [c0[0:4], c0[4:8] + pf(P_WO, 126)]

        def rd(s_):
            u = UNIT[s_ // 2]
            for sg in range(2):
                q = 2 * (s_ % 2) + sg
                for tau in range(2):
                    a(f"ds_read_b128 {rng(FX(s_ % 2, tau, sg), 4)}, v{vXr + q} offset:{(s_ // 2) * 8192 + tau * 4096}")
                a(f"ds_read_b128 {rng(FB(s_ % 2, sg), 4)}, v{VBRH[q] if u == 4 else vBr + q} offset:{(u % 4) * 16384}")

        def mm(s_, q):
            for sg in range(2):
                for tau in range(2):
                    d = (D0, D1)[tau]
                    c = "0" if s_ == 0 and sg == 0 else rng(d, 16)
                    a(f"{MF32} {rng(d, 16)}, {rng(FX(s_ % 2, tau, sg), 4)}, {rng(FB(s_ % 2, sg), 4)}, {c}")
                    gap = ENV("AGAP", 0)
                    if q:
                        q.pop(0)()
                        gap -= 4
                    if gap > 0 and not (sg == 1 and tau == 1):
                        a(f"s_nop {gap - 1}")

        a.wait_vm(max(tokx[0], tokb[0]))
        arrive(a, C_XP)
        wait_cnt(a, C_XP, 4)
        rd(0)
        for p_ in range(7):
            q = list(bgq[p_])
            rd(2 * p_ + 1)
            if p_ < 6:
                a.wait_vm(max(tokx[p_ + 1], tokb[p_ + 1]))
                arrive(a, C_XP + p_ + 1)
                a("s_waitcnt lgkmcnt(7)")
            else:
                a("s_waitcnt lgkmcnt(6)")
            mm(2 * p_, q)
            if p_ < 6:
                wait_cnt(a, C_XP + p_ + 1, 4, sleep=0)
                rd(2 * p_ + 2)
            else:
                a("s_waitcnt lgkmcnt(0)")
            mm(2 * p_ + 1, q)
            assert not q
    else:
        STG = ((0, 4, C_XA0), (4, 8, C_XA1), (8, 14, C_XA2))
        for (k0, k1, cnt) in STG:
            a.wait_vm(max(tokx[k1 // 2 - 1], tokb[k1 // 2 - 1]))
            arrive(a, cnt)
            wait_cnt(a, cnt, 4)
            if ENV("A1ST", 0):
                stamp(a, {0: 2, 4: 3, 8: 4}[k0])
            if ENV("LATP", 0) and k0 == 8:
                def probe(slot, ins, wait):
                    a("s_waitcnt vmcnt(0) lgkmcnt(0)")
                    a("s_memtime s[98:99]")
                    a("s_waitcnt lgkmcnt(0)")
                    if ins:
                        a(ins)
                        a(wait)
                    a("s_memtime s[100:101]")
                    a("s_waitcnt lgkmcnt(0)")
                    a(f"s_sub_u32 s{80 + slot}, s100, s98")
                probe(1, f"buffer_load_dwordx4 v[128:131], v{vXd}, s[52:55], 0 offen sc1", "s_waitcnt vmcnt(0)")
                probe(2, f"buffer_load_dwordx4 v[128:131], v{vCd}, s[56:59], 0 offen", "s_waitcnt vmcnt(0)")
                probe(3, f"ds_read_b128 v[128:131], v{vXr}", "s_waitcnt lgkmcnt(0)")
                probe(4, None, None)
            a.lg = 0
            lt = {}

            def rd(s_):
                t = None
                u = UNIT[s_ // 2]
                for sg in range(2):
                    q = 2 * (s_ % 2) + sg
                    for tau in range(2):
                        a(f"ds_read_b128 {rng(FX(s_ % 2, tau, sg), 4)}, v{vXr + q} offset:{(s_ // 2) * 8192 + tau * 4096}")
                    t = a.one(f"ds_read_b128 {rng(FB(s_ % 2, sg), 4)}, v{VBRH[q] if u == 4 else vBr + q} offset:{(u % 4) * 16384}")
                lt[s_] = t
            rd(k0)
            for s_ in range(k0, k1):
                if s_ + 1 < k1:
                    rd(s_ + 1)
                a.wait_lg(lt[s_])
                q = list(sched.get(s_, []))
                for sg in range(2):
                    for tau in range(2):
                        d = (D0, D1)[tau]
                        c = "0" if s_ == 0 and sg == 0 else rng(d, 16)
                        if not ENV("NOMF1", 0):
                            a(f"{MF32} {rng(d, 16)}, {rng(FX(s_ % 2, tau, sg), 4)}, {rng(FB(s_ % 2, sg), 4)}, {c}")
                        if q:
                            q.pop(0)()
                            if len(q) > 3 - (2 * sg + tau):
                                q.pop(0)()
                        elif ASPACE:
                            a(f"s_sleep {ASPACE}")
                        for _ in range(ENV("ANOP", 0)):
                            a("s_nop 7")
                assert not q
    a(f"v_xor_b32 v5, 16, v{vX3}")
    a(f"v_xor_b32 v6, 64, v{vX3}")
    a(f"v_xor_b32 v7, 80, v{vX3}")
    for r in range(16):
        base = (vX3, 5, 6, 7)[2 * ((r // 4) % 2) + (r // 2) % 2]
        a(f"ds_read_u16 v{72 + r}, v{base} offset:{(8 * (r // 4) + r % 4) * 128}")
    srd(a, 52, P_WO, W_BYTES)
    a(f"s_mul_i32 s10, s{S_WA}, 14336")
    a(f"s_add_u32 s10, s10, {L_WO}")
    a("s_waitcnt lgkmcnt(0)")
    arrive(a, C_G1)
    for r in range(8):
        a(f"v_lshl_or_b32 v{XSK[r]}, v{73 + 2 * r}, 16, v{72 + 2 * r}")
    stamp(a, 7)
    BP = lambda r: 72 + 2 * r
    T = 6
    run(c1[0:3])
    for r in range(16):
        a(f"v_permlane16_swap_b32 v{D0 + r}, v{D1 + r}")
    for r in range(16):
        e = r % 2
        if r in (4, 8, 12):
            run(c1[2 + r // 4:3 + r // 4])
        if e == 0:
            a(f"v_pk_mul_f32 {pr(BP(r))}, {pr(K1)}, {pr(D0 + r)} op_sel:[0,0] op_sel_hi:[1,0]")
            a(f"v_pk_fma_f32 {pr(BP(r))}, {pr(K2)}, {pr(D1 + r)}, {pr(BP(r))} op_sel:[0,0,0] op_sel_hi:[1,0,1]")
        else:
            a(f"v_pk_mul_f32 {pr(BP(r))}, {pr(D0 + r - 1)}, {pr(K1)} op_sel:[1,0] op_sel_hi:[1,1]")
            a(f"v_pk_fma_f32 {pr(BP(r))}, {pr(D1 + r - 1)}, {pr(K2)}, {pr(BP(r))} op_sel:[1,0,0] op_sel_hi:[1,1,1]")
        if r >= 2:
            pcmad(a, GS, M1, BP(0) if r == 2 else GS, BP(r - 1), T)
    pcmad(a, GS, M1, GS, BP(15), T)
    a(f"s_lshl_b32 s8, s{S_WA}, 9")
    a(f"s_add_u32 s8, s8, {L_ASCR}")
    a(f"v_lshl_add_u32 v5, v{V_LANE}, 3, s8")
    a(f"ds_write_b64 v5, {pr(GS)}")
    a(f"v_lshl_add_u32 v5, v{V_N}, 3, s8")
    SQ = 104
    for q in range(4):
        a(f"ds_read_b64 {pr(SQ + 2 * q)}, v5 offset:{128 * q}")
    srd(a, 60, P_WS, EG_BYTES, EG_OFF)
    a(f"s_mul_i32 s8, s{S_PG}, 7168")
    a(f"v_mov_b32 v115, s{S_NONCE}")
    a("s_waitcnt lgkmcnt(0)")
    pcmad(a, 112, M16, SQ, SQ + 2, T)
    pcmad(a, 112, M16, 112, SQ + 4, T)
    pcmad(a, 112, M16, 112, SQ + 6, T)
    a("v_mov_b32 v114, v113")
    a(f"v_mov_b32 v113, s{S_NONCE}")
    a("s_mov_b64 exec, 0xffff")
    a(f"buffer_store_dwordx4 v[112:115], v{V_P16}, s[60:63], s8 offen sc1")
    a("s_mov_b64 exec, -1")
    stamp(a, 8)
    run(c1[6:8])
    wait_cnt(a, C_G1, 4)
    wait_cnt(a, C_WO, 4)
    NW1 = ENV("NW1", 8)
    run(pw(0, NW1))
    a.wait_vm(tokc[0])
    rd_c(0)
    if EPD:
        a(f"s_sleep {EPD}")
    EGR = 40
    a(f"s_mov_b32 s79, {SPIN}")
    a.label("F_EP")
    for i in range(8):
        a(f"buffer_load_dwordx4 {rng(EGR + 4 * i, 4)}, v{vEA + i}, s[60:63], 0 offen sc1")
        thr(a)
    a("s_mov_b64 s[8:9], 0")
    a("s_waitcnt vmcnt(0)")
    for i in range(8):
        a(f"v_cmp_ne_u32 s[12:13], s{S_NONCE}, v{EGR + 4 * i + 1}")
        a(f"v_cmp_ne_u32 vcc, s{S_NONCE}, v{EGR + 4 * i + 3}")
        a(f"v_mov_b32 v{EGR + 4 * i + 1}, v{EGR + 4 * i + 2}")
        a("s_or_b64 s[12:13], s[12:13], vcc")
        a(f"s_and_b64 s[12:13], s[12:13], s[{EMASK[i]}:{EMASK[i] + 1}]")
        a("s_or_b64 s[8:9], s[8:9], s[12:13]")
    a("s_cbranch_scc0 F_EOK")
    a("s_sleep 8")
    a("s_sub_u32 s79, s79, 1")
    a("s_cmp_lg_u32 s79, 0")
    a("s_cbranch_scc1 F_EP")
    a.label("F_EOK")
    stamp(a, 9)
    a.vm = 0
    a("s_waitcnt lgkmcnt(0)")
    rd_c(1)
    run(c2[0:4])
    pcmad(a, GS, M64, EGR, EGR + 4, T)
    for i in range(2, 8):
        pcmad(a, GS, M64, GS, EGR + 4 * i, T)
    a(f"v_pk_mul_f32 {pr(T)}, {pr(MQ)}, {pr(GS)} op_sel:[1,1] op_sel_hi:[1,0] neg_lo:[1,0]")
    a(f"v_pk_fma_f32 {pr(GS)}, {pr(MQ)}, {pr(GS)}, {pr(T)} op_sel_hi:[0,1,1]")
    for sw in ("v_permlane16_swap_b32", "v_permlane32_swap_b32"):
        a(f"v_mov_b32 v{T}, v{GS}")
        a(f"v_mov_b32 v{T + 1}, v{GS + 1}")
        a(f"{sw} v{GS}, v{T}")
        a(f"{sw} v{GS + 1}, v{T + 1}")
        a(f"v_pk_add_f32 {pr(GS)}, {pr(GS)}, {pr(T)}")
    for q in range(3):
        a(f"s_lshl_b64 exec, -1, {16 * (q + 1)}")
        pcmad(a, GS, M16, GS, SQ + 2 * q, T)
    a("s_mov_b64 exec, -1")
    PKR, PKI = 40, 48
    for r in range(16):
        if r % 4 == 0:
            run(c2[4 + r // 4:5 + r // 4])
        pcmad(a, BP(r), M1, GS if r == 0 else BP(r - 1), BP(r), T)
        if r % 2 == 0 and r > 0:
            a(f"v_cvt_pk_bf16_f32 v{PKR + r // 2 - 1}, v{BP(r - 2)}, v{BP(r - 1)}")
            a(f"v_cvt_pk_bf16_f32 v{PKI + r // 2 - 1}, v{BP(r - 2) + 1}, v{BP(r - 1) + 1}")
    a(f"v_cvt_pk_bf16_f32 v{PKR + 7}, v{BP(14)}, v{BP(15)}")
    a(f"v_cvt_pk_bf16_f32 v{PKI + 7}, v{BP(14) + 1}, v{BP(15) + 1}")
    a(f"ds_write_b128 v{vTw}, {rng(PKR, 4)}")
    a(f"ds_write_b128 v{vTw}, {rng(PKR + 4, 4)} offset:16")
    a(f"ds_write_b128 v{vTw}, {rng(PKI, 4)} offset:2304")
    a(f"ds_write_b128 v{vTw}, {rng(PKI + 4, 4)} offset:2320")
    HO = 56
    for part in range(2):
        for tau in range(2):
            for u in range(2):
                r = HO + 8 * part + 4 * tau + 2 * u
                a(f"ds_read_b64_tr_b16 v[{r}:{r + 1}], v{vTr} offset:{part * 2304 + u * 576 + tau * 32}")
    srd(a, 60, P_WS, HF_BYTES, HF_OFF)
    a(f"s_lshl_b32 s8, s{S_HP}, 2")
    a(f"s_add_u32 s8, s8, s{S_WA}")
    a(f"s_mul_i32 s9, s{S_PG}, 56")
    a("s_add_u32 s9, s9, s8")
    a("s_lshl_b32 s9, s9, 11")
    a(f"s_add_u32 s12, s9, {28 * 2048}")
    a(f"s_mul_i32 s13, s{S_PG}, 28")
    a("s_add_u32 s13, s13, s8")
    a("s_lshl_b32 s13, s13, 6")
    a(f"s_add_u32 s13, s13, {HFL_OFF}")
    a("v_mov_b32 v6, 0")
    a("s_waitcnt lgkmcnt(0)")
    for part in range(2):
        for tau in range(2):
            a(f"buffer_store_dwordx4 {rng(HO + 8 * part + 4 * tau, 4)}, v{V_L16}, s[60:63], {'s12' if part else 's9'} offen offset:{1024 * tau} sc1")
    a("s_waitcnt vmcnt(0)")
    a("s_mov_b64 exec, 1")
    a("buffer_store_dword v115, v6, s[64:67], s13 offen sc1")
    a("s_mov_b64 exec, -1")
    stamp(a, 10)
    rd_c(2)
    run(c3)
    run(pw(NW1, 15))
    a.wait_vm(tokc[3])
    rd_c(3)
    a("s_waitcnt lgkmcnt(0)")
    arrive(a, C_ARED)


def a3(a):
    acc = lambda ta, b: 40 + 32 * ta + 16 * b
    a("s_mul_i32 s8, s14, 14")
    a(f"s_mul_i32 s13, s{S_PG}, 28")
    a("s_add_u32 s13, s13, s8")
    a("s_lshl_b32 s13, s13, 6")
    a(f"s_add_u32 s13, s13, {HFL_OFF}")
    a(f"s_lshl_b32 s12, s{S_PG}, 1")
    a("s_add_u32 s12, s12, s15")
    a("s_mul_i32 s12, s12, 28")
    a("s_add_u32 s72, s12, s8")
    a("s_lshl_b32 s72, s72, 11")
    a(f"s_lshl_b32 s73, s{S_HP}, 5")
    a(f"v_and_b32 v6, 31, v{V_LANE}")
    a("v_add_lshl_u32 v6, v6, s73, 7")
    a("s_lshl_b32 s9, s14, 1")
    a("s_add_u32 s9, s9, s12")
    a("s_add_u32 s9, s9, 12")
    a("s_lshl_b32 s9, s9, 11")
    a("s_lshl_b32 s8, s14, 4")
    a("s_add_u32 s12, s12, s8")
    a("s_lshl_b32 s12, s12, 11")
    srd(a, 56, P_OUT, OUT_BYTES)
    F = acc(0, 0)
    for r in range(16):
        x = XSK[r // 2]
        a(f"v_and_b32 v{F + r}, 0xffff0000, v{x}" if r % 2 else f"v_lshlrev_b32 v{F + r}, 16, v{x}")
    for r in range(0, 16, 2):
        a(f"v_pk_mul_f32 {pr(F + r)}, {pr(vD3 - 1)}, {pr(F + r)} op_sel:[1,0] op_sel_hi:[1,1]")
    a("s_waitcnt vmcnt(0)")
    arrive(a, C_WO)
    poll_flags(a, vF3, 64, "s13", sleep=4)
    stamp(a, 11)
    a.vm = 0
    if ENV('HPF', 0):
        a("buffer_load_dword v126, v6, s[60:63], s72 offen sc1")
    pool = [16, 24, 32, 104, 112, 240, 248]
    hreg, tok = {}, {}
    _thr[0] = ENV("THRH", THR)

    def step_off(kk):
        if kk == 11:
            a("s_mov_b32 s12, s9")
        elif kk % 2 == 1:
            a("s_add_u32 s12, s12, 4096")

    if not ENV("HSTAGE", 1):
        nxt = [0]

        def ldh():
            kk = nxt[0]
            r = hreg[kk] = pool.pop(0)
            off = (kk % 2) * 2048
            a(f"buffer_load_dwordx4 {rng(r, 4)}, v{vH0}, s[60:63], s12 offen offset:{off} sc1")
            tok[kk] = a.one(f"buffer_load_dwordx4 {rng(r + 4, 4)}, v{vH1}, s[60:63], s12 offen offset:{off} sc1")
            step_off(kk)
            nxt[0] += 1

        HD = ENV("HD", 3)
        for _ in range(HD):
            ldh()
        a(f"s_mul_i32 s10, s{S_WA}, 12288")
        a(f"s_add_u32 s10, s10, {L_ARED}")
        a(f"v_add_u32 v13, s10, v{V_L16}")
        a(f"s_setprio {ENV('A3PRIO', 2)}")
        for kk in range(14):
            a.wait_vm(tok[kk])
            if nxt[0] < 14:
                ldh()
            for ta in range(2):
                for b in range(2):
                    d = acc(ta, b)
                    c = "0" if kk == 0 and d != F else rng(d, 16)
                    a(f"{MF32} {rng(d, 16)}, {rng(hreg[kk] + 4 * ta, 4)}, {rng(CF(kk, b), 4)}, {c}")
            pool.append(hreg[kk])
        a("s_setprio 2")
        wait_cnt(a, C_ARED, 4)
        last = 8
    else:
        last = 12
        for kk in range(7):
            r = hreg[kk] = pool[kk]
            off = (kk % 2) * 2048
            a(f"buffer_load_dwordx4 {rng(r, 4)}, v{vH0}, s[60:63], s12 offen offset:{off} sc1")
            tok[kk] = a.one(f"buffer_load_dwordx4 {rng(r + 4, 4)}, v{vH1}, s[60:63], s12 offen offset:{off} sc1")
            step_off(kk)
            thr(a)
        a(f"s_mul_i32 s10, s{S_WA}, 12288")
        a(f"s_add_u32 s10, s10, {L_ARED}")
        a(f"v_add_u32 v13, s10, v{V_L16}")
        wait_cnt(a, C_ARED, 4)
        for kk in range(7, 13):
            off = (kk % 2) * 2048
            a(f"s_add_u32 m0, s10, {(kk - 7) * 2048 - off + 4096}")
            a("s_sub_u32 m0, m0, 4096")
            a(f"buffer_load_dwordx4 v{vH0}, s[60:63], s12 offen offset:{off} sc1 lds")
            a("s_add_u32 m0, m0, 1024")
            thr(a)
            tok[kk] = a.one(f"buffer_load_dwordx4 v{vH1}, s[60:63], s12 offen offset:{off} sc1 lds")
            step_off(kk)
        a(f"s_setprio {ENV('A3PRIO', 0)}")
        if ENV("A3ST", 0):
            stamp(a, 1)
        if ENV("A3GATE", 0):
            wait_cnt(a, C_RED, 1, sleep=4)
        a.lg = 0
        lt = {}
        for kk in range(14):
            if kk < 7 or kk == 13:
                a.wait_vm(tok[kk])
            else:
                a.wait_lg(lt[kk])
            for ta in range(2):
                for b in range(2):
                    d = acc(ta, b)
                    c = "0" if kk == 0 and d != F else rng(d, 16)
                    if not ENV("NOMF3", 0):
                        a(f"{MF32} {rng(d, 16)}, {rng(hreg[kk] + 4 * ta, 4)}, {rng(CF(kk, b), 4)}, {c}")
            if kk == 0:
                r = hreg[13] = hreg[0]
                a(f"buffer_load_dwordx4 {rng(r, 4)}, v{vH0}, s[60:63], s12 offen offset:2048 sc1")
                tok[13] = a.one(f"buffer_load_dwordx4 {rng(r + 4, 4)}, v{vH1}, s[60:63], s12 offen offset:2048 sc1")
            elif kk <= 6:
                n = kk + 6
                r = hreg[n] = hreg[kk]
                if kk == 1:
                    a.wait_vm(tok[12])
                    if ENV("A3ST", 0):
                        stamp(a, 2)
                a(f"ds_read_b128 {rng(r, 4)}, v13 offset:{(n - 7) * 2048}")
                lt[n] = a.one(f"ds_read_b128 {rng(r + 4, 4)}, v13 offset:{(n - 7) * 2048 + 1024}")
            if kk == 12:
                arrive(a, C_ARED)
        a("s_setprio 2")
        if ENV("A3ST", 0):
            stamp(a, 3)
        wait_cnt(a, C_ARED, 8)
        if ENV("A3ST", 0):
            stamp(a, 4)
    for j in range(1, 4):
        a(f"s_xor_b32 s8, s{S_WA}, {j}")
        a("s_mul_i32 s8, s8, 12288")
        a(f"s_add_u32 s8, s8, {L_ARED}")
        a(f"v_add_u32 v5, s8, v{V_L16}")
        for qd in range(4):
            a(f"ds_write_b128 v5, {rng(acc(j // 2, j % 2) + 4 * qd, 4)} offset:{(j - 1) * 4096 + qd * 1024}")
    a("s_waitcnt lgkmcnt(0)")
    arrive(a, C_ARED)
    wait_cnt(a, C_ARED, last)
    if ENV("A3ST", 0):
        stamp(a, 5)
    a.lg = 0
    toks = {}
    for qd in range(4):
        for j in range(1, 4):
            toks[qd, j] = a.one(f"ds_read_b128 {rng(acc(j // 2, j % 2) + 4 * qd, 4)}, v13 offset:{(j - 1) * 4096 + qd * 1024}")
    a("s_mov_b32 s8, 0")
    for qd in range(4):
        a.wait_lg(toks[qd, 3])
        for j in range(1, 4):
            for r in range(0, 4, 2):
                x, y = F + 4 * qd + r, acc(j // 2, j % 2) + 4 * qd + r
                add2(a, x, y)
        for r in range(4):
            a(f"buffer_store_dword v{F + 4 * qd + r}, v{vO3}, s[56:59], s8 offen offset:{3584 * (r % 2)}{OSC1}")
            if r % 2 == 1:
                a("s_add_u32 s8, s8, 7168")
    stamp(a, 13)


if __name__ == "__main__":
    import sys
    NAME = "concat_heads__ssm_conv_s5__grouped_kv_mqa__prompt"
    ref = open(f"cdna_kernels/{NAME}.s.ref").read().split("\n")
    head = [l for l in ref if l.startswith(";") and "@launch" not in l and "Override" not in l and "grid=ceil" not in l]
    a = Asm()
    a.raw("\n".join(head))
    KN = NAME + "_kernel" if ENV("SINGLE", 0) else "f_kernel"
    a.raw(f"; @launch {'' if ENV('SINGLE', 0) else 'kernel=f_kernel '}grid=(256,1,1) block=(512,1,1) lds={F_LDS}")
    a.raw('.amdgcn_target "amdgcn-amd-amdhsa--gfx950"\n.text')
    gen_g(a, KN)
    a.raw(".p2align 8\n.fill 4096, 4, 0xbf800000")
    a.raw('.section .rodata,"a"')
    a.raw(kernel_desc(KN, 256))
    out = sys.argv[1] if len(sys.argv) > 1 else f"cdna_kernels/{NAME}.s"
    open(out, "w").write(a.text())
    print("wrote", out, "nops", a.nops)
```

```python
import sys
from gen_common import *
src, outp = sys.argv[1], sys.argv[2]
s = open(src).read()
code = f"""
.globl d_kernel
.p2align 8
.type d_kernel,@function
d_kernel:
    s_cmp_ge_u32 s2, 1
    s_cbranch_scc1 D_END
    s_load_dwordx2 s[4:5], s[0:1], 128
    s_waitcnt lgkmcnt(0)
    s_add_u32 s8, s4, {TS_OFF}
    s_addc_u32 s9, s5, 0
    s_mov_b32 s10, 0x100000
    s_mov_b32 s11, 0x00020000
    v_lshlrev_b32 v4, 9, v0
    v_and_b32 v7, 7, v0
    v_lshlrev_b32 v7, 9, v7
    buffer_load_dword v5, v4, s[8:11], 0 offen offset:56
    buffer_load_dword v6, v7, s[8:11], 0 offen offset:56
    s_memrealtime s[12:13]
    s_waitcnt vmcnt(0) lgkmcnt(0)
    v_and_b32 v5, 15, v5
    v_and_b32 v6, 15, v6
    v_cmp_ne_u32 vcc, v5, v6
    s_nop 4
    s_cbranch_vccz D_END
D_L:
    s_memrealtime s[16:17]
    s_waitcnt lgkmcnt(0)
    s_sub_u32 s18, s16, s12
    s_cmp_lt_u32 s18, 5000
    s_cbranch_scc1 D_L
D_END:
    s_endpgm
"""
s = s.replace('.amdgcn_target', "; @launch kernel=d_kernel grid=(1,1,1) block=(64,1,1) lds=64\n.amdgcn_target", 1)
s = s.replace('.section .rodata,"a"', code + '.section .rodata,"a"', 1)
s += kernel_desc("d_kernel", 16)
open(outp, "w").write(s)
```

```python
from gen_common import *

MF16 = "v_mfma_f32_16x16x32_bf16"
MF32 = "v_mfma_f32_32x32x16_bf16"
ENV = lambda k, d: int(os.environ.get(k, str(d)))
ASPACE = ENV('ASPACE', 0)
PFW1 = ENV('PFW1', 2)
OSC1 = " sc1" if ENV('OSC1', 1) else ""
POLLD = ENV("POLLD", 0)
EPD = ENV("EPD", 0)
THR = ENV('THR', 6)
BPRI = ENV("BPRI", 1)
WOB = ENV("WOB", 0)
PF7 = ENV("PF7", 0)
PH = ENV("PH", 1)
BLO, BHI, AMEM, ACMP = (0, 2, 1, 3) if PH else (1, 3, 2, 2)

L_WQ = 0
L_WKV = 57344
L_XB = 86016
L_QF = 143360
L_KVP = 151552
L_ASCR = 161536
L_BRED = 0
L_PX = L_BRED
L_ARED = 49152
L_HS = 65536
L_WO = 98304
L_MISC = 163584
F_LDS = 163840
(C_ST0, C_ST1, C_ST2, C_QF, C_RED, C_WO, C_RED2, C_NONCE, C_BAD, C_PX0, C_PX1, C_KVL, C_KVP,
 C_XA0, C_XA1, C_XA2, C_G1, C_ARED, C_CDONE, C_FB) = range(20)
C_XP = 24

FLG_OFF = 0x300000
KVF_OFF = 0
OFL_OFF = 0x4000
HFL_OFF = 0x14000
FLG_BYTES = 0x24000
EG_OFF = 0x340000
EG_BYTES = 32 * 448 * 16
HF_OFF = H_OFF
HF_BYTES = 32 * 2 * 28 * 2048
SPIN = 1 << 18

S_WA, S_PG, S_HP, S_ROT, S_NONCE = 5, 50, 51, 76, 77
V_PF, V_LANE, V_N, V_G, V_L16, V_CNT, V_ONE = 0, 1, 2, 3, 4, 14, 15
SB1, SB2 = ENV('SB1', 4), ENV('SB2', 8)
STAGES = [(0, SB1, C_ST0), (SB1, SB2, C_ST1), (SB2, 14, C_ST2)]


M1, M16, M64, MQ, K1, K2, GS = 16, 18, 20, 22, 24, 26, 28
V_P16 = 30
vXd, vBd, vXr, vBr, vCs = 32, 34, 36, 8, 12
VBRH = [31, 245, 246, 247]
vCd, vWo, vTw, vTr, vEA = 240, 242, 243, 244, 248
vH0, vH1, vO3, vX3, vF3, vD3 = 120, 121, 122, 123, 124, 125
EMASK = [18, 20, 30, 34, 36, 38, 40, 46]
CF = lambda kk, b: 128 + 8 * kk + 4 * b
UNIT = [4, 0, 1, 2, 3, 4, 0]


def rng(r, n):
    return f"v[{r}:{r + n - 1}]"


_uid = [0]


def uid(p):
    _uid[0] += 1
    return f"{p}_{_uid[0]}"


def arrive(a, c, vbase=V_CNT):
    a("s_mov_b64 exec, 1")
    a(f"ds_add_u32 v{vbase}, v{V_ONE} offset:{4 * c}")
    a("s_mov_b64 exec, -1")


def wait_cnt(a, c, target, vt=5, st=78, sleep=1, nz=False, vbase=V_CNT):
    l, d = uid("LW"), uid("LD")
    a(f"s_mov_b32 s79, {SPIN}")
    a.label(l, flush=False)
    a(f"ds_read_b32 v{vt}, v{vbase} offset:{4 * c}")
    a("s_waitcnt lgkmcnt(0)")
    a(f"v_readfirstlane_b32 s{st}, v{vt}")
    a(f"s_cmp_lg_u32 s{st}, 0" if nz else f"s_cmp_ge_u32 s{st}, {target}")
    a(f"s_cbranch_scc1 {d}")
    a(f"s_sleep {sleep}")
    a("s_sub_u32 s79, s79, 1")
    a("s_cmp_lg_u32 s79, 0")
    a(f"s_cbranch_scc1 {l}")
    a.label(d, flush=False)


def poll_flags(a, vaddr, srd_, soff, vt=5, sleep=2):
    l, d = uid("PW"), uid("PD")
    a(f"s_mov_b32 s79, {SPIN}")
    a.label(l, flush=False)
    a(f"buffer_load_dword v{vt}, v{vaddr}, s[{srd_}:{srd_ + 3}], {soff} offen sc1")
    a("s_waitcnt vmcnt(0)")
    a(f"v_cmp_ne_u32 vcc, s{S_NONCE}, v{vt}")
    a(f"s_cbranch_vccz {d}")
    a(f"s_sleep {sleep}")
    a("s_sub_u32 s79, s79, 1")
    a("s_cmp_lg_u32 s79, 0")
    a(f"s_cbranch_scc1 {l}")
    a.label(d, flush=False)


def rot_step(a, sk, step, wrap):
    a(f"s_add_u32 s{sk}, s{sk}, {step}")
    a(f"s_cmp_ge_u32 s{sk}, {wrap}")
    a(f"s_cselect_b32 s{sk}, 0, s{sk}")


def blk_dma_voffset(a, vd, vrow, rows2=8):
    a(f"v_mul_u32_u24 v5, 896, v{vrow}")
    a(f"v_and_b32 v6, 7, v{V_LANE}")
    a(f"v_xor_b32 v6, v6, v{V_G}")
    a(f"v_lshl_add_u32 v{vd}, v6, 4, v5")
    a(f"v_xor_b32 v6, 4, v6")
    a(f"v_lshl_add_u32 v5, v6, 4, v5")
    a(f"v_add_u32 v{vd + 1}, {896 * rows2}, v5")


def xb_dma_voffset(a, vd, s_row0):
    a(f"v_lshrrev_b32 v7, 3, v{V_LANE}")
    a(f"v_add_u32 v7, {s_row0}, v7")
    blk_dma_voffset(a, vd, 7)


def xfrag16_base(a, vd, base):
    a(f"v_lshrrev_b32 v5, 1, v{V_N}")
    a(f"v_xor_b32 v5, v5, v{V_G}")
    a("v_lshlrev_b32 v5, 4, v5")
    a(f"v_lshl_add_u32 v5, v{V_N}, 7, v5")
    a(f"v_add_u32 v{vd}, {base}, v5")
    a(f"v_xor_b32 v{vd + 1}, 64, v{vd}")


def prefetch_w(a, ptr, sr, vd):
    srd(a, sr, ptr, W_BYTES)
    a(f"buffer_load_dword v{vd}, v{V_PF}, s[{sr}:{sr + 3}], 0 offen")


def prefetch_xa(a, sr, vd):
    srd(a, sr, P_AX, X_BYTES)
    a(f"s_mul_i32 s8, s{S_PG}, 448")
    a(f"s_mul_i32 s9, s{S_HP}, 56")
    a("s_add_u32 s8, s8, s9")
    a(f"s_mul_i32 s9, s{S_WA}, 14")
    a("s_add_u32 s8, s8, s9")
    a(f"v_min_u32 v5, 13, v{V_LANE}")
    a("v_add_lshl_u32 v5, v5, s8, 7")
    a(f"buffer_load_dword v{vd}, v5, s[{sr}:{sr + 3}], 0 offen")


def gen_g(a, name):
    a.raw(f".globl {name}\n.p2align 8\n.type {name},@function\n{name}:")
    a.hist = []
    a("s_cmp_ge_u32 s2, 256")
    a("s_cbranch_scc1 F_END")
    stamp(a, 0)
    load_args(a)
    a("s_memrealtime s[6:7]")
    a("v_lshrrev_b32 v5, 6, v0")
    a(f"v_and_b32 v{V_LANE}, 63, v0")
    a("v_readfirstlane_b32 s3, v5")
    a(f"v_and_b32 v{V_N}, 15, v0")
    a(f"v_bfe_u32 v{V_G}, v0, 4, 2")
    a(f"v_lshlrev_b32 v{V_L16}, 4, v{V_LANE}")
    a(f"v_mov_b32 v{V_CNT}, {L_MISC}")
    a(f"v_mov_b32 v{V_ONE}, 1")
    a(f"v_lshl_add_u32 v5, v{V_LANE}, 2, v{V_CNT}")
    a("v_mov_b32 v6, 0")
    a("ds_write_b32 v5, v6")
    a("s_and_b32 s4, s2, 7")
    a("s_lshr_b32 s12, s2, 3")
    a("s_getpc_b64 s[10:11]")
    a("s_lshl_b32 s9, s12, 10")
    a("v_and_b32 v5, 7, v0")
    a("v_lshl_add_u32 v5, v5, 7, s9")
    a("s_cmp_lg_u32 s3, 3")
    a("s_cbranch_scc1 F_NPF")
    a("global_load_dword v8, v5, s[10:11]")
    a.label("F_NPF", flush=False)
    a("s_lshr_b32 s8, s12, 3")
    a(f"s_lshl_b32 s{S_PG}, s4, 2")
    a(f"s_add_u32 s{S_PG}, s{S_PG}, s8")
    a(f"s_and_b32 s{S_HP}, s12, 7")
    a(f"s_and_b32 s{S_WA}, s3, 3")
    a("s_lshl_b32 s8, s8, 1")
    a(f"s_add_u32 s8, s8, s{S_HP}")
    a("s_add_u32 s8, s8, s4")
    a("s_mul_i32 s9, s8, 9363")
    a("s_lshr_b32 s9, s9, 16")
    a("s_mul_i32 s9, s9, 7")
    a(f"s_sub_u32 s{S_ROT}, s8, s9")
    a("s_mul_i32 s9, s12, 98")
    a(f"s_mul_i32 s8, s{S_WA}, 25")
    a("s_add_u32 s9, s9, s8")
    a(f"v_add_u32 v5, s9, v{V_LANE}")
    a("v_lshlrev_b32 v5, 7, v5")
    a(f"v_cmp_gt_u32 vcc, 25, v{V_LANE}")
    a("v_mov_b32 v6, 0x7f000000")
    a(f"v_cndmask_b32 v{V_PF}, v6, v5, vcc")
    a("s_cmp_lt_u32 s3, 4")
    a("s_cbranch_scc1 F_B")
    a_front(a)
    a.label("F_B")
    b_front(a)
    attention(a)
    out_proj(a)
    fallback(a)
    a_main(a)
    a.label("F_END")
    a("s_endpgm")


def a_front(a):
    a.vm = a.lg = 0
    a("s_setprio 3")
    vXd, vWd, vT, vXr, vSt = 12, 16, 17, 22, 20
    XF = lambda i: 48 + 4 * i
    WF = lambda i, nt: 64 + 8 * i + 4 * nt
    ACC = 112
    a(f"s_lshr_b32 s14, s{S_HP}, 1")
    a(f"s_lshl_b32 s8, s{S_PG}, 6")
    a("s_lshl_b32 s9, s14, 4")
    a("s_add_u32 s8, s8, s9")
    xb_dma_voffset(a, vXd, "s8")
    a(f"v_lshrrev_b32 v5, 2, v{V_LANE}")
    a("v_mul_u32_u24 v5, 56, v5")
    a(f"v_and_b32 v6, 2, v{V_G}")
    a(f"v_and_b32 v7, 3, v{V_LANE}")
    a("v_xor_b32 v6, v6, v7")
    a(f"v_lshl_add_u32 v{vWd}, v6, 4, v5")
    a(f"s_lshl_b32 s10, s{S_WA}, 12")
    a(f"s_add_u32 s10, s10, {L_WKV}")
    a(f"s_lshl_b32 s11, s{S_WA}, 13")
    a("s_lshl_b32 s9, s14, 11")
    a("s_add_u32 s11, s11, s9")
    a(f"s_add_u32 s11, s11, {L_XB}")
    a(f"s_add_u32 s15, s{S_ROT}, s{S_WA}")
    a(f"s_lshl_b32 s8, s{S_HP}, 6")
    a(f"s_lshl_b32 s9, s{S_WA}, 4")
    a("s_add_u32 s9, s8, s9")
    a(f"v_add_u32 v5, s9, v{V_N}")
    a("v_min_u32 v5, 447, v5")
    a("v_lshlrev_b32 v5, 1, v5")
    a(f"s_and_b32 s9, s{S_WA}, 1")
    a("s_lshl_b32 s9, s9, 5")
    a("s_add_u32 s9, s8, s9")
    a(f"v_and_b32 v6, 31, v{V_LANE}")
    a("v_add_u32 v6, s9, v6")
    a("v_min_u32 v6, 447, v6")
    a("v_lshlrev_b32 v6, 1, v6")
    a("s_waitcnt lgkmcnt(0)")
    stamp(a, 1)
    a(f"global_load_ushort v100, v5, s[{P_LDT}:{P_LDT + 1}]")
    a(f"global_load_ushort v101, v5, s[{P_LRE}:{P_LRE + 1}]")
    a(f"global_load_ushort v102, v5, s[{P_LIM}:{P_LIM + 1}]")
    a(f"global_load_ushort v{vD3}, v6, s[{P_DSK}:{P_DSK + 1}]")
    srd(a, 52, P_BX, X_BYTES)
    a(f"s_bitcmp1_b32 s{S_HP}, 0")
    a(f"s_cselect_b32 s56, s{P_WV}, s{P_WK}")
    a(f"s_cselect_b32 s57, s{P_WV + 1}, s{P_WK + 1}")
    a(f"s_mov_b32 s58, {WKV_BYTES}")
    a("s_mov_b32 s59, 0x00020000")
    toks = {}
    for i in (1, 0):
        if i == 1:
            a(f"s_cmp_eq_u32 s{S_WA}, 3")
            a("s_cbranch_scc1 F_A3S")
        a(f"s_add_u32 s12, s15, {4 * i}")
        a("s_sub_u32 s13, s12, 7")
        a("s_cselect_b32 s12, s12, s13")
        a(f"s_add_u32 m0, s11, {32768 * i}")
        a("s_mul_i32 s13, s12, 3584")
        a("s_lshl_b32 s12, s12, 7")
        a(f"buffer_load_dwordx4 v{vXd}, s[52:55], s12 offen lds")
        a("s_add_u32 m0, m0, 1024")
        a("s_nop 0")
        a(f"buffer_load_dwordx4 v{vXd + 1}, s[52:55], s12 offen lds")
        a(f"s_add_u32 m0, s10, {16384 * i}")
        for q in range(4):
            if q:
                a("s_add_u32 m0, m0, 128")
            toks[i] = a.one(f"buffer_load_dwordx4 v{vWd}, s[56:59], s13 offen offset:{896 * q} lds")
        if i == 1:
            a.label("F_A3S", flush=False)
    a("s_barrier")
    stamp(a, 2)
    a(f"v_lshrrev_b32 v5, 2, v{V_N}")
    a(f"v_lshl_add_u32 v5, v{V_G}, 3, v5")
    a("v_lshlrev_b32 v5, 6, v5")
    a(f"v_and_b32 v6, 1, v{V_G}")
    a("v_lshl_add_u32 v5, v6, 5, v5")
    a(f"v_and_b32 v6, 3, v{V_N}")
    a("v_lshl_add_u32 v5, v6, 3, v5")
    a(f"v_add_u32 v{vT}, s10, v5")
    a(f"v_xor_b32 v{vT + 1}, 32, v{vT}")
    xfrag16_base(a, vXr, "s11")
    for r in range(8):
        a(f"v_mov_b32 v{ACC + r}, 0")
    a(f"s_lshl_b32 s8, s{S_WA}, 11")
    a(f"s_add_u32 s8, s8, {L_KVP}")
    a(f"v_add_u32 v21, s8, v{V_L16}")
    srd(a, 60, P_WS, 0x40000, KV_OFF)
    srd(a, 64, P_WS, FLG_BYTES, FLG_OFF)
    srd(a, 68, P_DBG, 256)
    a(f"s_lshl_b32 s8, s{S_PG}, 1")
    a("s_lshr_b32 s9, s14, 1")
    a("s_add_u32 s8, s8, s9")
    a("s_lshl_b32 s8, s8, 12")
    a("s_and_b32 s9, s14, 1")
    a("v_mov_b32 v30, 0")

    def reads(i):
        t = None
        for e in range(2):
            a(f"ds_read_b128 {rng(XF(2 * i + e), 4)}, v{vXr + e} offset:{32768 * i}")
            for nt in range(2):
                for u in range(2):
                    r = WF(2 * i + e, nt) + 2 * u
                    t = a.one(f"ds_read_b64_tr_b16 v[{r}:{r + 1}], v{vT + nt} offset:{16384 * i + 2048 * e + u * 256}")
        return t

    a(f"s_cmp_eq_u32 s{S_WA}, 3")
    a("s_cbranch_scc1 F_A3R")
    a.wait_vm(toks[1])
    reads(1)
    a.label("F_A3R", flush=False)
    a.wait_vm(toks[0])
    reads(0)
    arrive(a, C_KVL)
    stamp(a, 3)

    def mfmas(is_v):
        lab = uid("F_MS")
        a(f"s_cmp_eq_u32 s{S_WA}, 3")
        a(f"s_cbranch_scc1 {lab}")
        for i in (3, 2, 1, 0):
            if i == 3:
                a("s_waitcnt lgkmcnt(11)")
            if i == 1:
                a.label(lab, flush=False)
                a("s_waitcnt lgkmcnt(0)")
            for nt in range(2):
                d = ACC + 4 * nt
                w, x = rng(WF(i, nt), 4), rng(XF(i), 4)
                a(f"{MF16} {rng(d, 4)}, {x if is_v else w}, {w if is_v else x}, {rng(d, 4)}")

    a(f"s_bitcmp1_b32 s{S_HP}, 0")
    a("s_cbranch_scc1 F_VM")
    mfmas(False)
    a("s_branch F_KVM")
    a.label("F_VM", flush=False)
    mfmas(True)
    a.label("F_KVM")
    a(f"s_cmp_eq_u32 s{S_WA}, 3")
    a("s_cbranch_scc1 F_KVF")
    a(f"ds_write_b128 v21, {rng(ACC, 4)}")
    a(f"ds_write_b128 v21, {rng(ACC + 4, 4)} offset:1024")
    a("s_waitcnt lgkmcnt(0)")
    arrive(a, C_KVP)
    a("s_branch F_AM")
    a.label("F_KVF")
    a("buffer_load_dword v31, v30, s[68:71], 0 offen sc1")
    a(f"v_add_u32 v21, {L_KVP}, v{V_L16}")
    a(f"v_cmp_eq_u32 s[72:73], 3, v{V_G}")
    a(f"v_cmp_le_u32 s[74:75], 12, v{V_N}")
    wait_cnt(a, C_KVP, 3, sleep=0)
    for q in range(6):
        a(f"ds_read_b128 {rng(48 + 4 * q, 4)}, v21 offset:{1024 * q}")
    a(f"s_lshl_b32 s12, s{S_PG}, 3")
    a(f"s_add_u32 s12, s12, s{S_HP}")
    a("s_lshl_b32 s12, s12, 6")
    a(f"s_bitcmp1_b32 s{S_HP}, 0")
    a("s_cbranch_scc1 F_VE")

    def adds():
        a("s_waitcnt lgkmcnt(0)")
        for q in range(3):
            for r in range(0, 8, 2):
                add2(a, ACC + r, 48 + 8 * q + r)

    a("s_lshl_b32 s9, s9, 8")
    a("s_add_u32 s8, s8, s9")
    a(f"v_lshlrev_b32 v{vSt}, 9, v{V_G}")
    a(f"v_lshl_add_u32 v{vSt}, v{V_N}, 4, v{vSt}")
    a(f"s_mov_b32 s14, {f32(CSCALE)}")
    a("v_mov_b32 v6, 0x3f803f80")
    a("v_mov_b32 v7, 0x00003f80")
    adds()
    for r in range(8):
        a(f"v_mul_f32 v{ACC + r}, s14, v{ACC + r}")
    for r in range(4):
        a(f"v_cvt_pk_bf16_f32 v{8 + r}, v{ACC + 2 * r}, v{ACC + 2 * r + 1}")
    a("v_cndmask_b32 v10, v10, v6, s[72:73]")
    a("v_cndmask_b32 v11, v11, v7, s[72:73]")
    a(f"buffer_store_dwordx4 v[8:11], v{vSt}, s[60:63], s8 offen sc1")
    a("s_branch F_KVPUB")
    a.label("F_VE")
    a("s_lshl_b32 s9, s9, 10")
    a("s_add_u32 s8, s8, s9")
    a(f"v_and_b32 v5, 1, v{V_G}")
    a("v_lshlrev_b32 v5, 9, v5")
    a(f"v_lshl_add_u32 v5, v{V_N}, 4, v5")
    a(f"v_lshrrev_b32 v6, 1, v{V_G}")
    a(f"v_lshl_add_u32 v{vSt}, v6, 3, v5")
    a(f"v_cmp_eq_u32 vcc, 12, v{V_N}")
    a("v_mov_b32 v6, 0x3f803f80")
    a("v_cndmask_b32 v6, 0, v6, vcc")
    adds()
    for r in range(4):
        a(f"v_cvt_pk_bf16_f32 v{8 + r}, v{ACC + 2 * r}, v{ACC + 2 * r + 1}")
    a("v_cndmask_b32 v10, v10, v6, s[74:75]")
    a("v_cndmask_b32 v11, v11, v6, s[74:75]")
    a(f"buffer_store_dwordx2 v[8:9], v{vSt}, s[60:63], s8 offen offset:2048 sc1")
    a(f"buffer_store_dwordx2 v[10:11], v{vSt}, s[60:63], s8 offen offset:2304 sc1")
    a.label("F_KVPUB")
    stamp(a, 4)
    a(f"s_mov_b32 s79, {SPIN}")
    a("s_waitcnt vmcnt(0)")
    a.label("F_NP", flush=False)
    a(f"v_readfirstlane_b32 s{S_NONCE}, v31")
    a(f"s_cmp_lg_u32 s{S_NONCE}, 0")
    a("s_cbranch_scc1 F_NOK")
    a("buffer_load_dword v31, v30, s[68:71], 0 offen sc1")
    a("s_waitcnt vmcnt(0)")
    a("s_sub_u32 s79, s79, 1")
    a("s_cmp_lg_u32 s79, 0")
    a("s_cbranch_scc1 F_NP")
    a.label("F_NOK", flush=False)
    a("s_mov_b64 exec, 1")
    a(f"buffer_store_dword v31, v30, s[64:67], s12 offen offset:{KVF_OFF} sc1")
    a(f"ds_write_b32 v{V_CNT}, v31 offset:{4 * C_NONCE}")
    a("s_mov_b64 exec, -1")
    stamp(a, 2)
    a("s_branch F_AM")


QR = lambda i, h: 16 + 8 * i + 4 * h
O = lambda i: 48 + 16 * i
S = lambda b: 112 + 16 * b
P = 144
KB = lambda c, h: 152 + 16 * c + 4 * h
VB = lambda c, h: 152 + 16 * c + 8 + 4 * h


def kv_loads(a):
    L16 = V_L16

    def ldk(c):
        a(f"buffer_load_dwordx4 {rng(KB(c, 0), 4)}, v{L16}, s[56:59], s15 offen sc1")
        return a.one(f"buffer_load_dwordx4 {rng(KB(c, 1), 4)}, v{L16}, s[56:59], s15 offen offset:1024 sc1")

    def ldv(c):
        a(f"buffer_load_dwordx4 {rng(VB(c, 0), 4)}, v{L16}, s[56:59], s15 offen offset:2048 sc1")
        return a.one(f"buffer_load_dwordx4 {rng(VB(c, 1), 4)}, v{L16}, s[56:59], s15 offen offset:3072 sc1")
    return ldk, ldv


def kv_first(a):
    ldk, ldv = kv_loads(a)
    a("s_lshl_b32 s15, s2, 9")
    a("s_and_b32 s15, s15, 0xf000")
    for c in range(4):
        ldk(c)
        if c < 3:
            ldv(c)
            a("s_add_u32 s15, s15, 4096")
            a("s_and_b32 s15, s15, 0xffff")


def b_front(a):
    a.vm = a.lg = 0
    a("s_setprio 2")
    vWd, vXd, vQ, vT, vXr = 12, 28, 13, 16, 18
    a(f"v_lshrrev_b32 v5, 3, v{V_LANE}")
    a("s_lshl_b32 s9, s3, 3")
    a("v_add_u32 v6, s9, v5")
    a("v_mul_u32_u24 v6, 896, v6")
    a(f"v_bfe_u32 v7, v{V_LANE}, 1, 2")
    a("v_bfe_u32 v5, v5, 1, 1")
    a("v_xor_b32 v7, v7, v5")
    a("s_and_b32 s9, s3, 1")
    a("s_lshl_b32 s9, s9, 1")
    a("v_xor_b32 v7, s9, v7")
    a("v_lshrrev_b32 v5, 1, v7")
    a("v_mul_u32_u24 v5, 56, v5")
    a("v_add_u32 v6, v6, v5")
    a("v_and_b32 v5, 1, v7")
    a("v_lshl_add_u32 v6, v5, 5, v6")
    a(f"v_and_b32 v5, 1, v{V_LANE}")
    a("v_lshl_add_u32 v6, v5, 4, v6")
    a(f"s_mul_i32 s9, s{S_HP}, 112")
    a(f"v_add_u32 v{vWd}, s9, v6")
    a(f"s_lshl_b32 s8, s{S_PG}, 6")
    a("s_lshl_b32 s9, s3, 4")
    a("s_add_u32 s8, s8, s9")
    xb_dma_voffset(a, vXd, "s8")
    a("s_waitcnt lgkmcnt(0)")
    stamp(a, 1)
    a("s_or_b32 s8, s2, s3")
    a("s_cmp_lg_u32 s8, 0")
    a("s_cbranch_scc1 F_NN")
    srd(a, 68, P_DBG, 256)
    a("s_or_b32 s8, s6, 1")
    a("v_mov_b32 v5, s8")
    a("v_mov_b32 v6, 0")
    a("buffer_store_dword v5, v6, s[68:71], 0 offen sc1")
    a.label("F_NN")
    srd(a, 52, P_WQ, W_BYTES)
    srd(a, 56, P_BX, X_BYTES)
    a(f"s_lshl_b32 s12, s{S_ROT}, 7")
    a("s_lshl_b32 s10, s3, 10")
    a("s_lshl_b32 s11, s3, 11")
    a("s_barrier")
    if ENV("QPF", 0):
        a(f"buffer_load_dword v9, v{V_PF}, s[52:55], 0 offen")
    if ENV("KVLW", 0):
        wait_cnt(a, C_KVL, 4)
    toks = {}
    BTHR = ENV("BTHR", 0)

    def bthr():
        if BTHR:
            a(f"s_waitcnt vmcnt({BTHR})")

    def dma_pair(p_):
        a(f"s_add_u32 m0, s11, {L_XB + 8192 * p_}")
        a("s_mul_i32 s13, s12, 448")
        a(f"buffer_load_dwordx4 v{vXd}, s[56:59], s12 offen lds")
        a("s_add_u32 m0, m0, 1024")
        a("s_nop 0")
        a(f"buffer_load_dwordx4 v{vXd + 1}, s[56:59], s12 offen lds")
        a(f"s_add_u32 m0, s10, {L_WQ + 8192 * p_}")
        if p_ < 6:
            rot_step(a, 12, 128, 896)
        bthr()
        a(f"buffer_load_dwordx4 v{vWd}, s[52:55], s13 offen lds")
        a("s_add_u32 m0, m0, 4096")
        a(f"s_add_u32 s13, s13, {32 * 896}")
        toks[2 * p_ + 1] = a.one(f"buffer_load_dwordx4 v{vWd}, s[52:55], s13 offen lds")
        bthr()

    NB0 = ENV('NB0', 4)
    for p_ in range(NB0):
        dma_pair(p_)
    stamp(a, 2)
    if PFW1 == 1:
        prefetch_xa(a, 60, 10)
        prefetch_w(a, P_BRE, 60, 11)
    srd(a, 64, P_WS, FLG_BYTES, FLG_OFF)
    a(f"v_cmp_eq_u32 s[72:73], 3, v{V_G}")
    a(f"v_lshrrev_b32 v5, 2, v{V_N}")
    a(f"v_lshl_add_u32 v5, v{V_G}, 3, v5")
    a("v_lshlrev_b32 v5, 7, v5")
    a(f"v_lshrrev_b32 v6, 3, v{V_N}")
    a("v_lshl_add_u32 v5, v6, 5, v5")
    a(f"v_and_b32 v6, 1, v{V_G}")
    a("v_lshl_add_u32 v5, v6, 6, v5")
    a(f"v_and_b32 v6, 3, v{V_N}")
    a("v_lshl_add_u32 v5, v6, 3, v5")
    a("s_and_b32 s9, s3, 1")
    a("s_lshl_b32 s9, s9, 6")
    a(f"v_xor_b32 v{vT}, s9, v5")
    a(f"v_xor_b32 v{vT + 1}, 32, v{vT}")
    a("s_lshr_b32 s8, s3, 1")
    a("s_lshl_b32 s8, s8, 12")
    a(f"s_add_u32 s8, s8, {L_XB}")
    xfrag16_base(a, vXr, "s8")
    a("s_lshl_b32 s8, s3, 11")
    a(f"s_add_u32 s8, s8, {L_QF}")
    a(f"v_lshlrev_b32 v5, 9, v{V_G}")
    a(f"v_lshl_add_u32 v5, v{V_N}, 4, v5")
    a(f"v_add_u32 v{vQ}, s8, v5")
    XF = lambda b, f: 48 + 8 * b + 4 * f
    WF = lambda b, nt: 80 + 8 * b + 4 * nt
    ACC = lambda f, nt: 112 + 8 * f + 4 * nt
    a(f"v_lshlrev_b32 v30, 6, v{V_LANE}")
    a("s_lshl_b32 s8, s3, 12")
    for (k0, k1, cnt) in STAGES:
        a.wait_vm(toks[k1 - 1])
        arrive(a, cnt)
        wait_cnt(a, cnt, 4, sleep=0)
        if k0 == 0:
            stamp(a, 3)
            if ENV('B2POS', 1) < 0:
                for p_ in range(NB0, ENV('NB1', 6)):
                    dma_pair(p_)
        if cnt == C_ST1:
            for p_ in range(max(NB0, ENV('NB1', 6)), 7):
                dma_pair(p_)
        a.lg = 0
        lt = {}

        def rd(s_):
            for f in range(2):
                a(f"ds_read_b128 {rng(XF(s_ % 3, f), 4)}, v{vXr + s_ % 2} offset:{(s_ // 2) * 8192 + f * 2048}")
            t = None
            for nt in range(2):
                for u in range(2):
                    r = WF(s_ % 3, nt) + 2 * u
                    t = a.one(f"ds_read_b64_tr_b16 v[{r}:{r + 1}], v{vT + nt} offset:{s_ * 4096 + u * 512}")
            lt[s_] = t
        rd(k0)
        rd(k0 + 1)
        for s_ in range(k0, k1):
            if s_ + 2 < k1:
                rd(s_ + 2)
            a.wait_lg(lt[s_])
            for f in range(2):
                for nt in range(2):
                    d = ACC(f, nt)
                    c = "0" if s_ == 0 else rng(d, 4)
                    a(f"{MF16} {rng(d, 4)}, {rng(WF(s_ % 3, nt), 4)}, {rng(XF(s_ % 3, f), 4)}, {c}")
            if s_ == ENV("EPOLL", -1):
                a("buffer_load_dword v31, v30, s[64:67], s8 offen sc1")
            if s_ == ENV('B2POS', 1):
                for p_ in range(NB0, ENV('NB1', 6)):
                    dma_pair(p_)
    a("s_lshl_b32 s13, s3, 16")
    a(f"s_add_u32 s56, s{P_WS}, s13")
    a(f"s_addc_u32 s57, s{P_WS + 1}, 0")
    a(f"s_add_u32 s56, s56, {KV_OFF}")
    a("s_addc_u32 s57, s57, 0")
    a("s_mov_b32 s58, 65536")
    a("s_mov_b32 s59, 0x00020000")
    wait_cnt(a, C_NONCE, 0, st=S_NONCE, nz=True)
    if ENV("EPOLL", -1) >= 0:
        a("s_waitcnt vmcnt(0)")
        a(f"v_cmp_ne_u32 vcc, s{S_NONCE}, v31")
        a("s_cbranch_vccz F_KVE")
    a("buffer_load_dword v7, v30, s[64:67], s8 offen sc1")
    a("s_mov_b32 s9, 0")
    if ENV("EPOLL", -1) >= 0:
        a("s_branch F_KVE2")
        a.label("F_KVE", flush=False)
        kv_first(a)
        a("s_mov_b32 s9, 1")
        a.label("F_KVE2", flush=False)
    a("v_mov_b32 v6, v30")
    for f in range(2):
        b = ACC(f, 0)
        pk = 20 + 4 * f
        for r in range(4):
            a(f"v_cvt_pk_bf16_f32 v{pk + r}, v{b + 2 * r}, v{b + 2 * r + 1}")
        a(f"v_cndmask_b32 v{pk + 2}, v{pk + 2}, 0, s[72:73]")
        a(f"v_cndmask_b32 v{pk + 3}, v{pk + 3}, 0, s[72:73]")
        a(f"ds_write_b128 v{vQ}, {rng(pk, 4)} offset:{256 * f}")
    a("s_waitcnt lgkmcnt(0)")
    arrive(a, C_QF)
    stamp(a, 4)


def attention(a):
    L16 = V_L16
    ldk, ldv = kv_loads(a)
    srd(a, 60, P_WS, 0x200000, OF_OFF)
    for r in range(64):
        a(f"v_mov_b32 v{O(0) + r}, 0")
    for r in range(4):
        a(f"v_mov_b32 v{VB(3, 1) + r}, 0")
        a(f"v_mov_b32 v{P + 4 + r}, 0")
    for i in range(4):
        a(f"s_add_u32 s{68 + i}, s3, {i + 1}")
        a(f"s_and_b32 s{68 + i}, s{68 + i}, 3")
    a(f"v_cmp_le_u32 s[74:75], 32, v{V_LANE}")
    if WOB:
        srd(a, 52, P_WO, W_BYTES)
        a(f"v_lshrrev_b32 v5, 3, v{V_LANE}")
        a("s_mul_i32 s14, s3, 112")
        a("v_add_u32 v5, s14, v5")
        a("v_mul_u32_u24 v5, 896, v5")
        a(f"v_and_b32 v8, 1, v{V_G}")
        a("v_lshlrev_b32 v8, 2, v8")
        a(f"v_and_b32 v9, 7, v{V_LANE}")
        a("v_xor_b32 v8, v8, v9")
        a("v_lshl_add_u32 v5, v8, 4, v5")
        a(f"s_lshl_b32 s14, s{S_HP}, 7")
        a("v_add_u32 v216, s14, v5")
    wait_cnt(a, C_QF, 4, sleep=0)
    for i in range(4):
        a(f"s_lshl_b32 s14, s{68 + i}, 11")
        a(f"s_add_u32 s14, s14, {L_QF}")
        a(f"v_add_u32 v13, s14, v{L16}")
        a(f"ds_read_b128 {rng(QR(i, 0), 4)}, v13")
        a(f"ds_read_b128 {rng(QR(i, 1), 4)}, v13 offset:1024")
    a("s_mov_b32 s4, 4")
    a("s_cmp_eq_u32 s9, 1")
    a("s_cbranch_scc1 F_GO")
    a("s_waitcnt vmcnt(0)")
    a(f"v_cmp_ne_u32 vcc, s{S_NONCE}, v7")
    a("s_cbranch_vccz F_KVOK")
    poll_flags(a, 6, 64, "s8", sleep=2)
    a.label("F_KVOK", flush=False)
    kv_first(a)
    a.label("F_GO", flush=False)
    stamp(a, 5)
    a("s_waitcnt lgkmcnt(0)")
    arrive(a, C_WO)
    a.label("F_RESTART", flush=False)
    a.vm = a.lg = 0
    a("s_waitcnt vmcnt(10)")
    a(f"{MF32} {rng(S(0), 16)}, {rng(KB(0, 0), 4)}, {rng(QR(0, 0), 4)}, 0")
    a(f"{MF32} {rng(S(0), 16)}, {rng(KB(0, 1), 4)}, {rng(QR(0, 1), 4)}, {rng(S(0), 16)}")
    a("s_mov_b32 s14, 4")
    if ENV("VMST", 0):
        a("s_mov_b32 s93, 0")
        stamp(a, 2, True)
    a(f"s_setprio {BLO}")
    stamp(a, 6)
    a.fence()
    a.raw(".p2align 6")
    a.label("F_LOOP", flush=False)

    def ex(cur, k0, pk):
        for k in range(k0, k0 + 4):
            a(f"v_exp_f32 v{cur + k}, v{cur + k}")
        a(f"v_cvt_pk_bf16_f32 v{P + pk}, v{cur + k0}, v{cur + k0 + 1}")
        a(f"v_cvt_pk_bf16_f32 v{P + pk + 1}, v{cur + k0 + 2}, v{cur + k0 + 3}")

    def body():
        ld = lambda r, off: f"buffer_load_dwordx4 {rng(r, 4)}, v{L16}, s[56:59], s15 offen offset:{off} sc1"
        for ls in range(16):
            c, i = divmod(ls, 4)
            cur, nxt = S(ls % 2), S((ls + 1) % 2)
            cn, inx = divmod((ls + 1) % 16, 4)
            cp, ip = divmod((ls - 1) % 16, 4)
            X = [None] * 4
            if i == 0:
                X = [f"s_setprio {BHI}", ld(VB(cp, 0), 2048), ld(VB(cp, 1), 3072), f"s_setprio {BLO}"]
            elif i == 1:
                X = ["s_add_u32 s15, s15, 4096", "s_and_b32 s15, s15, 0xffff", None, f"s_setprio {BHI}"]
                if ls == 1:
                    X[2] = "s_cmp_eq_u32 s14, 1"
                    X[3] = "s_cselect_b32 s58, 0, s58"
                if ls == 13:
                    X[2] = f"ds_read_b32 v12, v{V_CNT} offset:{4 * C_WO}"
            elif i == 2:
                X = [ld(KB(c, 0), 0), ld(KB(c, 1), 1024), f"s_setprio {BLO}", "s_waitcnt vmcnt(10)"]
            elif ls == 15:
                X = [None, None, "s_sub_u32 s14, s14, 1", "s_cmp_lg_u32 s14, 0"]
            M = [f"{MF32} {rng(nxt, 16)}, {rng(KB(cn, 0), 4)}, {rng(QR(inx, 0), 4)}, 0",
                 f"{MF32} {rng(nxt, 16)}, {rng(KB(cn, 1), 4)}, {rng(QR(inx, 1), 4)}, {rng(nxt, 16)}",
                 f"{MF32} {rng(O(ip), 16)}, {rng(VB(cp, 1), 4)}, {rng(P + 4, 4)}, {rng(O(ip), 16)}",
                 f"{MF32} {rng(O(i), 16)}, {rng(VB(c, 0), 4)}, {rng(P, 4)}, {rng(O(i), 16)}"]
            for k in range(4):
                a(M[k])
                if X[k] and (BPRI or "setprio" not in X[k]):
                    a(X[k])
                ex(cur, 4 * k, 2 * k)

    n0 = a.nops
    body()
    assert a.nops == n0, "unexpected nops in attention loop"
    save = (list(a.out), list(a.hist), a.vm, a.lg)
    body()
    assert a.nops == n0, "unexpected nops across the attention back edge"
    a.out, a.hist, a.vm, a.lg = save
    a("s_cbranch_scc1 F_LOOP")
    a(f"{MF32} {rng(O(3), 16)}, {rng(VB(3, 1), 4)}, {rng(P + 4, 4)}, {rng(O(3), 16)}")
    a("s_setprio 3")
    if ENV("VMST", 0):
        stamp(a, 3, True)
    stamp(a, 7)
    a("s_waitcnt lgkmcnt(0)")
    a("v_readfirstlane_b32 s78, v12")
    a("s_cmp_ge_u32 s78, 8")
    a("s_cbranch_scc1 F_WOK")
    wait_cnt(a, C_WO, 8)
    a.label("F_WOK", flush=False)
    for i in range(3):
        a(f"s_mul_i32 s14, s{68 + i}, 12288")
        a(f"s_add_u32 s14, s14, {L_BRED}")
        a(f"v_add_u32 v13, s14, v{L16}")
        for qd in range(4):
            a(f"ds_write_b128 v13, {rng(O(i) + 4 * qd, 4)} offset:{i * 4096 + qd * 1024}")
    a("s_mul_i32 s14, s3, 12288")
    a(f"s_add_u32 s14, s14, {L_BRED}")
    a(f"v_add_u32 v13, s14, v{L16}")
    if WOB == 1:
        a("s_mul_i32 s14, s3, 14336")
        a(f"s_add_u32 m0, s14, {L_WO}")
        a("s_mov_b32 s12, 0")
        for i in range(15):
            a(f"buffer_load_dwordx4 v216, s[52:55], s12 offen lds")
            if i < 14:
                a("s_add_u32 m0, m0, 1024")
                a(f"s_add_u32 s12, s12, {8 * 896}")
    a(f"s_lshl_b32 s14, s{S_PG}, 1")
    a("s_lshr_b32 s12, s3, 1")
    a("s_add_u32 s14, s14, s12")
    a("s_lshl_b32 s14, s14, 4")
    a(f"s_lshl_b32 s12, s{S_HP}, 1")
    a("s_add_u32 s14, s14, s12")
    a("s_and_b32 s12, s3, 1")
    a("s_add_u32 s14, s14, s12")
    a("s_lshl_b32 s12, s14, 6")
    a(f"s_add_u32 s12, s12, {OFL_OFF}")
    a("s_lshl_b32 s14, s14, 11")
    a(f"v_min3_f32 v8, v{O(0) + 12}, v{O(1) + 12}, v{O(2) + 12}")
    a(f"v_max3_f32 v9, v{O(0) + 12}, v{O(1) + 12}, v{O(2) + 12}")
    a(f"v_min_f32 v8, v8, v{O(3) + 12}")
    a(f"v_max_f32 v9, v9, v{O(3) + 12}")
    a("v_cmp_nle_f32 vcc, 0x1f800000, v8")
    a("s_and_b64 s[8:9], vcc, s[74:75]")
    a("v_cmp_nge_f32 vcc, 0x5f800000, v9")
    a("s_and_b64 vcc, vcc, s[74:75]")
    a("s_or_b64 s[8:9], s[8:9], vcc")
    a("s_cselect_b32 s8, 0x10001, 1")
    a("v_mov_b32 v8, s8")
    a("s_waitcnt lgkmcnt(0)")
    a("s_mov_b64 exec, 1")
    a(f"ds_add_u32 v{V_CNT}, v8 offset:{4 * C_RED}")
    a("s_mov_b64 exec, -1")
    a(f"s_mov_b32 s79, {SPIN}")
    a.label("F_RW", flush=False)
    a(f"ds_read_b32 v5, v{V_CNT} offset:{4 * C_RED}")
    a("s_waitcnt lgkmcnt(0)")
    a("v_readfirstlane_b32 s78, v5")
    a("s_and_b32 s8, s78, 0xffff")
    a("s_cmp_ge_u32 s8, s4")
    a("s_cbranch_scc1 F_RD")
    a("s_sub_u32 s79, s79, 1")
    a("s_cmp_lg_u32 s79, 0")
    a("s_cbranch_scc1 F_RW")
    a.label("F_RD", flush=False)
    a("s_cmp_eq_u32 s78, 4")
    a("s_cbranch_scc0 F_FBQ")
    a.label("F_RGO", flush=False)
    a.lg = 0
    toks = []
    for qd in (3, 0, 1, 2):
        for i in range(3):
            t = a.one(f"ds_read_b128 {rng(O(i) + 4 * qd, 4)}, v13 offset:{i * 4096 + qd * 1024}")
        toks.append((qd, t))
    F = O(3)
    for n, (qd, t) in enumerate(toks):
        a.wait_lg(t)
        for i in range(3):
            for r in range(0, 4, 2):
                x, y = F + 4 * qd + r, O(i) + 4 * qd + r
                if ENV("BPK", 1):
                    a(f"v_pk_add_f32 {pr(x)}, {pr(x)}, {pr(y)}")
                else:
                    add2(a, x, y)
        if n == 0:
            a(f"v_mov_b32 v12, v{F + 12}")
            a(f"v_mov_b32 v10, v{F + 12}")
            a("v_permlane32_swap_b32 v12, v10")
            a("v_rcp_f32 v10, v10")
    if WOB:
        a("s_waitcnt vmcnt(0)")
    if ENV("BPK", 1):
        for r in range(0, 16, 2):
            a(f"v_pk_mul_f32 {pr(F + r)}, {pr(F + r)}, v[10:11] op_sel_hi:[1,0]")
    else:
        for r in range(16):
            a(f"v_mul_f32 v{F + r}, v{F + r}, v10")
    for r in range(8):
        a(f"v_cvt_pk_bf16_f32 v{P + r}, v{F + 2 * r}, v{F + 2 * r + 1}")
    a(f"v_cndmask_b32 v{P + 6}, v{P + 6}, 0, s[74:75]")
    a(f"v_cndmask_b32 v{P + 7}, v{P + 7}, 0, s[74:75]")
    a(f"buffer_store_dwordx4 {rng(P, 4)}, v{L16}, s[60:63], s14 offen sc1")
    a(f"buffer_store_dwordx4 {rng(P + 4, 4)}, v{L16}, s[60:63], s14 offen offset:1024 sc1")
    arrive(a, C_RED2)
    stamp(a, 8)


def out_proj(a):
    L16 = V_L16
    vW, vR, vTk, vTs, vO = 16, 17, 18, 19, 20
    a(f"v_mov_b32 v8, s{S_NONCE}")
    a("v_mov_b32 v9, 0")
    a("s_and_b32 s9, s3, 1")
    a("s_lshr_b32 s10, s3, 1")
    a(f"v_lshrrev_b32 v5, 1, v{V_G}")
    a(f"v_lshrrev_b32 v7, 2, v{V_N}")
    a("v_lshl_add_u32 v5, v5, 2, v7")
    a("v_lshlrev_b32 v5, 7, v5")
    a(f"v_lshrrev_b32 v7, 3, v{V_N}")
    a("v_lshl_add_u32 v5, v7, 6, v5")
    a(f"v_and_b32 v7, 1, v{V_G}")
    a("v_lshl_add_u32 v5, v7, 5, v5")
    a(f"v_and_b32 v7, 3, v{V_N}")
    a("v_lshl_add_u32 v5, v7, 3, v5")
    a("s_lshl_b32 s13, s10, 6")
    a("v_xor_b32 v5, s13, v5")
    a("s_mul_i32 s13, s10, 28672")
    a(f"s_add_u32 s13, s13, {L_WO}")
    a(f"v_add_u32 v{vTk}, s13, v5")
    a(f"v_xor_b32 v{vTs}, 64, v{vTk}")
    WFR = lambda ks, q: 88 + 8 * ks + 4 * q
    order = [ks for ks in range(16) if ks != 7] + [7]

    def rdw(ks):
        hl, half = divmod(ks, 2)
        for q in range(2):
            for u in range(2):
                r = WFR(ks, q) + 2 * u
                a(f"ds_read_b64_tr_b16 v[{r}:{r + 1}], v{vTs if q else vTk} offset:{(28 * hl + 16 * half + 8 * u) * 128}")

    if WOB:
        wait_cnt(a, C_RED2, 4, sleep=0)
    for ks in order[:6]:
        rdw(ks)
    a("s_waitcnt vmcnt(0)")
    a("s_mov_b64 exec, 1")
    a("buffer_store_dword v8, v9, s[64:67], s12 offen sc1")
    a("s_mov_b64 exec, -1")
    a(f"s_cmp_eq_u32 s{S_HP}, 7")
    a("s_cbranch_scc1 F_BEND")
    for ks in order[6:]:
        rdw(ks)
    a(f"v_and_b32 v5, 7, v{V_LANE}")
    a("v_lshlrev_b32 v21, 6, v5")
    a(f"s_lshl_b32 s14, s{S_PG}, 1")
    a("s_add_u32 s14, s14, s9")
    a(f"s_mul_i32 s8, s14, {32 * 3584}")
    a("s_lshl_b32 s14, s14, 4")
    a("s_lshl_b32 s12, s10, 3")
    a("s_add_u32 s14, s14, s12")
    a("s_lshl_b32 s12, s14, 6")
    a(f"s_add_u32 s12, s12, {OFL_OFF}")
    a("s_lshl_b32 s14, s14, 11")
    srd(a, 52, P_OUT, OUT_BYTES)
    a(f"v_lshrrev_b32 v5, 5, v{V_LANE}")
    a(f"v_mul_u32_u24 v{vO}, {4 * 3584}, v5")
    a(f"v_and_b32 v5, 31, v{V_LANE}")
    a(f"v_lshl_add_u32 v{vO}, v5, 2, v{vO}")
    a(f"s_lshl_b32 s13, s{S_HP}, 8")
    a("s_add_u32 s8, s8, s13")
    a("s_lshl_b32 s13, s10, 7")
    a("s_add_u32 s8, s8, s13")
    a("s_add_u32 s13, s8, 1792")
    a("s_lshl_b32 s8, s3, 12")
    a(f"s_add_u32 s8, s8, {L_PX}")
    a(f"v_add_u32 v{vW}, s8, v{L16}")
    a("s_xor_b32 s8, s3, 2")
    a("s_lshl_b32 s8, s8, 12")
    a(f"s_add_u32 s8, s8, {L_PX}")
    a(f"v_add_u32 v{vR}, s8, v{L16}")
    a("s_lshl_b32 s8, s9, 2")
    a(f"v_add_u32 v22, s8, v{V_CNT}")
    a(f"s_mul_i32 s8, s{S_HP}, 19")
    a(f"v_min_u32 v23, 18, v{V_LANE}")
    a("v_add_u32 v23, s8, v23")
    a("v_min_u32 v23, 127, v23")
    a("v_lshlrev_b32 v23, 7, v23")
    if not WOB:
        wait_cnt(a, C_RED2, 4)
    a("s_waitcnt lgkmcnt(0)")
    poll_flags(a, 21, 64, "s12", sleep=1)
    stamp(a, 9)
    a.vm = 0
    OFR = lambda ks: 24 + 4 * ks
    if ENV('OPF', 0):
        a("buffer_load_dword v6, v23, s[60:63], s14 offen sc1")
    toks = []
    for hl in range(8):
        a(f"buffer_load_dwordx4 {rng(OFR(2 * hl), 4)}, v{L16}, s[60:63], s14 offen offset:{(hl % 2) * 2048} sc1")
        toks.append(a.one(f"buffer_load_dwordx4 {rng(OFR(2 * hl + 1), 4)}, v{L16}, s[60:63], s14 offen offset:{(hl % 2) * 2048 + 1024} sc1"))
        if hl % 2 == 1 and hl < 7:
            a("s_add_u32 s14, s14, 4096")
    acc = lambda q: 216 + 16 * q
    for ks in range(16):
        if ks % 2 == 0:
            a.wait_vm(toks[ks // 2])
        for q in (1, 0):
            d = acc(q)
            c = "0" if ks == 0 else rng(d, 16)
            a(f"{MF32} {rng(d, 16)}, {rng(OFR(ks), 4)}, {rng(WFR(ks, q), 4)}, {c}")
    stamp(a, 10)
    for qd in range(4):
        a(f"ds_write_b128 v{vW}, {rng(acc(1) + 4 * qd, 4)} offset:{qd * 1024}")
    a("s_waitcnt lgkmcnt(0)")
    arrive(a, C_PX0, vbase=22)
    wait_cnt(a, C_PX0, 2, vbase=22, sleep=0)
    a.lg = 0
    toks = []
    for qd in range(4):
        toks.append(a.one(f"ds_read_b128 {rng(24 + 4 * qd, 4)}, v{vR} offset:{qd * 1024}"))
    for qd in range(4):
        a.wait_lg(toks[qd])
        b = acc(0) + 4 * qd
        for r in range(0, 4, 2):
            add2(a, b + r, 24 + 4 * qd + r)
        a(f"buffer_store_dword v{b}, v{vO}, s[52:55], s13 offen{OSC1}")
        a(f"buffer_store_dword v{b + 1}, v{vO}, s[52:55], s13 offen offset:3584{OSC1}")
        a(f"s_add_u32 s13, s13, {2 * 3584}")
        a(f"buffer_store_dword v{b + 2}, v{vO}, s[52:55], s13 offen{OSC1}")
        a(f"buffer_store_dword v{b + 3}, v{vO}, s[52:55], s13 offen offset:3584{OSC1}")
        if qd < 3:
            a(f"s_add_u32 s13, s13, {6 * 3584}")
    stamp(a, 11)
    a.label("F_BEND")
    stamp_flush(a, 0, 12)
    a("s_endpgm")


def fallback(a):
    L16 = V_L16
    MX = 220
    a.label("F_FBQ")
    a("s_cmp_lg_u32 s4, 4")
    a("s_cbranch_scc1 F_RGO")
    a("s_waitcnt vmcnt(0)")
    a("s_mov_b32 s58, 65536")
    for i in range(4):
        a(f"v_mov_b32 v{MX + i}, 0xff800000")
    a("s_mov_b32 s15, 0")
    a.label("F_FBL")
    a(f"buffer_load_dwordx4 {rng(KB(0, 0), 4)}, v{L16}, s[56:59], s15 offen sc1")
    a(f"buffer_load_dwordx4 {rng(KB(0, 1), 4)}, v{L16}, s[56:59], s15 offen offset:1024 sc1")
    a("s_waitcnt vmcnt(0)")
    for i in range(4):
        a(f"{MF32} {rng(S(0), 16)}, {rng(KB(0, 0), 4)}, {rng(QR(i, 0), 4)}, 0")
        a(f"{MF32} {rng(S(0), 16)}, {rng(KB(0, 1), 4)}, {rng(QR(i, 1), 4)}, {rng(S(0), 16)}")
        for r in range(0, 16, 2):
            a(f"v_max3_f32 v{MX + i}, v{MX + i}, v{S(0) + r}, v{S(0) + r + 1}")
    a("s_add_u32 s15, s15, 4096")
    a("s_cmp_lt_u32 s15, 65536")
    a.fence()
    a("s_cbranch_scc1 F_FBL")
    a(f"v_lshlrev_b32 v6, 2, v{V_LANE}")
    for i in range(4):
        a(f"v_mov_b32 v5, v{MX + i}")
        a(f"v_permlane32_swap_b32 v{MX + i}, v5")
        a(f"v_max_f32 v{MX + i}, v{MX + i}, v5")
        a(f"s_lshl_b32 s8, s{68 + i}, 10")
        a(f"s_add_u32 s8, s8, {L_BRED}")
        a(f"v_add_u32 v{MX + 4 + i}, s8, v6")
        a("s_lshl_b32 s9, s3, 8")
        a(f"v_add_u32 v7, s9, v{MX + 4 + i}")
        a(f"ds_write_b32 v7, v{MX + i}")
    a("s_waitcnt lgkmcnt(0)")
    arrive(a, C_FB)
    wait_cnt(a, C_FB, 4)
    for i in range(4):
        for w in range(4):
            a(f"ds_read_b32 v{S(0) + 4 * i + w}, v{MX + 4 + i} offset:{256 * w}")
    a("s_waitcnt lgkmcnt(0)")
    arrive(a, C_FB)
    for i in range(4):
        b = S(0) + 4 * i
        a(f"v_max3_f32 v5, v{b}, v{b + 1}, v{b + 2}")
        a(f"v_max_f32 v5, v5, v{b + 3}")
        a("v_sub_f32 v5, 0, v5")
        a("v_cvt_pk_bf16_f32 v6, v5, v5")
        a("v_and_b32 v7, 0xffff0000, v6")
        a("v_sub_f32 v5, v5, v7")
        a("v_cvt_pk_bf16_f32 v8, v5, v5")
        a("v_and_b32 v7, 0xffff0000, v8")
        a("v_sub_f32 v5, v5, v7")
        a("v_cvt_pk_bf16_f32 v9, v5, 0")
        a("v_and_b32 v6, 0xffff, v6")
        a("v_or_b32 v6, v6, v7")
        a(f"v_cndmask_b32 v{QR(i, 1) + 2}, v{QR(i, 1) + 2}, v6, s[74:75]")
        a(f"v_cndmask_b32 v{QR(i, 1) + 3}, v{QR(i, 1) + 3}, v9, s[74:75]")
    for r in range(64):
        a(f"v_mov_b32 v{O(0) + r}, 0")
    for r in range(4):
        a(f"v_mov_b32 v{VB(3, 1) + r}, 0")
        a(f"v_mov_b32 v{P + 4 + r}, 0")
    wait_cnt(a, C_FB, 8)
    a("s_mov_b32 s4, 8")
    kv_first(a)
    a.fence()
    a("s_branch F_RESTART")


_thr = [THR]


def add2(a, x, y):
    a(f"v_add_f32 v{x}, v{x}, v{y}")
    a(f"v_add_f32 v{x + 1}, v{x + 1}, v{y + 1}")


def thr(a):
    if _thr[0]:
        a(f"s_waitcnt vmcnt({_thr[0]})")


def pr(r):
    return f"v[{r}:{r + 1}]"


def pcmad(a, d, m, x, b, t):
    a(f"v_pk_fma_f32 {pr(t)}, {pr(m)}, {pr(x)}, {pr(b)} op_sel:[1,1,0] op_sel_hi:[1,0,1] neg_lo:[1,0,0]")
    a(f"v_pk_fma_f32 {pr(d)}, {pr(m)}, {pr(x)}, {pr(t)} op_sel_hi:[0,1,1]")


def a_main(a):
    a.label("F_AM")
    a.vm = a.lg = 0
    a("s_setprio 0")
    a(f"s_cmp_eq_u32 s{S_HP}, 7")
    a("s_cbranch_scc1 F_A7")
    a_setup(a)
    wait_cnt(a, C_NONCE, 0, st=S_NONCE, nz=True, sleep=2)
    a(f"s_setprio {AMEM}")
    stamp(a, 5)
    if PFW1 == 0:
        prefetch_xa(a, 68, 126)
        prefetch_w(a, P_BRE, 68, 127)
    if PFW1 < 2:
        prefetch_w(a, P_BIM, 68, 126)
    if ENV("NOA", 0):
        wait_cnt(a, C_WO, 4)
        srd(a, 52, P_WO, W_BYTES)
        a(f"s_mul_i32 s10, s{S_WA}, 14336")
        a(f"s_add_u32 s10, s10, {L_WO}")
        for i in range(15):
            a(f"s_add_u32 m0, s10, {1024 * i}")
            a(f"s_mov_b32 s12, {8 * 896 * i}")
            thr(a)
            a(f"buffer_load_dwordx4 v{vWo}, s[52:55], s12 offen lds")
        a("s_waitcnt vmcnt(0)")
        arrive(a, C_WO)
        stamp_flush(a, 0, 12)
        a("s_endpgm")
    a1(a)
    a3(a)
    stamp_flush(a, 0, 12)
    a("s_endpgm")
    a.label("F_A7")
    wait_cnt(a, C_NONCE, 0, st=S_NONCE, nz=True, sleep=2)
    a(f"s_setprio {AMEM}")
    if PFW1 == 0:
        prefetch_xa(a, 68, 126)
        prefetch_w(a, P_BRE, 68, 127)
    if PFW1 < 2:
        prefetch_w(a, P_BIM, 68, 126)
    wait_cnt(a, C_WO, 4, sleep=4)
    arrive(a, C_WO)
    if PF7:
        a(f"s_and_b32 s8, s{S_PG}, 3")
        a("s_lshl_b32 s8, s8, 2")
        a(f"s_add_u32 s8, s8, s{S_WA}")
        a("s_mul_i32 s8, s8, 196")
        a(f"v_min_u32 v5, 48, v{V_LANE}")
        a("v_add_lshl_u32 v6, v5, s8, 7")
        srd(a, 52, P_CRE, W_BYTES)
        srd(a, 56, P_CIM, W_BYTES)
        srd(a, 60, P_WO, W_BYTES)
        for sr, q in [(x, q) for q in range(4) for x in (52, 56)] + [(60, q) for q in range(4)]:
            a(f"s_mov_b32 s9, {49 * 128 * q}")
            a(f"buffer_load_dword v126, v6, s[{sr}:{sr + 3}], s9 offen")
            a("s_waitcnt vmcnt(0)")
    else:
        for p in (P_CRE, P_CIM, P_WO):
            prefetch_w(a, p, 68, 126)
            a("s_waitcnt vmcnt(0)")
    stamp_flush(a, 0, 12)
    a("s_endpgm")


def a_setup(a):
    a(f"s_lshl_b32 s8, s{S_HP}, 6")
    a(f"s_lshl_b32 s9, s{S_WA}, 4")
    a("s_add_u32 s9, s8, s9")
    a(f"v_add_u32 v13, s9, v{V_N}")
    LD, LR, LI, A2, TH, T0, T1 = 100, 101, 102, 103, 104, 6, 7
    a(f"v_lshlrev_b32 v{V_P16}, 4, v13")
    a(f"s_and_b32 s14, s{S_WA}, 1")
    a(f"s_lshr_b32 s15, s{S_WA}, 1")
    xb_dma_voffset(a, vBd, "s9")
    xb_dma_voffset(a, vCd, "s8")
    a(f"v_and_b32 v7, 32, v{V_LANE}")
    a(f"v_bfe_u32 v6, v{V_LANE}, 3, 2")
    a(f"s_lshl_b32 s12, s{S_PG}, 6")
    a(f"s_lshl_b32 s9, s{S_WA}, 3")
    a("s_add_u32 s9, s12, s9")
    a("v_add3_u32 v7, v7, v6, s9")
    blk_dma_voffset(a, vXd, 7, rows2=4)
    a(f"v_and_b32 v5, 31, v{V_LANE}")
    a("v_bfe_u32 v6, v5, 1, 3")
    a(f"v_lshrrev_b32 v7, 5, v{V_LANE}")
    a("v_xor_b32 v6, v6, v7")
    a("v_lshlrev_b32 v6, 4, v6")
    a("v_lshl_add_u32 v5, v5, 7, v6")
    a(f"v_add_u32 v{vXr}, {L_XB}, v5")
    for sg in range(1, 4):
        a(f"v_xor_b32 v{vXr + sg}, {32 * sg}, v{vXr}")
    a(f"s_lshl_b32 s11, s{S_WA}, 12")
    a(f"s_lshl_b32 s10, s{S_WA}, 11")
    a(f"s_add_u32 s10, s10, {L_XB}")
    a(f"v_lshrrev_b32 v5, 3, v{V_LANE}")
    a(f"s_mul_i32 s9, s{S_WA}, 112")
    a("v_add_u32 v5, s9, v5")
    a("v_mul_u32_u24 v5, 896, v5")
    a(f"v_and_b32 v7, 1, v{V_G}")
    a("v_lshlrev_b32 v7, 2, v7")
    a(f"v_and_b32 v6, 7, v{V_LANE}")
    a("v_xor_b32 v7, v7, v6")
    a("v_lshl_add_u32 v5, v7, 4, v5")
    a(f"s_lshl_b32 s9, s{S_HP}, 7")
    a(f"v_add_u32 v{vWo}, s9, v5")
    a(f"s_mul_i32 s9, s{S_WA}, 5120")
    a(f"s_add_u32 s9, s9, {L_HS}")
    a(f"v_mul_u32_u24 v5, 144, v{V_N}")
    a(f"v_lshl_add_u32 v5, v{V_G}, 5, v5")
    a(f"v_add_u32 v{vTw}, s9, v5")
    a(f"v_lshrrev_b32 v5, 1, v{V_G}")
    a(f"v_lshrrev_b32 v6, 2, v{V_N}")
    a("v_lshl_add_u32 v5, v5, 3, v6")
    a("v_mul_u32_u24 v5, 144, v5")
    a(f"v_and_b32 v6, 1, v{V_N}")
    a("v_lshl_add_u32 v5, v6, 6, v5")
    a(f"v_and_b32 v6, 1, v{V_G}")
    a("v_lshl_add_u32 v5, v6, 4, v5")
    a(f"v_bfe_u32 v6, v{V_N}, 1, 1")
    a("v_lshl_add_u32 v5, v6, 3, v5")
    a(f"v_add_u32 v{vTr}, s9, v5")
    a(f"v_min_u32 v5, 13, v{V_LANE}")
    a(f"v_lshlrev_b32 v{vF3}, 6, v5")
    a("s_lshl_b32 s9, s15, 10")
    a(f"v_add_u32 v{vH0}, s9, v{V_L16}")
    a(f"v_xor_b32 v{vH1}, 1024, v{vH0}")
    a(f"v_and_b32 v5, 32, v{V_LANE}")
    a("s_lshl_b32 s9, s15, 4")
    a("s_add_u32 s9, s12, s9")
    a("v_add_u32 v5, s9, v5")
    a(f"v_and_b32 v6, 31, v{V_LANE}")
    a("s_lshl_b32 s9, s14, 5")
    a("s_add_u32 s9, s8, s9")
    a("v_add_u32 v6, s9, v6")
    a(f"v_mul_u32_u24 v{vO3}, 3584, v5")
    a(f"v_lshl_add_u32 v{vO3}, v6, 2, v{vO3}")
    a(f"s_add_u32 s9, s{S_HP}, 7")
    a(f"s_sub_u32 s9, s9, s{S_ROT}")
    a("s_sub_u32 s13, s9, 7")
    a("s_cselect_b32 s9, s9, s13")
    a("s_lshl_b32 s9, s9, 13")
    a("s_lshl_b32 s13, s15, 12")
    a("s_add_u32 s9, s9, s13")
    a(f"s_add_u32 s9, s9, {L_XB}")
    a(f"v_bfe_u32 v5, v{V_LANE}, 3, 2")
    a("s_lshl_b32 s13, s14, 2")
    a("v_or_b32 v5, s13, v5")
    a(f"v_lshrrev_b32 v6, 5, v{V_LANE}")
    a("v_lshlrev_b32 v7, 1, v6")
    a("v_xor_b32 v5, v5, v7")
    a("v_lshlrev_b32 v5, 4, v5")
    a("v_lshl_add_u32 v5, v6, 9, v5")
    a(f"v_and_b32 v6, 7, v{V_LANE}")
    a("v_lshl_add_u32 v5, v6, 1, v5")
    a(f"v_add_u32 v{vX3}, s9, v5")
    a(f"v_add_u32 v5, 1, v{V_G}")
    a(f"v_mul_u32_u24 v5, {8 * 7168}, v5")
    a(f"v_sub_u32 v5, v{V_P16}, v5")
    a(f"s_mul_i32 s9, s{S_PG}, 7168")
    a(f"v_add_u32 v{vEA}, s9, v5")
    for i in range(1, 8):
        a(f"v_add_u32 v{vEA + i}, 7168, v{vEA + i - 1}")
    for i in range(8):
        a(f"v_cmp_le_i32 s[{EMASK[i]}:{EMASK[i] + 1}], 0, v{vEA + i}")
    a(f"v_lshlrev_b32 v{vD3}, 16, v{vD3}")
    lam_base(a, LD, LR, LI, A2, TH, T0)
    lam_pow(a, A2, TH, 1, M1, M1 + 1, T0)
    lam_pow(a, A2, TH, 16, M16, M16 + 1, T0)
    lam_pow(a, A2, TH, 64, M64, M64 + 1, T0)
    a(f"v_lshlrev_b32 v{T1}, 9, v{V_G}")
    a(f"v_cvt_f32_u32 v{T1}, v{T1}")
    lam_pow(a, A2, TH, f"v{T1}", MQ, MQ + 1, T0)
    a(f"v_add_f32 v{T0}, -1.0, v{M1}")
    a(f"v_mul_f32 v{T1}, v{LR}, v{LR}")
    a(f"v_fma_f32 v{T1}, v{LI}, v{LI}, v{T1}")
    a(f"v_rcp_f32 v{T1}, v{T1}")
    a(f"v_mul_f32 v{K1}, v{T0}, v{LR}")
    a(f"v_fma_f32 v{K1}, -v{M1 + 1}, v{LI}, v{K1}")
    a(f"v_mul_f32 v{K1 + 1}, v{T0}, v{LI}")
    a(f"v_fma_f32 v{K1 + 1}, v{M1 + 1}, v{LR}, v{K1 + 1}")
    a(f"v_add_f32 v{T1}, v{T1}, v{T1}")
    a(f"v_mul_f32 v{K1}, v{K1}, v{T1}")
    a(f"v_mul_f32 v{K1 + 1}, v{K1 + 1}, v{T1}")
    a(f"v_mov_b32 v{K2}, v{K1 + 1}")
    a(f"v_sub_f32 v{K2 + 1}, 0, v{K1}")
    a(f"s_sub_u32 s9, s11, {L_XB}")
    for sg in range(4):
        a(f"v_add_u32 v{vBr + sg}, s9, v{vXr + sg}")
        a(f"v_add_u32 v{VBRH[sg]}, 0x10000, v{vBr + sg}")
    a("s_lshl_b32 s9, s14, 6")
    a(f"v_xor_b32 v{vCs}, s9, v{vCd}")
    a(f"v_xor_b32 v{vCs + 1}, s9, v{vCd + 1}")
    srd(a, 52, P_AX, X_BYTES)
    srd(a, 56, P_BRE, W_BYTES)
    srd(a, 60, P_BIM, W_BYTES)


CSLOT = [(1, 2), (3, 0), (1, 2), (3, 0)]
XSK = [116, 117, 118, 119, 245, 246, 247, 31]


def a1(a):
    D0, D1 = 40, 56
    FX = lambda b, tau, sg: 72 + 24 * b + 8 * sg + 4 * tau
    FB = lambda b, sg: 72 + 24 * b + 16 + 4 * sg
    tokx, tokb, tokc = {}, {}, {}
    a(f"s_lshl_b32 s12, s{S_ROT}, 7")
    a("s_mov_b32 s13, s12")
    a("s_mul_i32 s74, s14, 28672")
    a("s_sub_u32 s75, 28672, s74")
    a("s_lshl_b32 s9, s14, 9")
    a("s_add_u32 s72, s74, s9")
    a("s_add_u32 s73, s75, s9")

    def px(p_):
        def f(e):
            a(f"s_add_u32 m0, s10, {8192 * p_ + 1024 * e}")
            thr(a)
            tokx[p_] = a.one(f"buffer_load_dwordx4 v{vXd + e}, s[52:55], s12 offen lds")
            if e:
                rot_step(a, 12, 128, 896)
        return [lambda e=e: f(e) for e in range(2)]

    def pb(p_):
        def f(q):
            a(f"s_add_u32 m0, s11, {16384 * UNIT[p_] + 1024 * q}")
            thr(a)
            tokb[p_] = a.one(f"buffer_load_dwordx4 v{vBd + q % 2}, s[{56 + 4 * (q // 2)}:{59 + 4 * (q // 2)}], s13 offen lds")
            if q == 3:
                rot_step(a, 13, 128, 896)
        return [lambda q=q: f(q) for q in range(4)]

    def pc(l, bs=(0, 1)):
        def f(b, q):
            a(f"s_add_u32 m0, s11, {CSLOT[l][b] * 16384 + q * 1024}")
            a(f"s_add_u32 s12, s{(72 if l < 3 else 74) + b}, {128 * l + (q // 2) * 16 * 896}")
            thr(a)
            tokc[l] = a.one(f"buffer_load_dwordx4 v{(vCd if l < 3 else vCs) + q % 2}, s[56:59], s12 offen lds")
        return [lambda b=b, q=q: f(b, q) for b in bs for q in range(4)]

    def run(L):
        for f in L:
            f()

    dma_c = lambda l: run(pc(l))

    def rd_c(l):
        for sg in range(4 if l < 3 else 2):
            for b in range(2):
                a(f"ds_read_b128 {rng(CF(4 * l + sg, b), 4)}, v{vBr + sg} offset:{CSLOT[l][b] * 16384}")

    wait_cnt(a, C_ST2, 4)
    stamp(a, 6)
    _thr[0] = ENV('THR1', 3)
    run(px(0) + pb(0) + px(1) + pb(1))
    if ENV("AHOLD", 0):
        wait_cnt(a, C_WO, 4, sleep=2)
    else:
        wait_cnt(a, C_QF, 4)
    _thr[0] = THR
    pf = lambda p, r: [] if PF7 else [lambda: prefetch_w(a, p, 68, r)]
    setc = [lambda: (a(f"s_cmp_lt_u32 s{S_WA}, 2"), a(f"s_cselect_b32 s56, s{P_CRE}, s{P_CIM}"),
                     a(f"s_cselect_b32 s57, s{P_CRE + 1}, s{P_CIM + 1}"))]

    def pw(i0, i1):
        def f(i):
            a(f"s_add_u32 m0, s10, {1024 * i}")
            a(f"s_mov_b32 s12, {8 * 896 * i}")
            thr(a)
            a(f"buffer_load_dwordx4 v{vWo}, s[52:55], s12 offen lds")
        return [lambda i=i: f(i) for i in range(i0, i1)]

    if ENV("A1ST", 0):
        stamp(a, 1)
    run(px(2) + pb(2))
    c0, c1, c2, c3 = pc(0), pc(1), pc(2), pc(3)
    PFS = ENV("PFS", 6)
    sched = {0: px(3) + pb(3) + px(4), 1: pb(4) + px(5) + px(6), 2: pb(5), 4: pb(6),
             PFS: pf(P_CRE, 126) + pf(P_CIM, 127) + setc, 10: c0[0:2], 11: c0[2:4], 12: c0[4:6], 13: c0[6:8] + pf(P_WO, 126)}
    if ENV("FINE", 1):
        LA = ENV("LA", 3)
        assert LA in (3, 4)
        for p_ in range(3, LA):
            run(px(p_) + pb(p_))
        bgq = []
        for p_ in range(LA, 7):
            bgq.append(px(p_) + pb(p_))
        bgq.append(pf(P_CRE, 126) + pf(P_CIM, 127) + setc)
        while len(bgq) < 5:
            bgq.append([])
        bgq += [c0[0:4], c0[4:8] + pf(P_WO, 126)]

        def rd(s_):
            u = UNIT[s_ // 2]
            for sg in range(2):
                q = 2 * (s_ % 2) + sg
                for tau in range(2):
                    a(f"ds_read_b128 {rng(FX(s_ % 2, tau, sg), 4)}, v{vXr + q} offset:{(s_ // 2) * 8192 + tau * 4096}")
                a(f"ds_read_b128 {rng(FB(s_ % 2, sg), 4)}, v{VBRH[q] if u == 4 else vBr + q} offset:{(u % 4) * 16384}")

        def mm(s_, q):
            for sg in range(2):
                for tau in range(2):
                    d = (D0, D1)[tau]
                    c = "0" if s_ == 0 and sg == 0 else rng(d, 16)
                    a(f"{MF32} {rng(d, 16)}, {rng(FX(s_ % 2, tau, sg), 4)}, {rng(FB(s_ % 2, sg), 4)}, {c}")
                    gap = ENV("AGAP", 0)
                    if q:
                        q.pop(0)()
                        gap -= 4
                    if gap > 0 and not (sg == 1 and tau == 1):
                        a(f"s_nop {gap - 1}")

        a.wait_vm(max(tokx[0], tokb[0]))
        arrive(a, C_XP)
        wait_cnt(a, C_XP, 4)
        rd(0)
        for p_ in range(7):
            q = list(bgq[p_])
            rd(2 * p_ + 1)
            if p_ < 6:
                a.wait_vm(max(tokx[p_ + 1], tokb[p_ + 1]))
                arrive(a, C_XP + p_ + 1)
                a("s_waitcnt lgkmcnt(7)")
            else:
                a("s_waitcnt lgkmcnt(6)")
            mm(2 * p_, q)
            if p_ < 6:
                wait_cnt(a, C_XP + p_ + 1, 4, sleep=0)
                rd(2 * p_ + 2)
            else:
                a("s_waitcnt lgkmcnt(0)")
            mm(2 * p_ + 1, q)
            assert not q
    else:
        STG = ((0, 4, C_XA0), (4, 8, C_XA1), (8, 14, C_XA2))
        for (k0, k1, cnt) in STG:
            a.wait_vm(max(tokx[k1 // 2 - 1], tokb[k1 // 2 - 1]))
            arrive(a, cnt)
            wait_cnt(a, cnt, 4)
            if ENV("A1ST", 0):
                stamp(a, {0: 2, 4: 3, 8: 4}[k0])
            if ENV("LATP", 0) and k0 == 8:
                def probe(slot, ins, wait):
                    a("s_waitcnt vmcnt(0) lgkmcnt(0)")
                    a("s_memtime s[98:99]")
                    a("s_waitcnt lgkmcnt(0)")
                    if ins:
                        a(ins)
                        a(wait)
                    a("s_memtime s[100:101]")
                    a("s_waitcnt lgkmcnt(0)")
                    a(f"s_sub_u32 s{80 + slot}, s100, s98")
                probe(1, f"buffer_load_dwordx4 v[128:131], v{vXd}, s[52:55], 0 offen sc1", "s_waitcnt vmcnt(0)")
                probe(2, f"buffer_load_dwordx4 v[128:131], v{vCd}, s[56:59], 0 offen", "s_waitcnt vmcnt(0)")
                probe(3, f"ds_read_b128 v[128:131], v{vXr}", "s_waitcnt lgkmcnt(0)")
                probe(4, None, None)
            a.lg = 0
            lt = {}

            def rd(s_):
                t = None
                u = UNIT[s_ // 2]
                for sg in range(2):
                    q = 2 * (s_ % 2) + sg
                    for tau in range(2):
                        a(f"ds_read_b128 {rng(FX(s_ % 2, tau, sg), 4)}, v{vXr + q} offset:{(s_ // 2) * 8192 + tau * 4096}")
                    t = a.one(f"ds_read_b128 {rng(FB(s_ % 2, sg), 4)}, v{VBRH[q] if u == 4 else vBr + q} offset:{(u % 4) * 16384}")
                lt[s_] = t
            rd(k0)
            for s_ in range(k0, k1):
                if s_ + 1 < k1:
                    rd(s_ + 1)
                a.wait_lg(lt[s_])
                q = list(sched.get(s_, []))
                for sg in range(2):
                    for tau in range(2):
                        d = (D0, D1)[tau]
                        c = "0" if s_ == 0 and sg == 0 else rng(d, 16)
                        if not ENV("NOMF1", 0):
                            a(f"{MF32} {rng(d, 16)}, {rng(FX(s_ % 2, tau, sg), 4)}, {rng(FB(s_ % 2, sg), 4)}, {c}")
                        if q:
                            q.pop(0)()
                            if len(q) > 3 - (2 * sg + tau):
                                q.pop(0)()
                        elif ASPACE:
                            a(f"s_sleep {ASPACE}")
                        for _ in range(ENV("ANOP", 0)):
                            a("s_nop 7")
                assert not q
    a(f"v_xor_b32 v5, 16, v{vX3}")
    a(f"v_xor_b32 v6, 64, v{vX3}")
    a(f"v_xor_b32 v7, 80, v{vX3}")
    for r in range(16):
        base = (vX3, 5, 6, 7)[2 * ((r // 4) % 2) + (r // 2) % 2]
        a(f"ds_read_u16 v{72 + r}, v{base} offset:{(8 * (r // 4) + r % 4) * 128}")
    srd(a, 52, P_WO, W_BYTES)
    a(f"s_mul_i32 s10, s{S_WA}, 14336")
    a(f"s_add_u32 s10, s10, {L_WO}")
    a("s_waitcnt lgkmcnt(0)")
    arrive(a, C_G1)
    for r in range(8):
        a(f"v_lshl_or_b32 v{XSK[r]}, v{73 + 2 * r}, 16, v{72 + 2 * r}")
    stamp(a, 7)
    BP = lambda r: 72 + 2 * r
    T = 6
    run(c1[0:3])
    a(f"s_setprio {ACMP}")
    for r in range(16):
        a(f"v_permlane16_swap_b32 v{D0 + r}, v{D1 + r}")
    for r in range(16):
        e = r % 2
        if r in (4, 8, 12):
            run(c1[2 + r // 4:3 + r // 4])
        if e == 0:
            a(f"v_pk_mul_f32 {pr(BP(r))}, {pr(K1)}, {pr(D0 + r)} op_sel:[0,0] op_sel_hi:[1,0]")
            a(f"v_pk_fma_f32 {pr(BP(r))}, {pr(K2)}, {pr(D1 + r)}, {pr(BP(r))} op_sel:[0,0,0] op_sel_hi:[1,0,1]")
        else:
            a(f"v_pk_mul_f32 {pr(BP(r))}, {pr(D0 + r - 1)}, {pr(K1)} op_sel:[1,0] op_sel_hi:[1,1]")
            a(f"v_pk_fma_f32 {pr(BP(r))}, {pr(D1 + r - 1)}, {pr(K2)}, {pr(BP(r))} op_sel:[1,0,0] op_sel_hi:[1,1,1]")
        if r >= 2:
            pcmad(a, GS, M1, BP(0) if r == 2 else GS, BP(r - 1), T)
    pcmad(a, GS, M1, GS, BP(15), T)
    a(f"s_lshl_b32 s8, s{S_WA}, 9")
    a(f"s_add_u32 s8, s8, {L_ASCR}")
    a(f"v_lshl_add_u32 v5, v{V_LANE}, 3, s8")
    a(f"ds_write_b64 v5, {pr(GS)}")
    a(f"v_lshl_add_u32 v5, v{V_N}, 3, s8")
    SQ = 104
    for q in range(4):
        a(f"ds_read_b64 {pr(SQ + 2 * q)}, v5 offset:{128 * q}")
    srd(a, 60, P_WS, EG_BYTES, EG_OFF)
    a(f"s_mul_i32 s8, s{S_PG}, 7168")
    a(f"v_mov_b32 v115, s{S_NONCE}")
    a("s_waitcnt lgkmcnt(0)")
    pcmad(a, 112, M16, SQ, SQ + 2, T)
    pcmad(a, 112, M16, 112, SQ + 4, T)
    pcmad(a, 112, M16, 112, SQ + 6, T)
    a("v_mov_b32 v114, v113")
    a(f"v_mov_b32 v113, s{S_NONCE}")
    a("s_mov_b64 exec, 0xffff")
    a(f"buffer_store_dwordx4 v[112:115], v{V_P16}, s[60:63], s8 offen sc1")
    a("s_mov_b64 exec, -1")
    a(f"s_setprio {AMEM}")
    stamp(a, 8)
    run(c1[6:8])
    wait_cnt(a, C_G1, 4)
    wait_cnt(a, C_WO, 4)
    NW1 = ENV("NW1", 8)
    if not WOB:
        run(pw(0, NW1))
    a.wait_vm(tokc[0])
    rd_c(0)
    if WOB:
        a("s_waitcnt lgkmcnt(0)")
        run(c2)
        c2, c3 = c3, []
    if EPD:
        a(f"s_sleep {EPD}")
    EGR = 40
    a(f"s_mov_b32 s79, {SPIN}")
    a.label("F_EP")
    for i in range(8):
        a(f"buffer_load_dwordx4 {rng(EGR + 4 * i, 4)}, v{vEA + i}, s[60:63], 0 offen sc1")
        thr(a)
    a("s_mov_b64 s[8:9], 0")
    a(f"s_setprio {ACMP}")
    a("s_waitcnt vmcnt(0)")
    for i in range(8):
        a(f"v_cmp_ne_u32 s[12:13], s{S_NONCE}, v{EGR + 4 * i + 1}")
        a(f"v_cmp_ne_u32 vcc, s{S_NONCE}, v{EGR + 4 * i + 3}")
        a(f"v_mov_b32 v{EGR + 4 * i + 1}, v{EGR + 4 * i + 2}")
        a("s_or_b64 s[12:13], s[12:13], vcc")
        a(f"s_and_b64 s[12:13], s[12:13], s[{EMASK[i]}:{EMASK[i] + 1}]")
        a("s_or_b64 s[8:9], s[8:9], s[12:13]")
    a("s_cbranch_scc0 F_EOK")
    a("s_sleep 8")
    a("s_sub_u32 s79, s79, 1")
    a("s_cmp_lg_u32 s79, 0")
    a("s_cbranch_scc1 F_EP")
    a.label("F_EOK")
    stamp(a, 9)
    a.vm = 0
    a("s_waitcnt lgkmcnt(0)")
    rd_c(1)
    if WOB:
        rd_c(2)
        a("s_waitcnt lgkmcnt(8)")
    run(c2[0:4])
    pcmad(a, GS, M64, EGR, EGR + 4, T)
    for i in range(2, 8):
        pcmad(a, GS, M64, GS, EGR + 4 * i, T)
    a(f"v_pk_mul_f32 {pr(T)}, {pr(MQ)}, {pr(GS)} op_sel:[1,1] op_sel_hi:[1,0] neg_lo:[1,0]")
    a(f"v_pk_fma_f32 {pr(GS)}, {pr(MQ)}, {pr(GS)}, {pr(T)} op_sel_hi:[0,1,1]")
    for sw in ("v_permlane16_swap_b32", "v_permlane32_swap_b32"):
        a(f"v_mov_b32 v{T}, v{GS}")
        a(f"v_mov_b32 v{T + 1}, v{GS + 1}")
        a(f"{sw} v{GS}, v{T}")
        a(f"{sw} v{GS + 1}, v{T + 1}")
        a(f"v_pk_add_f32 {pr(GS)}, {pr(GS)}, {pr(T)}")
    for q in range(3):
        a(f"s_lshl_b64 exec, -1, {16 * (q + 1)}")
        pcmad(a, GS, M16, GS, SQ + 2 * q, T)
    a("s_mov_b64 exec, -1")
    PKR, PKI = 40, 48
    for r in range(16):
        if r % 4 == 0:
            run(c2[4 + r // 4:5 + r // 4])
        pcmad(a, BP(r), M1, GS if r == 0 else BP(r - 1), BP(r), T)
        if r % 2 == 0 and r > 0:
            a(f"v_cvt_pk_bf16_f32 v{PKR + r // 2 - 1}, v{BP(r - 2)}, v{BP(r - 1)}")
            a(f"v_cvt_pk_bf16_f32 v{PKI + r // 2 - 1}, v{BP(r - 2) + 1}, v{BP(r - 1) + 1}")
    a(f"v_cvt_pk_bf16_f32 v{PKR + 7}, v{BP(14)}, v{BP(15)}")
    a(f"v_cvt_pk_bf16_f32 v{PKI + 7}, v{BP(14) + 1}, v{BP(15) + 1}")
    a(f"ds_write_b128 v{vTw}, {rng(PKR, 4)}")
    a(f"ds_write_b128 v{vTw}, {rng(PKR + 4, 4)} offset:16")
    a(f"ds_write_b128 v{vTw}, {rng(PKI, 4)} offset:2304")
    a(f"ds_write_b128 v{vTw}, {rng(PKI + 4, 4)} offset:2320")
    HO = 56
    for part in range(2):
        for tau in range(2):
            for u in range(2):
                r = HO + 8 * part + 4 * tau + 2 * u
                a(f"ds_read_b64_tr_b16 v[{r}:{r + 1}], v{vTr} offset:{part * 2304 + u * 576 + tau * 32}")
    srd(a, 60, P_WS, HF_BYTES, HF_OFF)
    a(f"s_lshl_b32 s8, s{S_HP}, 2")
    a(f"s_add_u32 s8, s8, s{S_WA}")
    a(f"s_mul_i32 s9, s{S_PG}, 56")
    a("s_add_u32 s9, s9, s8")
    a("s_lshl_b32 s9, s9, 11")
    a(f"s_add_u32 s12, s9, {28 * 2048}")
    a(f"s_mul_i32 s13, s{S_PG}, 28")
    a("s_add_u32 s13, s13, s8")
    a("s_lshl_b32 s13, s13, 6")
    a(f"s_add_u32 s13, s13, {HFL_OFF}")
    a("v_mov_b32 v6, 0")
    a("s_waitcnt lgkmcnt(0)")
    for part in range(2):
        for tau in range(2):
            a(f"buffer_store_dwordx4 {rng(HO + 8 * part + 4 * tau, 4)}, v{V_L16}, s[60:63], {'s12' if part else 's9'} offen offset:{1024 * tau} sc1")
    a("s_waitcnt vmcnt(0)")
    a("s_mov_b64 exec, 1")
    a("buffer_store_dword v115, v6, s[64:67], s13 offen sc1")
    a("s_mov_b64 exec, -1")
    a(f"s_setprio {AMEM}")
    stamp(a, 10)
    if not WOB:
        rd_c(2)
    run(c3)
    if not WOB:
        run(pw(NW1, 15))
    a.wait_vm(tokc[3])
    rd_c(3)
    a("s_waitcnt lgkmcnt(0)")
    arrive(a, C_ARED)


def a3(a):
    acc = lambda ta, b: 40 + 32 * ta + 16 * b
    a("s_mul_i32 s8, s14, 14")
    a(f"s_mul_i32 s13, s{S_PG}, 28")
    a("s_add_u32 s13, s13, s8")
    a("s_lshl_b32 s13, s13, 6")
    a(f"s_add_u32 s13, s13, {HFL_OFF}")
    a(f"s_lshl_b32 s12, s{S_PG}, 1")
    a("s_add_u32 s12, s12, s15")
    a("s_mul_i32 s12, s12, 28")
    a("s_add_u32 s72, s12, s8")
    a("s_lshl_b32 s72, s72, 11")
    a(f"s_lshl_b32 s73, s{S_HP}, 5")
    a(f"v_and_b32 v6, 31, v{V_LANE}")
    a("v_add_lshl_u32 v6, v6, s73, 7")
    a("s_lshl_b32 s9, s14, 1")
    a("s_add_u32 s9, s9, s12")
    a("s_add_u32 s9, s9, 12")
    a("s_lshl_b32 s9, s9, 11")
    a("s_lshl_b32 s8, s14, 4")
    a("s_add_u32 s12, s12, s8")
    a("s_lshl_b32 s12, s12, 11")
    srd(a, 56, P_OUT, OUT_BYTES)
    F = acc(0, 0)
    for r in range(16):
        x = XSK[r // 2]
        a(f"v_and_b32 v{F + r}, 0xffff0000, v{x}" if r % 2 else f"v_lshlrev_b32 v{F + r}, 16, v{x}")
    for r in range(0, 16, 2):
        a(f"v_pk_mul_f32 {pr(F + r)}, {pr(vD3 - 1)}, {pr(F + r)} op_sel:[1,0] op_sel_hi:[1,1]")
    a("s_waitcnt vmcnt(0)")
    arrive(a, C_WO)
    poll_flags(a, vF3, 64, "s13", sleep=4)
    stamp(a, 11)
    a.vm = 0
    if ENV('HPF', 0):
        a("buffer_load_dword v126, v6, s[60:63], s72 offen sc1")
    pool = [16, 24, 32, 104, 112, 240, 248]
    hreg, tok = {}, {}
    _thr[0] = ENV("THRH", 4)

    def step_off(kk):
        if kk == 11:
            a("s_mov_b32 s12, s9")
        elif kk % 2 == 1:
            a("s_add_u32 s12, s12, 4096")

    if not ENV("HSTAGE", 1):
        nxt = [0]

        def ldh():
            kk = nxt[0]
            r = hreg[kk] = pool.pop(0)
            off = (kk % 2) * 2048
            a(f"buffer_load_dwordx4 {rng(r, 4)}, v{vH0}, s[60:63], s12 offen offset:{off} sc1")
            tok[kk] = a.one(f"buffer_load_dwordx4 {rng(r + 4, 4)}, v{vH1}, s[60:63], s12 offen offset:{off} sc1")
            step_off(kk)
            nxt[0] += 1

        HD = ENV("HD", 3)
        for _ in range(HD):
            ldh()
        a(f"s_mul_i32 s10, s{S_WA}, 12288")
        a(f"s_add_u32 s10, s10, {L_ARED}")
        a(f"v_add_u32 v13, s10, v{V_L16}")
        a(f"s_setprio {ENV('A3PRIO', 2)}")
        for kk in range(14):
            a.wait_vm(tok[kk])
            if nxt[0] < 14:
                ldh()
            for ta in range(2):
                for b in range(2):
                    d = acc(ta, b)
                    c = "0" if kk == 0 and d != F else rng(d, 16)
                    a(f"{MF32} {rng(d, 16)}, {rng(hreg[kk] + 4 * ta, 4)}, {rng(CF(kk, b), 4)}, {c}")
            pool.append(hreg[kk])
        a("s_setprio 2")
        wait_cnt(a, C_ARED, 4)
        last = 8
    else:
        last = 12
        for kk in range(7):
            r = hreg[kk] = pool[kk]
            off = (kk % 2) * 2048
            a(f"buffer_load_dwordx4 {rng(r, 4)}, v{vH0}, s[60:63], s12 offen offset:{off} sc1")
            tok[kk] = a.one(f"buffer_load_dwordx4 {rng(r + 4, 4)}, v{vH1}, s[60:63], s12 offen offset:{off} sc1")
            step_off(kk)
            thr(a)
        a(f"s_mul_i32 s10, s{S_WA}, 12288")
        a(f"s_add_u32 s10, s10, {L_ARED}")
        a(f"v_add_u32 v13, s10, v{V_L16}")
        wait_cnt(a, C_ARED, 4)
        for kk in range(7, 13):
            off = (kk % 2) * 2048
            a(f"s_add_u32 m0, s10, {(kk - 7) * 2048 - off + 4096}")
            a("s_sub_u32 m0, m0, 4096")
            a(f"buffer_load_dwordx4 v{vH0}, s[60:63], s12 offen offset:{off} sc1 lds")
            a("s_add_u32 m0, m0, 1024")
            thr(a)
            tok[kk] = a.one(f"buffer_load_dwordx4 v{vH1}, s[60:63], s12 offen offset:{off} sc1 lds")
            step_off(kk)
        a(f"s_setprio {ENV('A3PRIO', 0)}")
        if ENV("A3ST", 0):
            stamp(a, 1)
        GK = ENV("A3K", 0)
        if ENV("A3GATE", 1) and GK == 0:
            wait_cnt(a, C_RED2, 4, sleep=2)
        a.lg = 0
        lt = {}
        for kk in range(14):
            if GK and kk == GK:
                wait_cnt(a, C_RED2, 4, sleep=2)
            if kk < 7 or kk == 13:
                a.wait_vm(tok[kk])
            else:
                a.wait_lg(lt[kk])
            for ta in range(2):
                for b in range(2):
                    d = acc(ta, b)
                    c = "0" if kk == 0 and d != F else rng(d, 16)
                    if not ENV("NOMF3", 0):
                        a(f"{MF32} {rng(d, 16)}, {rng(hreg[kk] + 4 * ta, 4)}, {rng(CF(kk, b), 4)}, {c}")
            if kk == 0:
                r = hreg[13] = hreg[0]
                a(f"buffer_load_dwordx4 {rng(r, 4)}, v{vH0}, s[60:63], s12 offen offset:2048 sc1")
                tok[13] = a.one(f"buffer_load_dwordx4 {rng(r + 4, 4)}, v{vH1}, s[60:63], s12 offen offset:2048 sc1")
            elif kk <= 6:
                n = kk + 6
                r = hreg[n] = hreg[kk]
                if kk == 1:
                    a.wait_vm(tok[12])
                    if ENV("A3ST", 0):
                        stamp(a, 2)
                a(f"ds_read_b128 {rng(r, 4)}, v13 offset:{(n - 7) * 2048}")
                lt[n] = a.one(f"ds_read_b128 {rng(r + 4, 4)}, v13 offset:{(n - 7) * 2048 + 1024}")
            if kk == 12:
                arrive(a, C_ARED)
        a("s_setprio 2")
        if ENV("A3ST", 0):
            stamp(a, 3)
        wait_cnt(a, C_ARED, 8)
        if ENV("A3ST", 0):
            stamp(a, 4)
    for j in range(1, 4):
        a(f"s_xor_b32 s8, s{S_WA}, {j}")
        a("s_mul_i32 s8, s8, 12288")
        a(f"s_add_u32 s8, s8, {L_ARED}")
        a(f"v_add_u32 v5, s8, v{V_L16}")
        for qd in range(4):
            a(f"ds_write_b128 v5, {rng(acc(j // 2, j % 2) + 4 * qd, 4)} offset:{(j - 1) * 4096 + qd * 1024}")
    a("s_waitcnt lgkmcnt(0)")
    arrive(a, C_ARED)
    wait_cnt(a, C_ARED, last)
    if ENV("A3ST", 0):
        stamp(a, 5)
    a.lg = 0
    toks = {}
    for qd in range(4):
        for j in range(1, 4):
            toks[qd, j] = a.one(f"ds_read_b128 {rng(acc(j // 2, j % 2) + 4 * qd, 4)}, v13 offset:{(j - 1) * 4096 + qd * 1024}")
    a("s_mov_b32 s8, 0")
    for qd in range(4):
        a.wait_lg(toks[qd, 3])
        for j in range(1, 4):
            for r in range(0, 4, 2):
                x, y = F + 4 * qd + r, acc(j // 2, j % 2) + 4 * qd + r
                add2(a, x, y)
        for r in range(4):
            a(f"buffer_store_dword v{F + 4 * qd + r}, v{vO3}, s[56:59], s8 offen offset:{3584 * (r % 2)}{OSC1}")
            if r % 2 == 1:
                a("s_add_u32 s8, s8, 7168")
    stamp(a, 13)


if __name__ == "__main__":
    import sys
    NAME = "concat_heads__ssm_conv_s5__grouped_kv_mqa__prompt"
    ref = open(f"cdna_kernels/{NAME}.s.ref").read().split("\n")
    head = [l for l in ref if l.startswith(";") and "@launch" not in l and "Override" not in l and "grid=ceil" not in l]
    a = Asm()
    a.raw("\n".join(head))
    KN = NAME + "_kernel" if ENV("SINGLE", 0) else "f_kernel"
    a.raw(f"; @launch {'' if ENV('SINGLE', 0) else 'kernel=f_kernel '}grid=(256,1,1) block=(512,1,1) lds={F_LDS}")
    a.raw('.amdgcn_target "amdgcn-amd-amdhsa--gfx950"\n.text')
    gen_g(a, KN)
    a.raw(".p2align 8\n.fill 4096, 4, 0xbf800000")
    a.raw('.section .rodata,"a"')
    a.raw(kernel_desc(KN, 256))
    out = sys.argv[1] if len(sys.argv) > 1 else f"cdna_kernels/{NAME}.s"
    open(out, "w").write(a.text())
    print("wrote", out, "nops", a.nops)
```

```python
from gen_common import *

MF16 = "v_mfma_f32_16x16x32_bf16"
MF32 = "v_mfma_f32_32x32x16_bf16"
ENV = lambda k, d: int(os.environ.get(k, str(d)))
ASPACE = ENV('ASPACE', 0)
PFW1 = ENV('PFW1', 2)
OSC1 = ["", " sc1", " sc1 nt", " nt", " sc0 sc1"][ENV("OSC1", 1)]
POLLD = ENV("POLLD", 0)
EPD = ENV("EPD", 0)
THR = ENV('THR', 6)
BPRI = ENV("BPRI", 1)
WOB = ENV("WOB", 0)
PF7 = ENV("PF7", 0)
NTX = " nt" if ENV("NTX", 0) else ""
NTW = " nt" if ENV("NTW", 0) else ""
PH = ENV("PH", 1)
BLO, BHI, AMEM, ACMP = (0, 2, 1, 3) if PH else (1, 3, 2, 2)

L_WQ = 0
L_WKV = 57344
L_XB = 86016
L_QF = 143360
L_KVP = 151552
L_ASCR = 161536
L_BRED = 0
L_PX = L_BRED
L_ARED = 49152
L_HS = 65536
L_WO = 98304
L_MISC = 163584
F_LDS = 163840
(C_ST0, C_ST1, C_ST2, C_QF, C_RED, C_WO, C_RED2, C_NONCE, C_BAD, C_PX0, C_PX1, C_KVL, C_KVP,
 C_XA0, C_XA1, C_XA2, C_G1, C_ARED, C_CDONE, C_FB) = range(20)
C_XP = 24

FLG_OFF = 0x300000
KVF_OFF = 0
OFL_OFF = 0x4000
HFL_OFF = 0x14000
FLG_BYTES = 0x24000
EG_OFF = 0x340000
EG_BYTES = 32 * 448 * 16
HF_OFF = H_OFF
HF_BYTES = 32 * 2 * 28 * 2048
SPIN = 1 << 18

S_WA, S_PG, S_HP, S_ROT, S_NONCE = 5, 50, 51, 76, 77
V_PF, V_LANE, V_N, V_G, V_L16, V_CNT, V_ONE = 0, 1, 2, 3, 4, 14, 15
SB1, SB2 = ENV('SB1', 4), ENV('SB2', 8)
STAGES = [(0, SB1, C_ST0), (SB1, SB2, C_ST1), (SB2, 14, C_ST2)]


M1, M16, M64, MQ, K1, K2, GS = 16, 18, 20, 22, 24, 26, 28
V_P16 = 30
vXd, vBd, vXr, vBr, vCs = 32, 34, 36, 8, 12
VBRH = [31, 245, 246, 247]
vCd, vWo, vTw, vTr, vEA = 240, 242, 243, 244, 248
vH0, vH1, vO3, vX3, vF3, vD3 = 120, 121, 122, 123, 124, 125
EMASK = [18, 20, 30, 34, 36, 38, 40, 46]
CF = lambda kk, b: 128 + 8 * kk + 4 * b
UNIT = [4, 0, 1, 2, 3, 4, 0]


def rng(r, n):
    return f"v[{r}:{r + n - 1}]"


_uid = [0]


def uid(p):
    _uid[0] += 1
    return f"{p}_{_uid[0]}"


def arrive(a, c, vbase=V_CNT):
    a("s_mov_b64 exec, 1")
    a(f"ds_add_u32 v{vbase}, v{V_ONE} offset:{4 * c}")
    a("s_mov_b64 exec, -1")


def wait_cnt(a, c, target, vt=5, st=78, sleep=1, nz=False, vbase=V_CNT):
    l, d = uid("LW"), uid("LD")
    a(f"s_mov_b32 s79, {SPIN}")
    a.label(l, flush=False)
    a(f"ds_read_b32 v{vt}, v{vbase} offset:{4 * c}")
    a("s_waitcnt lgkmcnt(0)")
    a(f"v_readfirstlane_b32 s{st}, v{vt}")
    a(f"s_cmp_lg_u32 s{st}, 0" if nz else f"s_cmp_ge_u32 s{st}, {target}")
    a(f"s_cbranch_scc1 {d}")
    a(f"s_sleep {sleep}")
    a("s_sub_u32 s79, s79, 1")
    a("s_cmp_lg_u32 s79, 0")
    a(f"s_cbranch_scc1 {l}")
    a.label(d, flush=False)


def poll_flags(a, vaddr, srd_, soff, vt=5, sleep=2):
    l, d = uid("PW"), uid("PD")
    a(f"s_mov_b32 s79, {SPIN}")
    a.label(l, flush=False)
    a(f"buffer_load_dword v{vt}, v{vaddr}, s[{srd_}:{srd_ + 3}], {soff} offen sc1")
    a("s_waitcnt vmcnt(0)")
    a(f"v_cmp_ne_u32 vcc, s{S_NONCE}, v{vt}")
    a(f"s_cbranch_vccz {d}")
    a(f"s_sleep {sleep}")
    a("s_sub_u32 s79, s79, 1")
    a("s_cmp_lg_u32 s79, 0")
    a(f"s_cbranch_scc1 {l}")
    a.label(d, flush=False)


def rot_step(a, sk, step, wrap):
    a(f"s_add_u32 s{sk}, s{sk}, {step}")
    a(f"s_cmp_ge_u32 s{sk}, {wrap}")
    a(f"s_cselect_b32 s{sk}, 0, s{sk}")


def blk_dma_voffset(a, vd, vrow, rows2=8):
    a(f"v_mul_u32_u24 v5, 896, v{vrow}")
    a(f"v_and_b32 v6, 7, v{V_LANE}")
    a(f"v_xor_b32 v6, v6, v{V_G}")
    a(f"v_lshl_add_u32 v{vd}, v6, 4, v5")
    a(f"v_xor_b32 v6, 4, v6")
    a(f"v_lshl_add_u32 v5, v6, 4, v5")
    a(f"v_add_u32 v{vd + 1}, {896 * rows2}, v5")


def xb_dma_voffset(a, vd, s_row0):
    a(f"v_lshrrev_b32 v7, 3, v{V_LANE}")
    a(f"v_add_u32 v7, {s_row0}, v7")
    blk_dma_voffset(a, vd, 7)


def xfrag16_base(a, vd, base):
    a(f"v_lshrrev_b32 v5, 1, v{V_N}")
    a(f"v_xor_b32 v5, v5, v{V_G}")
    a("v_lshlrev_b32 v5, 4, v5")
    a(f"v_lshl_add_u32 v5, v{V_N}, 7, v5")
    a(f"v_add_u32 v{vd}, {base}, v5")
    a(f"v_xor_b32 v{vd + 1}, 64, v{vd}")


def prefetch_w(a, ptr, sr, vd):
    srd(a, sr, ptr, W_BYTES)
    a(f"buffer_load_dword v{vd}, v{V_PF}, s[{sr}:{sr + 3}], 0 offen")


def prefetch_xa(a, sr, vd):
    srd(a, sr, P_AX, X_BYTES)
    a(f"s_mul_i32 s8, s{S_PG}, 448")
    a(f"s_mul_i32 s9, s{S_HP}, 56")
    a("s_add_u32 s8, s8, s9")
    a(f"s_mul_i32 s9, s{S_WA}, 14")
    a("s_add_u32 s8, s8, s9")
    a(f"v_min_u32 v5, 13, v{V_LANE}")
    a("v_add_lshl_u32 v5, v5, s8, 7")
    a(f"buffer_load_dword v{vd}, v5, s[{sr}:{sr + 3}], 0 offen")


def gen_g(a, name):
    a.raw(f".globl {name}\n.p2align 8\n.type {name},@function\n{name}:")
    a.hist = []
    a("s_cmp_ge_u32 s2, 256")
    a("s_cbranch_scc1 F_END")
    stamp(a, 0)
    load_args(a)
    a("s_memrealtime s[6:7]")
    a("v_lshrrev_b32 v5, 6, v0")
    a(f"v_and_b32 v{V_LANE}, 63, v0")
    a("v_readfirstlane_b32 s3, v5")
    a(f"v_and_b32 v{V_N}, 15, v0")
    a(f"v_bfe_u32 v{V_G}, v0, 4, 2")
    a(f"v_lshlrev_b32 v{V_L16}, 4, v{V_LANE}")
    a(f"v_mov_b32 v{V_CNT}, {L_MISC}")
    a(f"v_mov_b32 v{V_ONE}, 1")
    a(f"v_lshl_add_u32 v5, v{V_LANE}, 2, v{V_CNT}")
    a("v_mov_b32 v6, 0")
    a("ds_write_b32 v5, v6")
    a("s_and_b32 s4, s2, 7")
    a("s_lshr_b32 s12, s2, 3")
    a("s_getpc_b64 s[10:11]")
    a("s_lshl_b32 s9, s12, 10")
    a("v_and_b32 v5, 7, v0")
    a("v_lshl_add_u32 v5, v5, 7, s9")
    a("s_cmp_lg_u32 s3, 3")
    a("s_cbranch_scc1 F_NPF")
    a("global_load_dword v8, v5, s[10:11]")
    a.label("F_NPF", flush=False)
    a("s_lshr_b32 s8, s12, 3")
    a(f"s_lshl_b32 s{S_PG}, s4, 2")
    a(f"s_add_u32 s{S_PG}, s{S_PG}, s8")
    a(f"s_and_b32 s{S_HP}, s12, 7")
    a(f"s_and_b32 s{S_WA}, s3, 3")
    a("s_lshl_b32 s8, s8, 1")
    a(f"s_add_u32 s8, s8, s{S_HP}")
    a("s_add_u32 s8, s8, s4")
    a("s_mul_i32 s9, s8, 9363")
    a("s_lshr_b32 s9, s9, 16")
    a("s_mul_i32 s9, s9, 7")
    a(f"s_sub_u32 s{S_ROT}, s8, s9")
    a("s_mul_i32 s9, s12, 98")
    a(f"s_mul_i32 s8, s{S_WA}, 25")
    a("s_add_u32 s9, s9, s8")
    a(f"v_add_u32 v5, s9, v{V_LANE}")
    a("v_lshlrev_b32 v5, 7, v5")
    a(f"v_cmp_gt_u32 vcc, 25, v{V_LANE}")
    a("v_mov_b32 v6, 0x7f000000")
    a(f"v_cndmask_b32 v{V_PF}, v6, v5, vcc")
    a("s_cmp_lt_u32 s3, 4")
    a("s_cbranch_scc1 F_B")
    a_front(a)
    a.label("F_B")
    b_front(a)
    attention(a)
    out_proj(a)
    fallback(a)
    a_main(a)
    a.label("F_END")
    a("s_endpgm")


def a_front(a):
    a.vm = a.lg = 0
    a("s_setprio 3")
    vXd, vWd, vT, vXr, vSt = 12, 16, 17, 22, 20
    XF = lambda i: 48 + 4 * i
    WF = lambda i, nt: 64 + 8 * i + 4 * nt
    ACC = 112
    a(f"s_lshr_b32 s14, s{S_HP}, 1")
    a(f"s_lshl_b32 s8, s{S_PG}, 6")
    a("s_lshl_b32 s9, s14, 4")
    a("s_add_u32 s8, s8, s9")
    xb_dma_voffset(a, vXd, "s8")
    a(f"v_lshrrev_b32 v5, 2, v{V_LANE}")
    a("v_mul_u32_u24 v5, 56, v5")
    a(f"v_and_b32 v6, 2, v{V_G}")
    a(f"v_and_b32 v7, 3, v{V_LANE}")
    a("v_xor_b32 v6, v6, v7")
    a(f"v_lshl_add_u32 v{vWd}, v6, 4, v5")
    a(f"s_lshl_b32 s10, s{S_WA}, 12")
    a(f"s_add_u32 s10, s10, {L_WKV}")
    a(f"s_lshl_b32 s11, s{S_WA}, 13")
    a("s_lshl_b32 s9, s14, 11")
    a("s_add_u32 s11, s11, s9")
    a(f"s_add_u32 s11, s11, {L_XB}")
    a(f"s_add_u32 s15, s{S_ROT}, s{S_WA}")
    a(f"s_lshl_b32 s8, s{S_HP}, 6")
    a(f"s_lshl_b32 s9, s{S_WA}, 4")
    a("s_add_u32 s9, s8, s9")
    a(f"v_add_u32 v5, s9, v{V_N}")
    a("v_min_u32 v5, 447, v5")
    a("v_lshlrev_b32 v5, 1, v5")
    a(f"s_and_b32 s9, s{S_WA}, 1")
    a("s_lshl_b32 s9, s9, 5")
    a("s_add_u32 s9, s8, s9")
    a(f"v_and_b32 v6, 31, v{V_LANE}")
    a("v_add_u32 v6, s9, v6")
    a("v_min_u32 v6, 447, v6")
    a("v_lshlrev_b32 v6, 1, v6")
    a("s_waitcnt lgkmcnt(0)")
    stamp(a, 1)
    a(f"global_load_ushort v100, v5, s[{P_LDT}:{P_LDT + 1}]")
    a(f"global_load_ushort v101, v5, s[{P_LRE}:{P_LRE + 1}]")
    a(f"global_load_ushort v102, v5, s[{P_LIM}:{P_LIM + 1}]")
    a(f"global_load_ushort v{vD3}, v6, s[{P_DSK}:{P_DSK + 1}]")
    srd(a, 52, P_BX, X_BYTES)
    a(f"s_bitcmp1_b32 s{S_HP}, 0")
    a(f"s_cselect_b32 s56, s{P_WV}, s{P_WK}")
    a(f"s_cselect_b32 s57, s{P_WV + 1}, s{P_WK + 1}")
    a(f"s_mov_b32 s58, {WKV_BYTES}")
    a("s_mov_b32 s59, 0x00020000")
    toks = {}
    for i in (1, 0):
        if i == 1:
            a(f"s_cmp_eq_u32 s{S_WA}, 3")
            a("s_cbranch_scc1 F_A3S")
        a(f"s_add_u32 s12, s15, {4 * i}")
        a("s_sub_u32 s13, s12, 7")
        a("s_cselect_b32 s12, s12, s13")
        a(f"s_add_u32 m0, s11, {32768 * i}")
        a("s_mul_i32 s13, s12, 3584")
        a("s_lshl_b32 s12, s12, 7")
        a(f"buffer_load_dwordx4 v{vXd}, s[52:55], s12 offen{NTX} lds")
        a("s_add_u32 m0, m0, 1024")
        a("s_nop 0")
        a(f"buffer_load_dwordx4 v{vXd + 1}, s[52:55], s12 offen{NTX} lds")
        a(f"s_add_u32 m0, s10, {16384 * i}")
        for q in range(4):
            if q:
                a("s_add_u32 m0, m0, 128")
            toks[i] = a.one(f"buffer_load_dwordx4 v{vWd}, s[56:59], s13 offen offset:{896 * q}{NTW} lds")
        if i == 1:
            a.label("F_A3S", flush=False)
    a("s_barrier")
    stamp(a, 2)
    a(f"v_lshrrev_b32 v5, 2, v{V_N}")
    a(f"v_lshl_add_u32 v5, v{V_G}, 3, v5")
    a("v_lshlrev_b32 v5, 6, v5")
    a(f"v_and_b32 v6, 1, v{V_G}")
    a("v_lshl_add_u32 v5, v6, 5, v5")
    a(f"v_and_b32 v6, 3, v{V_N}")
    a("v_lshl_add_u32 v5, v6, 3, v5")
    a(f"v_add_u32 v{vT}, s10, v5")
    a(f"v_xor_b32 v{vT + 1}, 32, v{vT}")
    xfrag16_base(a, vXr, "s11")
    for r in range(8):
        a(f"v_mov_b32 v{ACC + r}, 0")
    a(f"s_lshl_b32 s8, s{S_WA}, 11")
    a(f"s_add_u32 s8, s8, {L_KVP}")
    a(f"v_add_u32 v21, s8, v{V_L16}")
    srd(a, 60, P_WS, 0x40000, KV_OFF)
    srd(a, 64, P_WS, FLG_BYTES, FLG_OFF)
    srd(a, 68, P_DBG, 256)
    a(f"s_lshl_b32 s8, s{S_PG}, 1")
    a("s_lshr_b32 s9, s14, 1")
    a("s_add_u32 s8, s8, s9")
    a("s_lshl_b32 s8, s8, 12")
    a("s_and_b32 s9, s14, 1")
    a("v_mov_b32 v30, 0")

    def reads(i):
        t = None
        for e in range(2):
            a(f"ds_read_b128 {rng(XF(2 * i + e), 4)}, v{vXr + e} offset:{32768 * i}")
            for nt in range(2):
                for u in range(2):
                    r = WF(2 * i + e, nt) + 2 * u
                    t = a.one(f"ds_read_b64_tr_b16 v[{r}:{r + 1}], v{vT + nt} offset:{16384 * i + 2048 * e + u * 256}")
        return t

    a(f"s_cmp_eq_u32 s{S_WA}, 3")
    a("s_cbranch_scc1 F_A3R")
    a.wait_vm(toks[1])
    reads(1)
    a.label("F_A3R", flush=False)
    a.wait_vm(toks[0])
    reads(0)
    arrive(a, C_KVL)
    stamp(a, 3)

    def mfmas(is_v):
        lab = uid("F_MS")
        a(f"s_cmp_eq_u32 s{S_WA}, 3")
        a(f"s_cbranch_scc1 {lab}")
        for i in (3, 2, 1, 0):
            if i == 3:
                a("s_waitcnt lgkmcnt(11)")
            if i == 1:
                a.label(lab, flush=False)
                a("s_waitcnt lgkmcnt(0)")
            for nt in range(2):
                d = ACC + 4 * nt
                w, x = rng(WF(i, nt), 4), rng(XF(i), 4)
                a(f"{MF16} {rng(d, 4)}, {x if is_v else w}, {w if is_v else x}, {rng(d, 4)}")

    a(f"s_bitcmp1_b32 s{S_HP}, 0")
    a("s_cbranch_scc1 F_VM")
    mfmas(False)
    a("s_branch F_KVM")
    a.label("F_VM", flush=False)
    mfmas(True)
    a.label("F_KVM")
    a(f"s_cmp_eq_u32 s{S_WA}, 3")
    a("s_cbranch_scc1 F_KVF")
    a(f"ds_write_b128 v21, {rng(ACC, 4)}")
    a(f"ds_write_b128 v21, {rng(ACC + 4, 4)} offset:1024")
    a("s_waitcnt lgkmcnt(0)")
    arrive(a, C_KVP)
    a("s_branch F_AM")
    a.label("F_KVF")
    a("buffer_load_dword v31, v30, s[68:71], 0 offen sc1")
    a(f"v_add_u32 v21, {L_KVP}, v{V_L16}")
    a(f"v_cmp_eq_u32 s[72:73], 3, v{V_G}")
    a(f"v_cmp_le_u32 s[74:75], 12, v{V_N}")
    wait_cnt(a, C_KVP, 3, sleep=0)
    for q in range(6):
        a(f"ds_read_b128 {rng(48 + 4 * q, 4)}, v21 offset:{1024 * q}")
    a(f"s_lshl_b32 s12, s{S_PG}, 3")
    a(f"s_add_u32 s12, s12, s{S_HP}")
    a("s_lshl_b32 s12, s12, 6")
    a(f"s_bitcmp1_b32 s{S_HP}, 0")
    a("s_cbranch_scc1 F_VE")

    def adds():
        a("s_waitcnt lgkmcnt(0)")
        for q in range(3):
            for r in range(0, 8, 2):
                add2(a, ACC + r, 48 + 8 * q + r)

    a("s_lshl_b32 s9, s9, 8")
    a("s_add_u32 s8, s8, s9")
    a(f"v_lshlrev_b32 v{vSt}, 9, v{V_G}")
    a(f"v_lshl_add_u32 v{vSt}, v{V_N}, 4, v{vSt}")
    a(f"s_mov_b32 s14, {f32(CSCALE)}")
    a("v_mov_b32 v6, 0x3f803f80")
    a("v_mov_b32 v7, 0x00003f80")
    adds()
    for r in range(8):
        a(f"v_mul_f32 v{ACC + r}, s14, v{ACC + r}")
    for r in range(4):
        a(f"v_cvt_pk_bf16_f32 v{8 + r}, v{ACC + 2 * r}, v{ACC + 2 * r + 1}")
    a("v_cndmask_b32 v10, v10, v6, s[72:73]")
    a("v_cndmask_b32 v11, v11, v7, s[72:73]")
    a(f"buffer_store_dwordx4 v[8:11], v{vSt}, s[60:63], s8 offen sc1")
    a("s_branch F_KVPUB")
    a.label("F_VE")
    a("s_lshl_b32 s9, s9, 10")
    a("s_add_u32 s8, s8, s9")
    a(f"v_and_b32 v5, 1, v{V_G}")
    a("v_lshlrev_b32 v5, 9, v5")
    a(f"v_lshl_add_u32 v5, v{V_N}, 4, v5")
    a(f"v_lshrrev_b32 v6, 1, v{V_G}")
    a(f"v_lshl_add_u32 v{vSt}, v6, 3, v5")
    a(f"v_cmp_eq_u32 vcc, 12, v{V_N}")
    a("v_mov_b32 v6, 0x3f803f80")
    a("v_cndmask_b32 v6, 0, v6, vcc")
    adds()
    for r in range(4):
        a(f"v_cvt_pk_bf16_f32 v{8 + r}, v{ACC + 2 * r}, v{ACC + 2 * r + 1}")
    a("v_cndmask_b32 v10, v10, v6, s[74:75]")
    a("v_cndmask_b32 v11, v11, v6, s[74:75]")
    a(f"buffer_store_dwordx2 v[8:9], v{vSt}, s[60:63], s8 offen offset:2048 sc1")
    a(f"buffer_store_dwordx2 v[10:11], v{vSt}, s[60:63], s8 offen offset:2304 sc1")
    a.label("F_KVPUB")
    stamp(a, 4)
    a(f"s_mov_b32 s79, {SPIN}")
    a("s_waitcnt vmcnt(0)")
    a.label("F_NP", flush=False)
    a(f"v_readfirstlane_b32 s{S_NONCE}, v31")
    a(f"s_cmp_lg_u32 s{S_NONCE}, 0")
    a("s_cbranch_scc1 F_NOK")
    a("buffer_load_dword v31, v30, s[68:71], 0 offen sc1")
    a("s_waitcnt vmcnt(0)")
    a("s_sub_u32 s79, s79, 1")
    a("s_cmp_lg_u32 s79, 0")
    a("s_cbranch_scc1 F_NP")
    a.label("F_NOK", flush=False)
    a("s_mov_b64 exec, 1")
    a(f"buffer_store_dword v31, v30, s[64:67], s12 offen offset:{KVF_OFF} sc1")
    a(f"ds_write_b32 v{V_CNT}, v31 offset:{4 * C_NONCE}")
    a("s_mov_b64 exec, -1")
    stamp(a, 2)
    a("s_branch F_AM")


QR = lambda i, h: 16 + 8 * i + 4 * h
O = lambda i: 48 + 16 * i
S = lambda b: 112 + 16 * b
P = 144
KB = lambda c, h: 152 + 16 * c + 4 * h
VB = lambda c, h: 152 + 16 * c + 8 + 4 * h


def kv_loads(a):
    L16 = V_L16

    def ldk(c):
        a(f"buffer_load_dwordx4 {rng(KB(c, 0), 4)}, v{L16}, s[56:59], s15 offen sc1")
        return a.one(f"buffer_load_dwordx4 {rng(KB(c, 1), 4)}, v{L16}, s[56:59], s15 offen offset:1024 sc1")

    def ldv(c):
        a(f"buffer_load_dwordx4 {rng(VB(c, 0), 4)}, v{L16}, s[56:59], s15 offen offset:2048 sc1")
        return a.one(f"buffer_load_dwordx4 {rng(VB(c, 1), 4)}, v{L16}, s[56:59], s15 offen offset:3072 sc1")
    return ldk, ldv


def kv_first(a):
    ldk, ldv = kv_loads(a)
    a("s_lshl_b32 s15, s2, 9")
    a("s_and_b32 s15, s15, 0xf000")
    for c in range(4):
        ldk(c)
        if c < 3:
            ldv(c)
            a("s_add_u32 s15, s15, 4096")
            a("s_and_b32 s15, s15, 0xffff")


def b_front(a):
    a.vm = a.lg = 0
    a("s_setprio 2")
    vWd, vXd, vQ, vT, vXr = 12, 28, 13, 16, 18
    a(f"v_lshrrev_b32 v5, 3, v{V_LANE}")
    a("s_lshl_b32 s9, s3, 3")
    a("v_add_u32 v6, s9, v5")
    a("v_mul_u32_u24 v6, 896, v6")
    a(f"v_bfe_u32 v7, v{V_LANE}, 1, 2")
    a("v_bfe_u32 v5, v5, 1, 1")
    a("v_xor_b32 v7, v7, v5")
    a("s_and_b32 s9, s3, 1")
    a("s_lshl_b32 s9, s9, 1")
    a("v_xor_b32 v7, s9, v7")
    a("v_lshrrev_b32 v5, 1, v7")
    a("v_mul_u32_u24 v5, 56, v5")
    a("v_add_u32 v6, v6, v5")
    a("v_and_b32 v5, 1, v7")
    a("v_lshl_add_u32 v6, v5, 5, v6")
    a(f"v_and_b32 v5, 1, v{V_LANE}")
    a("v_lshl_add_u32 v6, v5, 4, v6")
    a(f"s_mul_i32 s9, s{S_HP}, 112")
    a(f"v_add_u32 v{vWd}, s9, v6")
    a(f"s_lshl_b32 s8, s{S_PG}, 6")
    a("s_lshl_b32 s9, s3, 4")
    a("s_add_u32 s8, s8, s9")
    xb_dma_voffset(a, vXd, "s8")
    a("s_waitcnt lgkmcnt(0)")
    stamp(a, 1)
    a("s_or_b32 s8, s2, s3")
    a("s_cmp_lg_u32 s8, 0")
    a("s_cbranch_scc1 F_NN")
    srd(a, 68, P_DBG, 256)
    a("s_or_b32 s8, s6, 1")
    a("v_mov_b32 v5, s8")
    a("v_mov_b32 v6, 0")
    a("buffer_store_dword v5, v6, s[68:71], 0 offen sc1")
    a.label("F_NN")
    srd(a, 52, P_WQ, W_BYTES)
    srd(a, 56, P_BX, X_BYTES)
    a(f"s_lshl_b32 s12, s{S_ROT}, 7")
    a("s_lshl_b32 s10, s3, 10")
    a("s_lshl_b32 s11, s3, 11")
    a("s_barrier")
    if ENV("QPF", 0):
        a(f"buffer_load_dword v9, v{V_PF}, s[52:55], 0 offen")
    if ENV("KVLW", 0):
        wait_cnt(a, C_KVL, 4)
    toks = {}
    BTHR = ENV("BTHR", 0)

    def bthr():
        if BTHR:
            a(f"s_waitcnt vmcnt({BTHR})")

    def dma_pair(p_):
        a(f"s_add_u32 m0, s11, {L_XB + 8192 * p_}")
        a("s_mul_i32 s13, s12, 448")
        a(f"buffer_load_dwordx4 v{vXd}, s[56:59], s12 offen{NTX} lds")
        a("s_add_u32 m0, m0, 1024")
        a("s_nop 0")
        a(f"buffer_load_dwordx4 v{vXd + 1}, s[56:59], s12 offen{NTX} lds")
        a(f"s_add_u32 m0, s10, {L_WQ + 8192 * p_}")
        if p_ < 6:
            rot_step(a, 12, 128, 896)
        bthr()
        a(f"buffer_load_dwordx4 v{vWd}, s[52:55], s13 offen{NTW} lds")
        a("s_add_u32 m0, m0, 4096")
        a(f"s_add_u32 s13, s13, {32 * 896}")
        toks[2 * p_ + 1] = a.one(f"buffer_load_dwordx4 v{vWd}, s[52:55], s13 offen{NTW} lds")
        bthr()

    NB0 = ENV('NB0', 4)
    for p_ in range(NB0):
        dma_pair(p_)
    stamp(a, 2)
    if PFW1 == 1:
        prefetch_xa(a, 60, 10)
        prefetch_w(a, P_BRE, 60, 11)
    srd(a, 64, P_WS, FLG_BYTES, FLG_OFF)
    a(f"v_cmp_eq_u32 s[72:73], 3, v{V_G}")
    a(f"v_lshrrev_b32 v5, 2, v{V_N}")
    a(f"v_lshl_add_u32 v5, v{V_G}, 3, v5")
    a("v_lshlrev_b32 v5, 7, v5")
    a(f"v_lshrrev_b32 v6, 3, v{V_N}")
    a("v_lshl_add_u32 v5, v6, 5, v5")
    a(f"v_and_b32 v6, 1, v{V_G}")
    a("v_lshl_add_u32 v5, v6, 6, v5")
    a(f"v_and_b32 v6, 3, v{V_N}")
    a("v_lshl_add_u32 v5, v6, 3, v5")
    a("s_and_b32 s9, s3, 1")
    a("s_lshl_b32 s9, s9, 6")
    a(f"v_xor_b32 v{vT}, s9, v5")
    a(f"v_xor_b32 v{vT + 1}, 32, v{vT}")
    a("s_lshr_b32 s8, s3, 1")
    a("s_lshl_b32 s8, s8, 12")
    a(f"s_add_u32 s8, s8, {L_XB}")
    xfrag16_base(a, vXr, "s8")
    a("s_lshl_b32 s8, s3, 11")
    a(f"s_add_u32 s8, s8, {L_QF}")
    a(f"v_lshlrev_b32 v5, 9, v{V_G}")
    a(f"v_lshl_add_u32 v5, v{V_N}, 4, v5")
    a(f"v_add_u32 v{vQ}, s8, v5")
    XF = lambda b, f: 48 + 8 * b + 4 * f
    WF = lambda b, nt: 80 + 8 * b + 4 * nt
    ACC = lambda f, nt: 112 + 8 * f + 4 * nt
    a(f"v_lshlrev_b32 v30, 6, v{V_LANE}")
    a("s_lshl_b32 s8, s3, 12")
    for (k0, k1, cnt) in STAGES:
        a.wait_vm(toks[k1 - 1])
        arrive(a, cnt)
        wait_cnt(a, cnt, 4, sleep=0)
        if k0 == 0:
            stamp(a, 3)
            if ENV('B2POS', 1) < 0:
                for p_ in range(NB0, ENV('NB1', 6)):
                    dma_pair(p_)
        if cnt == C_ST1:
            for p_ in range(max(NB0, ENV('NB1', 6)), 7):
                dma_pair(p_)
        a.lg = 0
        lt = {}

        def rd(s_):
            for f in range(2):
                a(f"ds_read_b128 {rng(XF(s_ % 3, f), 4)}, v{vXr + s_ % 2} offset:{(s_ // 2) * 8192 + f * 2048}")
            t = None
            for nt in range(2):
                for u in range(2):
                    r = WF(s_ % 3, nt) + 2 * u
                    t = a.one(f"ds_read_b64_tr_b16 v[{r}:{r + 1}], v{vT + nt} offset:{s_ * 4096 + u * 512}")
            lt[s_] = t
        rd(k0)
        rd(k0 + 1)
        for s_ in range(k0, k1):
            if s_ + 2 < k1:
                rd(s_ + 2)
            a.wait_lg(lt[s_])
            for f in range(2):
                for nt in range(2):
                    d = ACC(f, nt)
                    c = "0" if s_ == 0 else rng(d, 4)
                    a(f"{MF16} {rng(d, 4)}, {rng(WF(s_ % 3, nt), 4)}, {rng(XF(s_ % 3, f), 4)}, {c}")
            if s_ == ENV("EPOLL", -1):
                a("buffer_load_dword v31, v30, s[64:67], s8 offen sc1")
            if s_ == ENV('B2POS', 1):
                for p_ in range(NB0, ENV('NB1', 6)):
                    dma_pair(p_)
    a("s_lshl_b32 s13, s3, 16")
    a(f"s_add_u32 s56, s{P_WS}, s13")
    a(f"s_addc_u32 s57, s{P_WS + 1}, 0")
    a(f"s_add_u32 s56, s56, {KV_OFF}")
    a("s_addc_u32 s57, s57, 0")
    a("s_mov_b32 s58, 65536")
    a("s_mov_b32 s59, 0x00020000")
    wait_cnt(a, C_NONCE, 0, st=S_NONCE, nz=True)
    if ENV("EPOLL", -1) >= 0:
        a("s_waitcnt vmcnt(0)")
        a(f"v_cmp_ne_u32 vcc, s{S_NONCE}, v31")
        a("s_cbranch_vccz F_KVE")
    a("buffer_load_dword v7, v30, s[64:67], s8 offen sc1")
    a("s_mov_b32 s9, 0")
    if ENV("EPOLL", -1) >= 0:
        a("s_branch F_KVE2")
        a.label("F_KVE", flush=False)
        kv_first(a)
        a("s_mov_b32 s9, 1")
        a.label("F_KVE2", flush=False)
    a("v_mov_b32 v6, v30")
    for f in range(2):
        b = ACC(f, 0)
        pk = 20 + 4 * f
        for r in range(4):
            a(f"v_cvt_pk_bf16_f32 v{pk + r}, v{b + 2 * r}, v{b + 2 * r + 1}")
        a(f"v_cndmask_b32 v{pk + 2}, v{pk + 2}, 0, s[72:73]")
        a(f"v_cndmask_b32 v{pk + 3}, v{pk + 3}, 0, s[72:73]")
        a(f"ds_write_b128 v{vQ}, {rng(pk, 4)} offset:{256 * f}")
    a("s_waitcnt lgkmcnt(0)")
    arrive(a, C_QF)
    stamp(a, 4)


def attention(a):
    L16 = V_L16
    ldk, ldv = kv_loads(a)
    srd(a, 60, P_WS, 0x200000, OF_OFF)
    for r in range(64):
        a(f"v_mov_b32 v{O(0) + r}, 0")
    for r in range(4):
        a(f"v_mov_b32 v{VB(3, 1) + r}, 0")
        a(f"v_mov_b32 v{P + 4 + r}, 0")
    for i in range(4):
        a(f"s_add_u32 s{68 + i}, s3, {i + 1}")
        a(f"s_and_b32 s{68 + i}, s{68 + i}, 3")
    a(f"v_cmp_le_u32 s[74:75], 32, v{V_LANE}")
    if WOB:
        srd(a, 52, P_WO, W_BYTES)
        a(f"v_lshrrev_b32 v5, 3, v{V_LANE}")
        a("s_mul_i32 s14, s3, 112")
        a("v_add_u32 v5, s14, v5")
        a("v_mul_u32_u24 v5, 896, v5")
        a(f"v_and_b32 v8, 1, v{V_G}")
        a("v_lshlrev_b32 v8, 2, v8")
        a(f"v_and_b32 v9, 7, v{V_LANE}")
        a("v_xor_b32 v8, v8, v9")
        a("v_lshl_add_u32 v5, v8, 4, v5")
        a(f"s_lshl_b32 s14, s{S_HP}, 7")
        a("v_add_u32 v216, s14, v5")
    wait_cnt(a, C_QF, 4, sleep=0)
    for i in range(4):
        a(f"s_lshl_b32 s14, s{68 + i}, 11")
        a(f"s_add_u32 s14, s14, {L_QF}")
        a(f"v_add_u32 v13, s14, v{L16}")
        a(f"ds_read_b128 {rng(QR(i, 0), 4)}, v13")
        a(f"ds_read_b128 {rng(QR(i, 1), 4)}, v13 offset:1024")
    a("s_mov_b32 s4, 4")
    a("s_cmp_eq_u32 s9, 1")
    a("s_cbranch_scc1 F_GO")
    a("s_waitcnt vmcnt(0)")
    a(f"v_cmp_ne_u32 vcc, s{S_NONCE}, v7")
    a("s_cbranch_vccz F_KVOK")
    poll_flags(a, 6, 64, "s8", sleep=2)
    a.label("F_KVOK", flush=False)
    kv_first(a)
    a.label("F_GO", flush=False)
    stamp(a, 5)
    a("s_waitcnt lgkmcnt(0)")
    arrive(a, C_WO)
    a.label("F_RESTART", flush=False)
    a.vm = a.lg = 0
    a("s_waitcnt vmcnt(10)")
    a(f"{MF32} {rng(S(0), 16)}, {rng(KB(0, 0), 4)}, {rng(QR(0, 0), 4)}, 0")
    a(f"{MF32} {rng(S(0), 16)}, {rng(KB(0, 1), 4)}, {rng(QR(0, 1), 4)}, {rng(S(0), 16)}")
    a("s_mov_b32 s14, 4")
    if ENV("VMST", 0):
        a("s_mov_b32 s93, 0")
        stamp(a, 2, True)
    a(f"s_setprio {BLO}")
    stamp(a, 6)
    a.fence()
    a.raw(".p2align 6")
    a.label("F_LOOP", flush=False)

    def ex(cur, k0, pk):
        for k in range(k0, k0 + 4):
            a(f"v_exp_f32 v{cur + k}, v{cur + k}")
        a(f"v_cvt_pk_bf16_f32 v{P + pk}, v{cur + k0}, v{cur + k0 + 1}")
        a(f"v_cvt_pk_bf16_f32 v{P + pk + 1}, v{cur + k0 + 2}, v{cur + k0 + 3}")

    def body():
        ld = lambda r, off: f"buffer_load_dwordx4 {rng(r, 4)}, v{L16}, s[56:59], s15 offen offset:{off} sc1"
        for ls in range(16):
            c, i = divmod(ls, 4)
            cur, nxt = S(ls % 2), S((ls + 1) % 2)
            cn, inx = divmod((ls + 1) % 16, 4)
            cp, ip = divmod((ls - 1) % 16, 4)
            X = [None] * 4
            if i == 0:
                X = [f"s_setprio {BHI}", ld(VB(cp, 0), 2048), ld(VB(cp, 1), 3072), f"s_setprio {BLO}"]
            elif i == 1:
                X = ["s_add_u32 s15, s15, 4096", "s_and_b32 s15, s15, 0xffff", None, f"s_setprio {BHI}"]
                if ls == 1:
                    X[2] = "s_cmp_eq_u32 s14, 1"
                    X[3] = "s_cselect_b32 s58, 0, s58"
                if ls == 13:
                    X[2] = f"ds_read_b32 v12, v{V_CNT} offset:{4 * C_WO}"
            elif i == 2:
                X = [ld(KB(c, 0), 0), ld(KB(c, 1), 1024), f"s_setprio {BLO}", "s_waitcnt vmcnt(10)"]
            elif ls == 15:
                X = [None, None, "s_sub_u32 s14, s14, 1", "s_cmp_lg_u32 s14, 0"]
            M = [f"{MF32} {rng(nxt, 16)}, {rng(KB(cn, 0), 4)}, {rng(QR(inx, 0), 4)}, 0",
                 f"{MF32} {rng(nxt, 16)}, {rng(KB(cn, 1), 4)}, {rng(QR(inx, 1), 4)}, {rng(nxt, 16)}",
                 f"{MF32} {rng(O(ip), 16)}, {rng(VB(cp, 1), 4)}, {rng(P + 4, 4)}, {rng(O(ip), 16)}",
                 f"{MF32} {rng(O(i), 16)}, {rng(VB(c, 0), 4)}, {rng(P, 4)}, {rng(O(i), 16)}"]
            for k in range(4):
                a(M[k])
                if X[k] and (BPRI or "setprio" not in X[k]):
                    a(X[k])
                ex(cur, 4 * k, 2 * k)

    n0 = a.nops
    body()
    assert a.nops == n0, "unexpected nops in attention loop"
    save = (list(a.out), list(a.hist), a.vm, a.lg)
    body()
    assert a.nops == n0, "unexpected nops across the attention back edge"
    a.out, a.hist, a.vm, a.lg = save
    a("s_cbranch_scc1 F_LOOP")
    a(f"{MF32} {rng(O(3), 16)}, {rng(VB(3, 1), 4)}, {rng(P + 4, 4)}, {rng(O(3), 16)}")
    a("s_setprio 3")
    if ENV("VMST", 0):
        stamp(a, 3, True)
    stamp(a, 7)
    a("s_waitcnt lgkmcnt(0)")
    a("v_readfirstlane_b32 s78, v12")
    a("s_cmp_ge_u32 s78, 8")
    a("s_cbranch_scc1 F_WOK")
    wait_cnt(a, C_WO, 8)
    a.label("F_WOK", flush=False)
    for i in range(3):
        a(f"s_mul_i32 s14, s{68 + i}, 12288")
        a(f"s_add_u32 s14, s14, {L_BRED}")
        a(f"v_add_u32 v13, s14, v{L16}")
        for qd in range(4):
            a(f"ds_write_b128 v13, {rng(O(i) + 4 * qd, 4)} offset:{i * 4096 + qd * 1024}")
    a("s_mul_i32 s14, s3, 12288")
    a(f"s_add_u32 s14, s14, {L_BRED}")
    a(f"v_add_u32 v13, s14, v{L16}")
    if WOB == 1:
        a("s_mul_i32 s14, s3, 14336")
        a(f"s_add_u32 m0, s14, {L_WO}")
        a("s_mov_b32 s12, 0")
        for i in range(15):
            a(f"buffer_load_dwordx4 v216, s[52:55], s12 offen lds")
            if i < 14:
                a("s_add_u32 m0, m0, 1024")
                a(f"s_add_u32 s12, s12, {8 * 896}")
    a(f"s_lshl_b32 s14, s{S_PG}, 1")
    a("s_lshr_b32 s12, s3, 1")
    a("s_add_u32 s14, s14, s12")
    a("s_lshl_b32 s14, s14, 4")
    a(f"s_lshl_b32 s12, s{S_HP}, 1")
    a("s_add_u32 s14, s14, s12")
    a("s_and_b32 s12, s3, 1")
    a("s_add_u32 s14, s14, s12")
    a("s_lshl_b32 s12, s14, 6")
    a(f"s_add_u32 s12, s12, {OFL_OFF}")
    a("s_lshl_b32 s14, s14, 11")
    a(f"v_min3_f32 v8, v{O(0) + 12}, v{O(1) + 12}, v{O(2) + 12}")
    a(f"v_max3_f32 v9, v{O(0) + 12}, v{O(1) + 12}, v{O(2) + 12}")
    a(f"v_min_f32 v8, v8, v{O(3) + 12}")
    a(f"v_max_f32 v9, v9, v{O(3) + 12}")
    a("v_cmp_nle_f32 vcc, 0x1f800000, v8")
    a("s_and_b64 s[8:9], vcc, s[74:75]")
    a("v_cmp_nge_f32 vcc, 0x5f800000, v9")
    a("s_and_b64 vcc, vcc, s[74:75]")
    a("s_or_b64 s[8:9], s[8:9], vcc")
    a("s_cselect_b32 s8, 0x10001, 1")
    a("v_mov_b32 v8, s8")
    a("s_waitcnt lgkmcnt(0)")
    a("s_mov_b64 exec, 1")
    a(f"ds_add_u32 v{V_CNT}, v8 offset:{4 * C_RED}")
    a("s_mov_b64 exec, -1")
    a(f"s_mov_b32 s79, {SPIN}")
    a.label("F_RW", flush=False)
    a(f"ds_read_b32 v5, v{V_CNT} offset:{4 * C_RED}")
    a("s_waitcnt lgkmcnt(0)")
    a("v_readfirstlane_b32 s78, v5")
    a("s_and_b32 s8, s78, 0xffff")
    a("s_cmp_ge_u32 s8, s4")
    a("s_cbranch_scc1 F_RD")
    a("s_sub_u32 s79, s79, 1")
    a("s_cmp_lg_u32 s79, 0")
    a("s_cbranch_scc1 F_RW")
    a.label("F_RD", flush=False)
    a("s_cmp_eq_u32 s78, 4")
    a("s_cbranch_scc0 F_FBQ")
    a.label("F_RGO", flush=False)
    a.lg = 0
    toks = []
    for qd in (3, 0, 1, 2):
        for i in range(3):
            t = a.one(f"ds_read_b128 {rng(O(i) + 4 * qd, 4)}, v13 offset:{i * 4096 + qd * 1024}")
        toks.append((qd, t))
    F = O(3)
    for n, (qd, t) in enumerate(toks):
        a.wait_lg(t)
        for i in range(3):
            for r in range(0, 4, 2):
                x, y = F + 4 * qd + r, O(i) + 4 * qd + r
                if ENV("BPK", 1):
                    a(f"v_pk_add_f32 {pr(x)}, {pr(x)}, {pr(y)}")
                else:
                    add2(a, x, y)
        if n == 0:
            a(f"v_mov_b32 v12, v{F + 12}")
            a(f"v_mov_b32 v10, v{F + 12}")
            a("v_permlane32_swap_b32 v12, v10")
            a("v_rcp_f32 v10, v10")
    if WOB:
        a("s_waitcnt vmcnt(0)")
    if ENV("BPK", 1):
        for r in range(0, 16, 2):
            a(f"v_pk_mul_f32 {pr(F + r)}, {pr(F + r)}, v[10:11] op_sel_hi:[1,0]")
    else:
        for r in range(16):
            a(f"v_mul_f32 v{F + r}, v{F + r}, v10")
    for r in range(8):
        a(f"v_cvt_pk_bf16_f32 v{P + r}, v{F + 2 * r}, v{F + 2 * r + 1}")
    a(f"v_cndmask_b32 v{P + 6}, v{P + 6}, 0, s[74:75]")
    a(f"v_cndmask_b32 v{P + 7}, v{P + 7}, 0, s[74:75]")
    a(f"buffer_store_dwordx4 {rng(P, 4)}, v{L16}, s[60:63], s14 offen sc1")
    a(f"buffer_store_dwordx4 {rng(P + 4, 4)}, v{L16}, s[60:63], s14 offen offset:1024 sc1")
    arrive(a, C_RED2)
    stamp(a, 8)


def out_proj(a):
    L16 = V_L16
    vW, vR, vTk, vTs, vO = 16, 17, 18, 19, 20
    a(f"v_mov_b32 v8, s{S_NONCE}")
    a("v_mov_b32 v9, 0")
    a("s_and_b32 s9, s3, 1")
    a("s_lshr_b32 s10, s3, 1")
    a(f"v_lshrrev_b32 v5, 1, v{V_G}")
    a(f"v_lshrrev_b32 v7, 2, v{V_N}")
    a("v_lshl_add_u32 v5, v5, 2, v7")
    a("v_lshlrev_b32 v5, 7, v5")
    a(f"v_lshrrev_b32 v7, 3, v{V_N}")
    a("v_lshl_add_u32 v5, v7, 6, v5")
    a(f"v_and_b32 v7, 1, v{V_G}")
    a("v_lshl_add_u32 v5, v7, 5, v5")
    a(f"v_and_b32 v7, 3, v{V_N}")
    a("v_lshl_add_u32 v5, v7, 3, v5")
    a("s_lshl_b32 s13, s10, 6")
    a("v_xor_b32 v5, s13, v5")
    a("s_mul_i32 s13, s10, 28672")
    a(f"s_add_u32 s13, s13, {L_WO}")
    a(f"v_add_u32 v{vTk}, s13, v5")
    a(f"v_xor_b32 v{vTs}, 64, v{vTk}")
    WFR = lambda ks, q: 88 + 8 * ks + 4 * q
    order = [ks for ks in range(16) if ks != 7] + [7]

    def rdw(ks):
        hl, half = divmod(ks, 2)
        for q in range(2):
            for u in range(2):
                r = WFR(ks, q) + 2 * u
                a(f"ds_read_b64_tr_b16 v[{r}:{r + 1}], v{vTs if q else vTk} offset:{(28 * hl + 16 * half + 8 * u) * 128}")

    if WOB:
        wait_cnt(a, C_RED2, 4, sleep=0)
    for ks in order[:6]:
        rdw(ks)
    a("s_waitcnt vmcnt(0)")
    a("s_mov_b64 exec, 1")
    a("buffer_store_dword v8, v9, s[64:67], s12 offen sc1")
    a("s_mov_b64 exec, -1")
    a(f"s_cmp_eq_u32 s{S_HP}, 7")
    a("s_cbranch_scc1 F_BEND")
    for ks in order[6:]:
        rdw(ks)
    a(f"v_and_b32 v5, 7, v{V_LANE}")
    a("v_lshlrev_b32 v21, 6, v5")
    a(f"s_lshl_b32 s14, s{S_PG}, 1")
    a("s_add_u32 s14, s14, s9")
    a(f"s_mul_i32 s8, s14, {32 * 3584}")
    a("s_lshl_b32 s14, s14, 4")
    a("s_lshl_b32 s12, s10, 3")
    a("s_add_u32 s14, s14, s12")
    a("s_lshl_b32 s12, s14, 6")
    a(f"s_add_u32 s12, s12, {OFL_OFF}")
    a("s_lshl_b32 s14, s14, 11")
    srd(a, 52, P_OUT, OUT_BYTES)
    a(f"v_lshrrev_b32 v5, 5, v{V_LANE}")
    a(f"v_mul_u32_u24 v{vO}, {4 * 3584}, v5")
    a(f"v_and_b32 v5, 31, v{V_LANE}")
    a(f"v_lshl_add_u32 v{vO}, v5, 2, v{vO}")
    a(f"s_lshl_b32 s13, s{S_HP}, 8")
    a("s_add_u32 s8, s8, s13")
    a("s_lshl_b32 s13, s10, 7")
    a("s_add_u32 s8, s8, s13")
    a("s_add_u32 s13, s8, 1792")
    a("s_lshl_b32 s8, s3, 12")
    a(f"s_add_u32 s8, s8, {L_PX}")
    a(f"v_add_u32 v{vW}, s8, v{L16}")
    a("s_xor_b32 s8, s3, 2")
    a("s_lshl_b32 s8, s8, 12")
    a(f"s_add_u32 s8, s8, {L_PX}")
    a(f"v_add_u32 v{vR}, s8, v{L16}")
    a("s_lshl_b32 s8, s9, 2")
    a(f"v_add_u32 v22, s8, v{V_CNT}")
    a(f"s_mul_i32 s8, s{S_HP}, 19")
    a(f"v_min_u32 v23, 18, v{V_LANE}")
    a("v_add_u32 v23, s8, v23")
    a("v_min_u32 v23, 127, v23")
    a("v_lshlrev_b32 v23, 7, v23")
    if not WOB:
        wait_cnt(a, C_RED2, 4)
    a("s_waitcnt lgkmcnt(0)")
    poll_flags(a, 21, 64, "s12", sleep=1)
    stamp(a, 9)
    a.vm = 0
    OFR = lambda ks: 24 + 4 * ks
    if ENV('OPF', 0):
        a("buffer_load_dword v6, v23, s[60:63], s14 offen sc1")
    toks = []
    for hl in range(8):
        a(f"buffer_load_dwordx4 {rng(OFR(2 * hl), 4)}, v{L16}, s[60:63], s14 offen offset:{(hl % 2) * 2048} sc1")
        toks.append(a.one(f"buffer_load_dwordx4 {rng(OFR(2 * hl + 1), 4)}, v{L16}, s[60:63], s14 offen offset:{(hl % 2) * 2048 + 1024} sc1"))
        if hl % 2 == 1 and hl < 7:
            a("s_add_u32 s14, s14, 4096")
    acc = lambda q: 216 + 16 * q
    for ks in range(16):
        if ks % 2 == 0:
            a.wait_vm(toks[ks // 2])
        for q in (1, 0):
            d = acc(q)
            c = "0" if ks == 0 else rng(d, 16)
            a(f"{MF32} {rng(d, 16)}, {rng(OFR(ks), 4)}, {rng(WFR(ks, q), 4)}, {c}")
    stamp(a, 10)
    for qd in range(4):
        a(f"ds_write_b128 v{vW}, {rng(acc(1) + 4 * qd, 4)} offset:{qd * 1024}")
    a("s_waitcnt lgkmcnt(0)")
    arrive(a, C_PX0, vbase=22)
    wait_cnt(a, C_PX0, 2, vbase=22, sleep=0)
    a.lg = 0
    toks = []
    for qd in range(4):
        toks.append(a.one(f"ds_read_b128 {rng(24 + 4 * qd, 4)}, v{vR} offset:{qd * 1024}"))
    for qd in range(4):
        a.wait_lg(toks[qd])
        b = acc(0) + 4 * qd
        for r in range(0, 4, 2):
            add2(a, b + r, 24 + 4 * qd + r)
        a(f"buffer_store_dword v{b}, v{vO}, s[52:55], s13 offen{OSC1}")
        a(f"buffer_store_dword v{b + 1}, v{vO}, s[52:55], s13 offen offset:3584{OSC1}")
        a(f"s_add_u32 s13, s13, {2 * 3584}")
        a(f"buffer_store_dword v{b + 2}, v{vO}, s[52:55], s13 offen{OSC1}")
        a(f"buffer_store_dword v{b + 3}, v{vO}, s[52:55], s13 offen offset:3584{OSC1}")
        if qd < 3:
            a(f"s_add_u32 s13, s13, {6 * 3584}")
    stamp(a, 11)
    a.label("F_BEND")
    stamp_flush(a, 0, 12)
    a("s_endpgm")


def fallback(a):
    L16 = V_L16
    MX = 220
    a.label("F_FBQ")
    a("s_cmp_lg_u32 s4, 4")
    a("s_cbranch_scc1 F_RGO")
    a("s_waitcnt vmcnt(0)")
    a("s_mov_b32 s58, 65536")
    for i in range(4):
        a(f"v_mov_b32 v{MX + i}, 0xff800000")
    a("s_mov_b32 s15, 0")
    a.label("F_FBL")
    a(f"buffer_load_dwordx4 {rng(KB(0, 0), 4)}, v{L16}, s[56:59], s15 offen sc1")
    a(f"buffer_load_dwordx4 {rng(KB(0, 1), 4)}, v{L16}, s[56:59], s15 offen offset:1024 sc1")
    a("s_waitcnt vmcnt(0)")
    for i in range(4):
        a(f"{MF32} {rng(S(0), 16)}, {rng(KB(0, 0), 4)}, {rng(QR(i, 0), 4)}, 0")
        a(f"{MF32} {rng(S(0), 16)}, {rng(KB(0, 1), 4)}, {rng(QR(i, 1), 4)}, {rng(S(0), 16)}")
        for r in range(0, 16, 2):
            a(f"v_max3_f32 v{MX + i}, v{MX + i}, v{S(0) + r}, v{S(0) + r + 1}")
    a("s_add_u32 s15, s15, 4096")
    a("s_cmp_lt_u32 s15, 65536")
    a.fence()
    a("s_cbranch_scc1 F_FBL")
    a(f"v_lshlrev_b32 v6, 2, v{V_LANE}")
    for i in range(4):
        a(f"v_mov_b32 v5, v{MX + i}")
        a(f"v_permlane32_swap_b32 v{MX + i}, v5")
        a(f"v_max_f32 v{MX + i}, v{MX + i}, v5")
        a(f"s_lshl_b32 s8, s{68 + i}, 10")
        a(f"s_add_u32 s8, s8, {L_BRED}")
        a(f"v_add_u32 v{MX + 4 + i}, s8, v6")
        a("s_lshl_b32 s9, s3, 8")
        a(f"v_add_u32 v7, s9, v{MX + 4 + i}")
        a(f"ds_write_b32 v7, v{MX + i}")
    a("s_waitcnt lgkmcnt(0)")
    arrive(a, C_FB)
    wait_cnt(a, C_FB, 4)
    for i in range(4):
        for w in range(4):
            a(f"ds_read_b32 v{S(0) + 4 * i + w}, v{MX + 4 + i} offset:{256 * w}")
    a("s_waitcnt lgkmcnt(0)")
    arrive(a, C_FB)
    for i in range(4):
        b = S(0) + 4 * i
        a(f"v_max3_f32 v5, v{b}, v{b + 1}, v{b + 2}")
        a(f"v_max_f32 v5, v5, v{b + 3}")
        a("v_sub_f32 v5, 0, v5")
        a("v_cvt_pk_bf16_f32 v6, v5, v5")
        a("v_and_b32 v7, 0xffff0000, v6")
        a("v_sub_f32 v5, v5, v7")
        a("v_cvt_pk_bf16_f32 v8, v5, v5")
        a("v_and_b32 v7, 0xffff0000, v8")
        a("v_sub_f32 v5, v5, v7")
        a("v_cvt_pk_bf16_f32 v9, v5, 0")
        a("v_and_b32 v6, 0xffff, v6")
        a("v_or_b32 v6, v6, v7")
        a(f"v_cndmask_b32 v{QR(i, 1) + 2}, v{QR(i, 1) + 2}, v6, s[74:75]")
        a(f"v_cndmask_b32 v{QR(i, 1) + 3}, v{QR(i, 1) + 3}, v9, s[74:75]")
    for r in range(64):
        a(f"v_mov_b32 v{O(0) + r}, 0")
    for r in range(4):
        a(f"v_mov_b32 v{VB(3, 1) + r}, 0")
        a(f"v_mov_b32 v{P + 4 + r}, 0")
    wait_cnt(a, C_FB, 8)
    a("s_mov_b32 s4, 8")
    kv_first(a)
    a.fence()
    a("s_branch F_RESTART")


_thr = [THR]


def add2(a, x, y):
    a(f"v_add_f32 v{x}, v{x}, v{y}")
    a(f"v_add_f32 v{x + 1}, v{x + 1}, v{y + 1}")


def thr(a):
    if _thr[0]:
        a(f"s_waitcnt vmcnt({_thr[0]})")


def pr(r):
    return f"v[{r}:{r + 1}]"


def pcmad(a, d, m, x, b, t):
    a(f"v_pk_fma_f32 {pr(t)}, {pr(m)}, {pr(x)}, {pr(b)} op_sel:[1,1,0] op_sel_hi:[1,0,1] neg_lo:[1,0,0]")
    a(f"v_pk_fma_f32 {pr(d)}, {pr(m)}, {pr(x)}, {pr(t)} op_sel_hi:[0,1,1]")


def a_main(a):
    a.label("F_AM")
    a.vm = a.lg = 0
    a("s_setprio 0")
    a(f"s_cmp_eq_u32 s{S_HP}, 7")
    a("s_cbranch_scc1 F_A7")
    a_setup(a)
    wait_cnt(a, C_NONCE, 0, st=S_NONCE, nz=True, sleep=2)
    a(f"s_setprio {AMEM}")
    stamp(a, 5)
    if PFW1 == 0:
        prefetch_xa(a, 68, 126)
        prefetch_w(a, P_BRE, 68, 127)
    if PFW1 < 2:
        prefetch_w(a, P_BIM, 68, 126)
    if ENV("NOA", 0):
        wait_cnt(a, C_WO, 4)
        srd(a, 52, P_WO, W_BYTES)
        a(f"s_mul_i32 s10, s{S_WA}, 14336")
        a(f"s_add_u32 s10, s10, {L_WO}")
        for i in range(15):
            a(f"s_add_u32 m0, s10, {1024 * i}")
            a(f"s_mov_b32 s12, {8 * 896 * i}")
            thr(a)
            a(f"buffer_load_dwordx4 v{vWo}, s[52:55], s12 offen lds")
        a("s_waitcnt vmcnt(0)")
        arrive(a, C_WO)
        stamp_flush(a, 0, 12)
        a("s_endpgm")
    a1(a)
    a3(a)
    stamp_flush(a, 0, 12)
    a("s_endpgm")
    a.label("F_A7")
    wait_cnt(a, C_NONCE, 0, st=S_NONCE, nz=True, sleep=2)
    a(f"s_setprio {AMEM}")
    if PFW1 == 0:
        prefetch_xa(a, 68, 126)
        prefetch_w(a, P_BRE, 68, 127)
    if PFW1 < 2:
        prefetch_w(a, P_BIM, 68, 126)
    wait_cnt(a, C_WO, 4, sleep=4)
    arrive(a, C_WO)
    if PF7:
        a(f"s_and_b32 s8, s{S_PG}, 3")
        a("s_lshl_b32 s8, s8, 2")
        a(f"s_add_u32 s8, s8, s{S_WA}")
        a("s_mul_i32 s8, s8, 196")
        a(f"v_min_u32 v5, 48, v{V_LANE}")
        a("v_add_lshl_u32 v6, v5, s8, 7")
        srd(a, 52, P_CRE, W_BYTES)
        srd(a, 56, P_CIM, W_BYTES)
        srd(a, 60, P_WO, W_BYTES)
        for sr, q in [(x, q) for q in range(4) for x in (52, 56)] + [(60, q) for q in range(4)]:
            a(f"s_mov_b32 s9, {49 * 128 * q}")
            a(f"buffer_load_dword v126, v6, s[{sr}:{sr + 3}], s9 offen")
            a("s_waitcnt vmcnt(0)")
    else:
        for p in (P_CRE, P_CIM, P_WO):
            prefetch_w(a, p, 68, 126)
            a("s_waitcnt vmcnt(0)")
    stamp_flush(a, 0, 12)
    a("s_endpgm")


def a_setup(a):
    a(f"s_lshl_b32 s8, s{S_HP}, 6")
    a(f"s_lshl_b32 s9, s{S_WA}, 4")
    a("s_add_u32 s9, s8, s9")
    a(f"v_add_u32 v13, s9, v{V_N}")
    LD, LR, LI, A2, TH, T0, T1 = 100, 101, 102, 103, 104, 6, 7
    a(f"v_lshlrev_b32 v{V_P16}, 4, v13")
    a(f"s_and_b32 s14, s{S_WA}, 1")
    a(f"s_lshr_b32 s15, s{S_WA}, 1")
    xb_dma_voffset(a, vBd, "s9")
    xb_dma_voffset(a, vCd, "s8")
    a(f"v_and_b32 v7, 32, v{V_LANE}")
    a(f"v_bfe_u32 v6, v{V_LANE}, 3, 2")
    a(f"s_lshl_b32 s12, s{S_PG}, 6")
    a(f"s_lshl_b32 s9, s{S_WA}, 3")
    a("s_add_u32 s9, s12, s9")
    a("v_add3_u32 v7, v7, v6, s9")
    blk_dma_voffset(a, vXd, 7, rows2=4)
    a(f"v_and_b32 v5, 31, v{V_LANE}")
    a("v_bfe_u32 v6, v5, 1, 3")
    a(f"v_lshrrev_b32 v7, 5, v{V_LANE}")
    a("v_xor_b32 v6, v6, v7")
    a("v_lshlrev_b32 v6, 4, v6")
    a("v_lshl_add_u32 v5, v5, 7, v6")
    a(f"v_add_u32 v{vXr}, {L_XB}, v5")
    for sg in range(1, 4):
        a(f"v_xor_b32 v{vXr + sg}, {32 * sg}, v{vXr}")
    a(f"s_lshl_b32 s11, s{S_WA}, 12")
    a(f"s_lshl_b32 s10, s{S_WA}, 11")
    a(f"s_add_u32 s10, s10, {L_XB}")
    a(f"v_lshrrev_b32 v5, 3, v{V_LANE}")
    a(f"s_mul_i32 s9, s{S_WA}, 112")
    a("v_add_u32 v5, s9, v5")
    a("v_mul_u32_u24 v5, 896, v5")
    a(f"v_and_b32 v7, 1, v{V_G}")
    a("v_lshlrev_b32 v7, 2, v7")
    a(f"v_and_b32 v6, 7, v{V_LANE}")
    a("v_xor_b32 v7, v7, v6")
    a("v_lshl_add_u32 v5, v7, 4, v5")
    a(f"s_lshl_b32 s9, s{S_HP}, 7")
    a(f"v_add_u32 v{vWo}, s9, v5")
    a(f"s_mul_i32 s9, s{S_WA}, 5120")
    a(f"s_add_u32 s9, s9, {L_HS}")
    a(f"v_mul_u32_u24 v5, 144, v{V_N}")
    a(f"v_lshl_add_u32 v5, v{V_G}, 5, v5")
    a(f"v_add_u32 v{vTw}, s9, v5")
    a(f"v_lshrrev_b32 v5, 1, v{V_G}")
    a(f"v_lshrrev_b32 v6, 2, v{V_N}")
    a("v_lshl_add_u32 v5, v5, 3, v6")
    a("v_mul_u32_u24 v5, 144, v5")
    a(f"v_and_b32 v6, 1, v{V_N}")
    a("v_lshl_add_u32 v5, v6, 6, v5")
    a(f"v_and_b32 v6, 1, v{V_G}")
    a("v_lshl_add_u32 v5, v6, 4, v5")
    a(f"v_bfe_u32 v6, v{V_N}, 1, 1")
    a("v_lshl_add_u32 v5, v6, 3, v5")
    a(f"v_add_u32 v{vTr}, s9, v5")
    a(f"v_min_u32 v5, 13, v{V_LANE}")
    a(f"v_lshlrev_b32 v{vF3}, 6, v5")
    a("s_lshl_b32 s9, s15, 10")
    a(f"v_add_u32 v{vH0}, s9, v{V_L16}")
    a(f"v_xor_b32 v{vH1}, 1024, v{vH0}")
    a(f"v_and_b32 v5, 32, v{V_LANE}")
    a("s_lshl_b32 s9, s15, 4")
    a("s_add_u32 s9, s12, s9")
    a("v_add_u32 v5, s9, v5")
    a(f"v_and_b32 v6, 31, v{V_LANE}")
    a("s_lshl_b32 s9, s14, 5")
    a("s_add_u32 s9, s8, s9")
    a("v_add_u32 v6, s9, v6")
    a(f"v_mul_u32_u24 v{vO3}, 3584, v5")
    a(f"v_lshl_add_u32 v{vO3}, v6, 2, v{vO3}")
    a(f"s_add_u32 s9, s{S_HP}, 7")
    a(f"s_sub_u32 s9, s9, s{S_ROT}")
    a("s_sub_u32 s13, s9, 7")
    a("s_cselect_b32 s9, s9, s13")
    a("s_lshl_b32 s9, s9, 13")
    a("s_lshl_b32 s13, s15, 12")
    a("s_add_u32 s9, s9, s13")
    a(f"s_add_u32 s9, s9, {L_XB}")
    a(f"v_bfe_u32 v5, v{V_LANE}, 3, 2")
    a("s_lshl_b32 s13, s14, 2")
    a("v_or_b32 v5, s13, v5")
    a(f"v_lshrrev_b32 v6, 5, v{V_LANE}")
    a("v_lshlrev_b32 v7, 1, v6")
    a("v_xor_b32 v5, v5, v7")
    a("v_lshlrev_b32 v5, 4, v5")
    a("v_lshl_add_u32 v5, v6, 9, v5")
    a(f"v_and_b32 v6, 7, v{V_LANE}")
    a("v_lshl_add_u32 v5, v6, 1, v5")
    a(f"v_add_u32 v{vX3}, s9, v5")
    a(f"v_add_u32 v5, 1, v{V_G}")
    a(f"v_mul_u32_u24 v5, {8 * 7168}, v5")
    a(f"v_sub_u32 v5, v{V_P16}, v5")
    a(f"s_mul_i32 s9, s{S_PG}, 7168")
    a(f"v_add_u32 v{vEA}, s9, v5")
    for i in range(1, 8):
        a(f"v_add_u32 v{vEA + i}, 7168, v{vEA + i - 1}")
    for i in range(8):
        a(f"v_cmp_le_i32 s[{EMASK[i]}:{EMASK[i] + 1}], 0, v{vEA + i}")
    a(f"v_lshlrev_b32 v{vD3}, 16, v{vD3}")
    lam_base(a, LD, LR, LI, A2, TH, T0)
    lam_pow(a, A2, TH, 1, M1, M1 + 1, T0)
    lam_pow(a, A2, TH, 16, M16, M16 + 1, T0)
    lam_pow(a, A2, TH, 64, M64, M64 + 1, T0)
    a(f"v_lshlrev_b32 v{T1}, 9, v{V_G}")
    a(f"v_cvt_f32_u32 v{T1}, v{T1}")
    lam_pow(a, A2, TH, f"v{T1}", MQ, MQ + 1, T0)
    a(f"v_add_f32 v{T0}, -1.0, v{M1}")
    a(f"v_mul_f32 v{T1}, v{LR}, v{LR}")
    a(f"v_fma_f32 v{T1}, v{LI}, v{LI}, v{T1}")
    a(f"v_rcp_f32 v{T1}, v{T1}")
    a(f"v_mul_f32 v{K1}, v{T0}, v{LR}")
    a(f"v_fma_f32 v{K1}, -v{M1 + 1}, v{LI}, v{K1}")
    a(f"v_mul_f32 v{K1 + 1}, v{T0}, v{LI}")
    a(f"v_fma_f32 v{K1 + 1}, v{M1 + 1}, v{LR}, v{K1 + 1}")
    a(f"v_add_f32 v{T1}, v{T1}, v{T1}")
    a(f"v_mul_f32 v{K1}, v{K1}, v{T1}")
    a(f"v_mul_f32 v{K1 + 1}, v{K1 + 1}, v{T1}")
    a(f"v_mov_b32 v{K2}, v{K1 + 1}")
    a(f"v_sub_f32 v{K2 + 1}, 0, v{K1}")
    a(f"s_sub_u32 s9, s11, {L_XB}")
    for sg in range(4):
        a(f"v_add_u32 v{vBr + sg}, s9, v{vXr + sg}")
        a(f"v_add_u32 v{VBRH[sg]}, 0x10000, v{vBr + sg}")
    a("s_lshl_b32 s9, s14, 6")
    a(f"v_xor_b32 v{vCs}, s9, v{vCd}")
    a(f"v_xor_b32 v{vCs + 1}, s9, v{vCd + 1}")
    srd(a, 52, P_AX, X_BYTES)
    srd(a, 56, P_BRE, W_BYTES)
    srd(a, 60, P_BIM, W_BYTES)


CSLOT = [(1, 2), (3, 0), (1, 2), (3, 0)]
XSK = [116, 117, 118, 119, 245, 246, 247, 31]


def a1(a):
    D0, D1 = 40, 56
    FX = lambda b, tau, sg: 72 + 24 * b + 8 * sg + 4 * tau
    FB = lambda b, sg: 72 + 24 * b + 16 + 4 * sg
    tokx, tokb, tokc = {}, {}, {}
    a(f"s_lshl_b32 s12, s{S_ROT}, 7")
    a("s_mov_b32 s13, s12")
    a("s_mul_i32 s74, s14, 28672")
    a("s_sub_u32 s75, 28672, s74")
    a("s_lshl_b32 s9, s14, 9")
    a("s_add_u32 s72, s74, s9")
    a("s_add_u32 s73, s75, s9")

    def px(p_):
        def f(e):
            a(f"s_add_u32 m0, s10, {8192 * p_ + 1024 * e}")
            thr(a)
            tokx[p_] = a.one(f"buffer_load_dwordx4 v{vXd + e}, s[52:55], s12 offen{NTX} lds")
            if e:
                rot_step(a, 12, 128, 896)
        return [lambda e=e: f(e) for e in range(2)]

    def pb(p_):
        def f(q):
            a(f"s_add_u32 m0, s11, {16384 * UNIT[p_] + 1024 * q}")
            thr(a)
            tokb[p_] = a.one(f"buffer_load_dwordx4 v{vBd + q % 2}, s[{56 + 4 * (q // 2)}:{59 + 4 * (q // 2)}], s13 offen{NTW} lds")
            if q == 3:
                rot_step(a, 13, 128, 896)
        return [lambda q=q: f(q) for q in range(4)]

    def pc(l, bs=(0, 1)):
        def f(b, q):
            a(f"s_add_u32 m0, s11, {CSLOT[l][b] * 16384 + q * 1024}")
            a(f"s_add_u32 s12, s{(72 if l < 3 else 74) + b}, {128 * l + (q // 2) * 16 * 896}")
            thr(a)
            tokc[l] = a.one(f"buffer_load_dwordx4 v{(vCd if l < 3 else vCs) + q % 2}, s[56:59], s12 offen lds")
        return [lambda b=b, q=q: f(b, q) for b in bs for q in range(4)]

    def run(L):
        for f in L:
            f()

    dma_c = lambda l: run(pc(l))

    def rd_c(l):
        for sg in range(4 if l < 3 else 2):
            for b in range(2):
                a(f"ds_read_b128 {rng(CF(4 * l + sg, b), 4)}, v{vBr + sg} offset:{CSLOT[l][b] * 16384}")

    wait_cnt(a, C_ST2, 4)
    stamp(a, 6)
    _thr[0] = ENV('THR1', 3)
    run(px(0) + pb(0) + px(1) + pb(1))
    if ENV("AHOLD", 0):
        wait_cnt(a, C_WO, 4, sleep=2)
    else:
        wait_cnt(a, C_QF, 4)
    _thr[0] = THR
    pf = lambda p, r: [] if PF7 else [lambda: prefetch_w(a, p, 68, r)]
    setc = [lambda: (a(f"s_cmp_lt_u32 s{S_WA}, 2"), a(f"s_cselect_b32 s56, s{P_CRE}, s{P_CIM}"),
                     a(f"s_cselect_b32 s57, s{P_CRE + 1}, s{P_CIM + 1}"))]

    def pw(i0, i1):
        def f(i):
            a(f"s_add_u32 m0, s10, {1024 * i}")
            a(f"s_mov_b32 s12, {8 * 896 * i}")
            thr(a)
            a(f"buffer_load_dwordx4 v{vWo}, s[52:55], s12 offen lds")
        return [lambda i=i: f(i) for i in range(i0, i1)]

    if ENV("A1ST", 0):
        stamp(a, 1)
    run(px(2) + pb(2))
    c0, c1, c2, c3 = pc(0), pc(1), pc(2), pc(3)
    PFS = ENV("PFS", 6)
    sched = {0: px(3) + pb(3) + px(4), 1: pb(4) + px(5) + px(6), 2: pb(5), 4: pb(6),
             PFS: pf(P_CRE, 126) + pf(P_CIM, 127) + setc, 10: c0[0:2], 11: c0[2:4], 12: c0[4:6], 13: c0[6:8] + pf(P_WO, 126)}
    if ENV("FINE", 1):
        LA = ENV("LA", 3)
        assert LA in (3, 4)
        for p_ in range(3, LA):
            run(px(p_) + pb(p_))
        bgq = []
        for p_ in range(LA, 7):
            bgq.append(px(p_) + pb(p_))
        bgq.append(pf(P_CRE, 126) + pf(P_CIM, 127) + setc)
        while len(bgq) < 5:
            bgq.append([])
        bgq += [c0[0:4], c0[4:8] + pf(P_WO, 126)]

        def rd(s_):
            u = UNIT[s_ // 2]
            for sg in range(2):
                q = 2 * (s_ % 2) + sg
                for tau in range(2):
                    a(f"ds_read_b128 {rng(FX(s_ % 2, tau, sg), 4)}, v{vXr + q} offset:{(s_ // 2) * 8192 + tau * 4096}")
                a(f"ds_read_b128 {rng(FB(s_ % 2, sg), 4)}, v{VBRH[q] if u == 4 else vBr + q} offset:{(u % 4) * 16384}")

        def mm(s_, q):
            for sg in range(2):
                for tau in range(2):
                    d = (D0, D1)[tau]
                    c = "0" if s_ == 0 and sg == 0 else rng(d, 16)
                    a(f"{MF32} {rng(d, 16)}, {rng(FX(s_ % 2, tau, sg), 4)}, {rng(FB(s_ % 2, sg), 4)}, {c}")
                    gap = ENV("AGAP", 0)
                    if q:
                        q.pop(0)()
                        gap -= 4
                    if gap > 0 and not (sg == 1 and tau == 1):
                        a(f"s_nop {gap - 1}")

        a.wait_vm(max(tokx[0], tokb[0]))
        arrive(a, C_XP)
        wait_cnt(a, C_XP, 4)
        rd(0)
        for p_ in range(7):
            q = list(bgq[p_])
            rd(2 * p_ + 1)
            if p_ < 6:
                a.wait_vm(max(tokx[p_ + 1], tokb[p_ + 1]))
                arrive(a, C_XP + p_ + 1)
                a("s_waitcnt lgkmcnt(7)")
            else:
                a("s_waitcnt lgkmcnt(6)")
            mm(2 * p_, q)
            if p_ < 6:
                wait_cnt(a, C_XP + p_ + 1, 4, sleep=0)
                rd(2 * p_ + 2)
            else:
                a("s_waitcnt lgkmcnt(0)")
            mm(2 * p_ + 1, q)
            assert not q
    else:
        STG = ((0, 4, C_XA0), (4, 8, C_XA1), (8, 14, C_XA2))
        for (k0, k1, cnt) in STG:
            a.wait_vm(max(tokx[k1 // 2 - 1], tokb[k1 // 2 - 1]))
            arrive(a, cnt)
            wait_cnt(a, cnt, 4)
            if ENV("A1ST", 0):
                stamp(a, {0: 2, 4: 3, 8: 4}[k0])
            if ENV("LATP", 0) and k0 == 8:
                def probe(slot, ins, wait):
                    a("s_waitcnt vmcnt(0) lgkmcnt(0)")
                    a("s_memtime s[98:99]")
                    a("s_waitcnt lgkmcnt(0)")
                    if ins:
                        a(ins)
                        a(wait)
                    a("s_memtime s[100:101]")
                    a("s_waitcnt lgkmcnt(0)")
                    a(f"s_sub_u32 s{80 + slot}, s100, s98")
                probe(1, f"buffer_load_dwordx4 v[128:131], v{vXd}, s[52:55], 0 offen sc1", "s_waitcnt vmcnt(0)")
                probe(2, f"buffer_load_dwordx4 v[128:131], v{vCd}, s[56:59], 0 offen", "s_waitcnt vmcnt(0)")
                probe(3, f"ds_read_b128 v[128:131], v{vXr}", "s_waitcnt lgkmcnt(0)")
                probe(4, None, None)
            a.lg = 0
            lt = {}

            def rd(s_):
                t = None
                u = UNIT[s_ // 2]
                for sg in range(2):
                    q = 2 * (s_ % 2) + sg
                    for tau in range(2):
                        a(f"ds_read_b128 {rng(FX(s_ % 2, tau, sg), 4)}, v{vXr + q} offset:{(s_ // 2) * 8192 + tau * 4096}")
                    t = a.one(f"ds_read_b128 {rng(FB(s_ % 2, sg), 4)}, v{VBRH[q] if u == 4 else vBr + q} offset:{(u % 4) * 16384}")
                lt[s_] = t
            rd(k0)
            for s_ in range(k0, k1):
                if s_ + 1 < k1:
                    rd(s_ + 1)
                a.wait_lg(lt[s_])
                q = list(sched.get(s_, []))
                for sg in range(2):
                    for tau in range(2):
                        d = (D0, D1)[tau]
                        c = "0" if s_ == 0 and sg == 0 else rng(d, 16)
                        if not ENV("NOMF1", 0):
                            a(f"{MF32} {rng(d, 16)}, {rng(FX(s_ % 2, tau, sg), 4)}, {rng(FB(s_ % 2, sg), 4)}, {c}")
                        if q:
                            q.pop(0)()
                            if len(q) > 3 - (2 * sg + tau):
                                q.pop(0)()
                        elif ASPACE:
                            a(f"s_sleep {ASPACE}")
                        for _ in range(ENV("ANOP", 0)):
                            a("s_nop 7")
                assert not q
    a(f"v_xor_b32 v5, 16, v{vX3}")
    a(f"v_xor_b32 v6, 64, v{vX3}")
    a(f"v_xor_b32 v7, 80, v{vX3}")
    for r in range(16):
        base = (vX3, 5, 6, 7)[2 * ((r // 4) % 2) + (r // 2) % 2]
        a(f"ds_read_u16 v{72 + r}, v{base} offset:{(8 * (r // 4) + r % 4) * 128}")
    srd(a, 52, P_WO, W_BYTES)
    a(f"s_mul_i32 s10, s{S_WA}, 14336")
    a(f"s_add_u32 s10, s10, {L_WO}")
    a("s_waitcnt lgkmcnt(0)")
    arrive(a, C_G1)
    for r in range(8):
        a(f"v_lshl_or_b32 v{XSK[r]}, v{73 + 2 * r}, 16, v{72 + 2 * r}")
    stamp(a, 7)
    BP = lambda r: 72 + 2 * r
    T = 6
    run(c1[0:3])
    a(f"s_setprio {ACMP}")
    for r in range(16):
        a(f"v_permlane16_swap_b32 v{D0 + r}, v{D1 + r}")
    for r in range(16):
        e = r % 2
        if r in (4, 8, 12):
            run(c1[2 + r // 4:3 + r // 4])
        if e == 0:
            a(f"v_pk_mul_f32 {pr(BP(r))}, {pr(K1)}, {pr(D0 + r)} op_sel:[0,0] op_sel_hi:[1,0]")
            a(f"v_pk_fma_f32 {pr(BP(r))}, {pr(K2)}, {pr(D1 + r)}, {pr(BP(r))} op_sel:[0,0,0] op_sel_hi:[1,0,1]")
        else:
            a(f"v_pk_mul_f32 {pr(BP(r))}, {pr(D0 + r - 1)}, {pr(K1)} op_sel:[1,0] op_sel_hi:[1,1]")
            a(f"v_pk_fma_f32 {pr(BP(r))}, {pr(D1 + r - 1)}, {pr(K2)}, {pr(BP(r))} op_sel:[1,0,0] op_sel_hi:[1,1,1]")
        if r >= 2:
            pcmad(a, GS, M1, BP(0) if r == 2 else GS, BP(r - 1), T)
    pcmad(a, GS, M1, GS, BP(15), T)
    a(f"s_lshl_b32 s8, s{S_WA}, 9")
    a(f"s_add_u32 s8, s8, {L_ASCR}")
    a(f"v_lshl_add_u32 v5, v{V_LANE}, 3, s8")
    a(f"ds_write_b64 v5, {pr(GS)}")
    a(f"v_lshl_add_u32 v5, v{V_N}, 3, s8")
    SQ = 104
    for q in range(4):
        a(f"ds_read_b64 {pr(SQ + 2 * q)}, v5 offset:{128 * q}")
    srd(a, 60, P_WS, EG_BYTES, EG_OFF)
    a(f"s_mul_i32 s8, s{S_PG}, 7168")
    a(f"v_mov_b32 v115, s{S_NONCE}")
    a("s_waitcnt lgkmcnt(0)")
    pcmad(a, 112, M16, SQ, SQ + 2, T)
    pcmad(a, 112, M16, 112, SQ + 4, T)
    pcmad(a, 112, M16, 112, SQ + 6, T)
    a("v_mov_b32 v114, v113")
    a(f"v_mov_b32 v113, s{S_NONCE}")
    a("s_mov_b64 exec, 0xffff")
    a(f"buffer_store_dwordx4 v[112:115], v{V_P16}, s[60:63], s8 offen sc1")
    a("s_mov_b64 exec, -1")
    a(f"s_setprio {AMEM}")
    stamp(a, 8)
    run(c1[6:8])
    wait_cnt(a, C_G1, 4)
    wait_cnt(a, C_WO, 4)
    NW1 = ENV("NW1", 8)
    if not WOB:
        run(pw(0, NW1))
    a.wait_vm(tokc[0])
    rd_c(0)
    if WOB:
        a("s_waitcnt lgkmcnt(0)")
        run(c2)
        c2, c3 = c3, []
    if EPD:
        a(f"s_sleep {EPD}")
    EGR = 40
    a(f"s_mov_b32 s79, {SPIN}")
    a.label("F_EP")
    for i in range(8):
        a(f"buffer_load_dwordx4 {rng(EGR + 4 * i, 4)}, v{vEA + i}, s[60:63], 0 offen sc1")
        thr(a)
    a("s_mov_b64 s[8:9], 0")
    a(f"s_setprio {ACMP}")
    a("s_waitcnt vmcnt(0)")
    for i in range(8):
        a(f"v_cmp_ne_u32 s[12:13], s{S_NONCE}, v{EGR + 4 * i + 1}")
        a(f"v_cmp_ne_u32 vcc, s{S_NONCE}, v{EGR + 4 * i + 3}")
        a(f"v_mov_b32 v{EGR + 4 * i + 1}, v{EGR + 4 * i + 2}")
        a("s_or_b64 s[12:13], s[12:13], vcc")
        a(f"s_and_b64 s[12:13], s[12:13], s[{EMASK[i]}:{EMASK[i] + 1}]")
        a("s_or_b64 s[8:9], s[8:9], s[12:13]")
    a("s_cbranch_scc0 F_EOK")
    a("s_sleep 8")
    a("s_sub_u32 s79, s79, 1")
    a("s_cmp_lg_u32 s79, 0")
    a("s_cbranch_scc1 F_EP")
    a.label("F_EOK")
    stamp(a, 9)
    a.vm = 0
    a("s_waitcnt lgkmcnt(0)")
    rd_c(1)
    if WOB:
        rd_c(2)
        a("s_waitcnt lgkmcnt(8)")
    run(c2[0:4])
    pcmad(a, GS, M64, EGR, EGR + 4, T)
    for i in range(2, 8):
        pcmad(a, GS, M64, GS, EGR + 4 * i, T)
    a(f"v_pk_mul_f32 {pr(T)}, {pr(MQ)}, {pr(GS)} op_sel:[1,1] op_sel_hi:[1,0] neg_lo:[1,0]")
    a(f"v_pk_fma_f32 {pr(GS)}, {pr(MQ)}, {pr(GS)}, {pr(T)} op_sel_hi:[0,1,1]")
    for sw in ("v_permlane16_swap_b32", "v_permlane32_swap_b32"):
        a(f"v_mov_b32 v{T}, v{GS}")
        a(f"v_mov_b32 v{T + 1}, v{GS + 1}")
        a(f"{sw} v{GS}, v{T}")
        a(f"{sw} v{GS + 1}, v{T + 1}")
        a(f"v_pk_add_f32 {pr(GS)}, {pr(GS)}, {pr(T)}")
    for q in range(3):
        a(f"s_lshl_b64 exec, -1, {16 * (q + 1)}")
        pcmad(a, GS, M16, GS, SQ + 2 * q, T)
    a("s_mov_b64 exec, -1")
    PKR, PKI = 40, 48
    for r in range(16):
        if r % 4 == 0:
            run(c2[4 + r // 4:5 + r // 4])
        pcmad(a, BP(r), M1, GS if r == 0 else BP(r - 1), BP(r), T)
        if r % 2 == 0 and r > 0:
            a(f"v_cvt_pk_bf16_f32 v{PKR + r // 2 - 1}, v{BP(r - 2)}, v{BP(r - 1)}")
            a(f"v_cvt_pk_bf16_f32 v{PKI + r // 2 - 1}, v{BP(r - 2) + 1}, v{BP(r - 1) + 1}")
    a(f"v_cvt_pk_bf16_f32 v{PKR + 7}, v{BP(14)}, v{BP(15)}")
    a(f"v_cvt_pk_bf16_f32 v{PKI + 7}, v{BP(14) + 1}, v{BP(15) + 1}")
    a(f"ds_write_b128 v{vTw}, {rng(PKR, 4)}")
    a(f"ds_write_b128 v{vTw}, {rng(PKR + 4, 4)} offset:16")
    a(f"ds_write_b128 v{vTw}, {rng(PKI, 4)} offset:2304")
    a(f"ds_write_b128 v{vTw}, {rng(PKI + 4, 4)} offset:2320")
    HO = 56
    for part in range(2):
        for tau in range(2):
            for u in range(2):
                r = HO + 8 * part + 4 * tau + 2 * u
                a(f"ds_read_b64_tr_b16 v[{r}:{r + 1}], v{vTr} offset:{part * 2304 + u * 576 + tau * 32}")
    srd(a, 60, P_WS, HF_BYTES, HF_OFF)
    a(f"s_lshl_b32 s8, s{S_HP}, 2")
    a(f"s_add_u32 s8, s8, s{S_WA}")
    a(f"s_mul_i32 s9, s{S_PG}, 56")
    a("s_add_u32 s9, s9, s8")
    a("s_lshl_b32 s9, s9, 11")
    a(f"s_add_u32 s12, s9, {28 * 2048}")
    a(f"s_mul_i32 s13, s{S_PG}, 28")
    a("s_add_u32 s13, s13, s8")
    a("s_lshl_b32 s13, s13, 6")
    a(f"s_add_u32 s13, s13, {HFL_OFF}")
    a("v_mov_b32 v6, 0")
    a("s_waitcnt lgkmcnt(0)")
    for part in range(2):
        for tau in range(2):
            a(f"buffer_store_dwordx4 {rng(HO + 8 * part + 4 * tau, 4)}, v{V_L16}, s[60:63], {'s12' if part else 's9'} offen offset:{1024 * tau} sc1")
    a("s_waitcnt vmcnt(0)")
    a("s_mov_b64 exec, 1")
    a("buffer_store_dword v115, v6, s[64:67], s13 offen sc1")
    a("s_mov_b64 exec, -1")
    a(f"s_setprio {AMEM}")
    stamp(a, 10)
    if not WOB:
        rd_c(2)
    run(c3)
    if not WOB:
        run(pw(NW1, 15))
    a.wait_vm(tokc[3])
    rd_c(3)
    a("s_waitcnt lgkmcnt(0)")
    arrive(a, C_ARED)


def a3(a):
    acc = lambda ta, b: 40 + 32 * ta + 16 * b
    a("s_mul_i32 s8, s14, 14")
    a(f"s_mul_i32 s13, s{S_PG}, 28")
    a("s_add_u32 s13, s13, s8")
    a("s_lshl_b32 s13, s13, 6")
    a(f"s_add_u32 s13, s13, {HFL_OFF}")
    a(f"s_lshl_b32 s12, s{S_PG}, 1")
    a("s_add_u32 s12, s12, s15")
    a("s_mul_i32 s12, s12, 28")
    a("s_add_u32 s72, s12, s8")
    a("s_lshl_b32 s72, s72, 11")
    a(f"s_lshl_b32 s73, s{S_HP}, 5")
    a(f"v_and_b32 v6, 31, v{V_LANE}")
    a("v_add_lshl_u32 v6, v6, s73, 7")
    a("s_lshl_b32 s9, s14, 1")
    a("s_add_u32 s9, s9, s12")
    a("s_add_u32 s9, s9, 12")
    a("s_lshl_b32 s9, s9, 11")
    a("s_lshl_b32 s8, s14, 4")
    a("s_add_u32 s12, s12, s8")
    a("s_lshl_b32 s12, s12, 11")
    srd(a, 56, P_OUT, OUT_BYTES)
    F = acc(0, 0)
    for r in range(16):
        x = XSK[r // 2]
        a(f"v_and_b32 v{F + r}, 0xffff0000, v{x}" if r % 2 else f"v_lshlrev_b32 v{F + r}, 16, v{x}")
    for r in range(0, 16, 2):
        a(f"v_pk_mul_f32 {pr(F + r)}, {pr(vD3 - 1)}, {pr(F + r)} op_sel:[1,0] op_sel_hi:[1,1]")
    a("s_waitcnt vmcnt(0)")
    arrive(a, C_WO)
    poll_flags(a, vF3, 64, "s13", sleep=4)
    stamp(a, 11)
    a.vm = 0
    if ENV('HPF', 0):
        a("buffer_load_dword v126, v6, s[60:63], s72 offen sc1")
    pool = [16, 24, 32, 104, 112, 240, 248]
    hreg, tok = {}, {}
    _thr[0] = ENV("THRH", 4)

    def step_off(kk):
        if kk == 11:
            a("s_mov_b32 s12, s9")
        elif kk % 2 == 1:
            a("s_add_u32 s12, s12, 4096")

    if not ENV("HSTAGE", 1):
        nxt = [0]

        def ldh():
            kk = nxt[0]
            r = hreg[kk] = pool.pop(0)
            off = (kk % 2) * 2048
            a(f"buffer_load_dwordx4 {rng(r, 4)}, v{vH0}, s[60:63], s12 offen offset:{off} sc1")
            tok[kk] = a.one(f"buffer_load_dwordx4 {rng(r + 4, 4)}, v{vH1}, s[60:63], s12 offen offset:{off} sc1")
            step_off(kk)
            nxt[0] += 1

        HD = ENV("HD", 3)
        for _ in range(HD):
            ldh()
        a(f"s_mul_i32 s10, s{S_WA}, 12288")
        a(f"s_add_u32 s10, s10, {L_ARED}")
        a(f"v_add_u32 v13, s10, v{V_L16}")
        a(f"s_setprio {ENV('A3PRIO', 2)}")
        for kk in range(14):
            a.wait_vm(tok[kk])
            if nxt[0] < 14:
                ldh()
            for ta in range(2):
                for b in range(2):
                    d = acc(ta, b)
                    c = "0" if kk == 0 and d != F else rng(d, 16)
                    a(f"{MF32} {rng(d, 16)}, {rng(hreg[kk] + 4 * ta, 4)}, {rng(CF(kk, b), 4)}, {c}")
            pool.append(hreg[kk])
        a("s_setprio 2")
        wait_cnt(a, C_ARED, 4)
        last = 8
    else:
        last = 12
        for kk in range(7):
            r = hreg[kk] = pool[kk]
            off = (kk % 2) * 2048
            a(f"buffer_load_dwordx4 {rng(r, 4)}, v{vH0}, s[60:63], s12 offen offset:{off} sc1")
            tok[kk] = a.one(f"buffer_load_dwordx4 {rng(r + 4, 4)}, v{vH1}, s[60:63], s12 offen offset:{off} sc1")
            step_off(kk)
            thr(a)
        a(f"s_mul_i32 s10, s{S_WA}, 12288")
        a(f"s_add_u32 s10, s10, {L_ARED}")
        a(f"v_add_u32 v13, s10, v{V_L16}")
        wait_cnt(a, C_ARED, 4)
        for kk in range(7, 13):
            off = (kk % 2) * 2048
            a(f"s_add_u32 m0, s10, {(kk - 7) * 2048 - off + 4096}")
            a("s_sub_u32 m0, m0, 4096")
            a(f"buffer_load_dwordx4 v{vH0}, s[60:63], s12 offen offset:{off} sc1 lds")
            a("s_add_u32 m0, m0, 1024")
            thr(a)
            tok[kk] = a.one(f"buffer_load_dwordx4 v{vH1}, s[60:63], s12 offen offset:{off} sc1 lds")
            step_off(kk)
        a(f"s_setprio {ENV('A3PRIO', 0)}")
        if ENV("A3ST", 0):
            stamp(a, 1)
        GK = ENV("A3K", 0)
        if ENV("A3GATE", 1) and GK == 0:
            wait_cnt(a, C_RED2, 4, sleep=2)
        a.lg = 0
        lt = {}
        for kk in range(14):
            if GK and kk == GK:
                wait_cnt(a, C_RED2, 4, sleep=2)
            if kk < 7 or kk == 13:
                a.wait_vm(tok[kk])
            else:
                a.wait_lg(lt[kk])
            for ta in range(2):
                for b in range(2):
                    d = acc(ta, b)
                    c = "0" if kk == 0 and d != F else rng(d, 16)
                    if not ENV("NOMF3", 0):
                        a(f"{MF32} {rng(d, 16)}, {rng(hreg[kk] + 4 * ta, 4)}, {rng(CF(kk, b), 4)}, {c}")
            if kk == 0:
                r = hreg[13] = hreg[0]
                a(f"buffer_load_dwordx4 {rng(r, 4)}, v{vH0}, s[60:63], s12 offen offset:2048 sc1")
                tok[13] = a.one(f"buffer_load_dwordx4 {rng(r + 4, 4)}, v{vH1}, s[60:63], s12 offen offset:2048 sc1")
            elif kk <= 6:
                n = kk + 6
                r = hreg[n] = hreg[kk]
                if kk == 1:
                    a.wait_vm(tok[12])
                    if ENV("A3ST", 0):
                        stamp(a, 2)
                a(f"ds_read_b128 {rng(r, 4)}, v13 offset:{(n - 7) * 2048}")
                lt[n] = a.one(f"ds_read_b128 {rng(r + 4, 4)}, v13 offset:{(n - 7) * 2048 + 1024}")
            if kk == 12:
                arrive(a, C_ARED)
        a("s_setprio 2")
        if ENV("A3ST", 0):
            stamp(a, 3)
        wait_cnt(a, C_ARED, 8)
        if ENV("A3ST", 0):
            stamp(a, 4)
    for j in range(1, 4):
        a(f"s_xor_b32 s8, s{S_WA}, {j}")
        a("s_mul_i32 s8, s8, 12288")
        a(f"s_add_u32 s8, s8, {L_ARED}")
        a(f"v_add_u32 v5, s8, v{V_L16}")
        for qd in range(4):
            a(f"ds_write_b128 v5, {rng(acc(j // 2, j % 2) + 4 * qd, 4)} offset:{(j - 1) * 4096 + qd * 1024}")
    a("s_waitcnt lgkmcnt(0)")
    arrive(a, C_ARED)
    wait_cnt(a, C_ARED, last)
    if ENV("A3ST", 0):
        stamp(a, 5)
    a.lg = 0
    toks = {}
    for qd in range(4):
        for j in range(1, 4):
            toks[qd, j] = a.one(f"ds_read_b128 {rng(acc(j // 2, j % 2) + 4 * qd, 4)}, v13 offset:{(j - 1) * 4096 + qd * 1024}")
    a("s_mov_b32 s8, 0")
    for qd in range(4):
        a.wait_lg(toks[qd, 3])
        for j in range(1, 4):
            for r in range(0, 4, 2):
                x, y = F + 4 * qd + r, acc(j // 2, j % 2) + 4 * qd + r
                add2(a, x, y)
        for r in range(4):
            a(f"buffer_store_dword v{F + 4 * qd + r}, v{vO3}, s[56:59], s8 offen offset:{3584 * (r % 2)}{OSC1}")
            if r % 2 == 1:
                a("s_add_u32 s8, s8, 7168")
    stamp(a, 13)


if __name__ == "__main__":
    import sys
    NAME = "concat_heads__ssm_conv_s5__grouped_kv_mqa__prompt"
    ref = open(f"cdna_kernels/{NAME}.s.ref").read().split("\n")
    head = [l for l in ref if l.startswith(";") and "@launch" not in l and "Override" not in l and "grid=ceil" not in l]
    a = Asm()
    a.raw("\n".join(head))
    KN = NAME + "_kernel" if ENV("SINGLE", 0) else "f_kernel"
    a.raw(f"; @launch {'' if ENV('SINGLE', 0) else 'kernel=f_kernel '}grid=(256,1,1) block=(512,1,1) lds={F_LDS}")
    a.raw('.amdgcn_target "amdgcn-amd-amdhsa--gfx950"\n.text')
    a.raw("""; ---------------------------------------------------------------------------------------------------------------
; ---------------------------------------------------------------------------------------------------------------""")
    gen_g(a, KN)
    a.raw(".p2align 8\n.fill 4096, 4, 0xbf800000")
    a.raw('.section .rodata,"a"')
    a.raw(kernel_desc(KN, 256))
    out = sys.argv[1] if len(sys.argv) > 1 else f"cdna_kernels/{NAME}.s"
    open(out, "w").write(a.text())
    print("wrote", out, "nops", a.nops)
```
